```python
import torch

def _softmax(x, axis=-1):
    return torch.softmax(x, dim=axis)
def _gelu(x):
    return torch.nn.functional.gelu(x, approximate="tanh")
def _silu(x):
    return torch.nn.functional.silu(x)
def _sigmoid(x):
    return torch.sigmoid(x)
def _layernorm(x, axis=-1, eps=1e-5):
    m = x.mean(dim=axis, keepdim=True)
    v = x.var(dim=axis, keepdim=True, unbiased=False)
    return (x - m) / torch.sqrt(v + eps)
def _scatter_add(tgt, idx, src, axis=0):
    return tgt.clone().index_add_(axis, idx, src)
def _segment_sum(src, seg, n):
    out = torch.zeros((n,) + src.shape[1:], dtype=src.dtype)
    return out.index_add_(0, seg, src)
def _pad(x, pw):
    flat = tuple(v for pair in reversed(pw) for v in pair)
    return torch.nn.functional.pad(x, flat)

kernel_name = 'sequential_preLN__sliding_block__mixer_s_mlp__prompt'

def setup_inputs():

    _w = (lambda a: (lambda t: t.to(torch.bfloat16) if t.is_floating_point() else t)(torch.as_tensor(a)))
    def _A_setup():
        B, S, D = 1, 2048, 640
        return {
            "x": _w((lambda *s: torch.randn(*s, dtype=torch.bfloat16) * 0.05)(B, S, D)),
            "wqkv": _w((lambda *s: torch.randn(*s, dtype=torch.bfloat16) * 0.05)(D, 3 * D)),
            "wo": _w((lambda *s: torch.randn(*s, dtype=torch.bfloat16) * 0.05)(D, D)),
        }
    _A_in = _A_setup()

    def _B_setup():
        B, S, D, F = 1, 2048, 640, 1536
        return {
            "x":  _w((lambda *s: torch.randn(*s, dtype=torch.bfloat16) * 0.05)(B, S, D)),
            "w1": _w((lambda *s: torch.randn(*s, dtype=torch.bfloat16) * 3.2)(D, D) * (D ** -0.5)),
            "w2": _w((lambda *s: torch.randn(*s, dtype=torch.bfloat16) * 3.2)(D, D) * (D ** -0.5)),
            "w3": _w((lambda *s: torch.randn(*s, dtype=torch.bfloat16) * 3.2)(D, F) * (D ** -0.5)),
            "w4": _w((lambda *s: torch.randn(*s, dtype=torch.bfloat16) * 3.2)(F, D) * (F ** -0.5)),
        }
    _B_in = _B_setup()

    return {
        "A_x": _A_in["x"],
        "A_wqkv": _A_in["wqkv"],
        "A_wo": _A_in["wo"],
        "B_x": _B_in["x"],
        "B_w1": _B_in["w1"],
        "B_w2": _B_in["w2"],
        "B_w3": _B_in["w3"],
        "B_w4": _B_in["w4"],
    }

def reference(A_x, A_wqkv, A_wo, B_x, B_w1, B_w2, B_w3, B_w4):
    def _A_ref(x, wqkv, wo):
        B, S, D = x.shape
        H = 32; Dh = D // H; W = 256
        qkv = (lambda x, *d: x.permute(*d))((x @ wqkv).reshape(B, S, 3, H, Dh), 2, 0, 3, 1, 4)
        q, k, v = qkv[0], qkv[1], qkv[2]
        scores = torch.einsum("bhqd,bhkd->bhqk", q, k) * (Dh ** -0.5)
        idx = torch.arange(S)
        mask = (idx[:, None] - idx[None, :] >= 0) & (idx[:, None] - idx[None, :] < W)
        scores = torch.where(mask[None, None], scores, -1e9)
        p = _softmax(scores, axis=-1)
        o = torch.einsum("bhqk,bhkd->bhqd", p, v)
        return (lambda x, *d: x.permute(*d))(o, 0, 2, 1, 3).reshape(B, S, D) @ wo

    def _B_ref(x, w1, w2, w3, w4):
        B, S, D = x.shape
        h = _gelu(_layernorm(x, axis=-1) @ w1)
        c = D // 4
        g0 = _pad(h[:, :, 0*c:1*c], ((0, 0), (1, 0), (0, 0)))[:, :S, :]
        g1 = _pad(h[:, :, 1*c:2*c], ((0, 0), (0, 1), (0, 0)))[:, 1:, :]
        g2 = _pad(h[:, :, 2*c:3*c], ((0, 0), (2, 0), (0, 0)))[:, :S, :]
        g3 = _pad(h[:, :, 3*c:   ], ((0, 0), (0, 2), (0, 0)))[:, 2:, :]
        hs = torch.concatenate([g0, g1, g2, g3], axis=-1) @ w2
        x1 = x + hs
        h2 = _gelu(_layernorm(x1, axis=-1) @ w3) @ w4
        return x1 + h2

    x = A_x
    h = x + _A_ref(_layernorm(x, axis=-1), A_wqkv, A_wo)
    h2 = h + _B_ref(_layernorm(h, axis=-1), B_w1, B_w2, B_w3, B_w4)
    return h2
```

```python
import sys, os

S = 2048
D = 640
F = 1536
H = 32
DH = 20

WS_Q = 0
WS_K = WS_Q + 32 * 2048 * 64
WS_VT = WS_K + 32 * 2048 * 64
WS_O = WS_VT + 640 * 2048 * 2
WS_H = WS_O + S * D * 2
WS_HG = WS_H + S * D * 2
WS_X1 = WS_HG + S * D * 2
WS_G = WS_X1 + S * D * 2
WS_ST = WS_G + S * F * 2
WS_END = WS_ST + S * 8

KA = dict(x=0, wqkv=8, wo=16, bx=24, w1=32, w2=40, w3=48, w4=56, out=64, dbg=72, ws=80)


class Asm:
    def __init__(self):
        self.lines = []
        self.vm = []
        self.lg = []
        Asm.uid = getattr(Asm, 'uid', 0)

    def e(self, s):
        self.lines.append("    " + s)

    def label(self, s):
        self.lines.append(s + ":")

    def c(self, s):
        self.lines.append("    ; " + s)

    def newlabel(self, p):
        Asm.uid += 1
        return "L_%s_%d" % (p, Asm.uid)

    def vmem(self, s, tag=None):
        self.e(s)
        self.vm.append(tag)

    def lds(self, s, tag=None):
        self.e(s)
        self.lg.append(tag)

    def _need(self, lst, tags):
        last = -1
        for i, t in enumerate(lst):
            if t in tags:
                last = i
        return last

    def wait_vm(self, tags):
        last = self._need(self.vm, tags)
        if last < 0:
            return
        n = len(self.vm) - 1 - last
        if n <= 63:
            self.e("s_waitcnt vmcnt(%d)" % n)
        self.vm = self.vm[last + 1:]

    def wait_lg(self, tags):
        last = self._need(self.lg, tags)
        if last < 0:
            return
        n = len(self.lg) - 1 - last
        assert n <= 15, n
        self.e("s_waitcnt lgkmcnt(%d)" % n)
        self.lg = self.lg[last + 1:]

    def wait_all(self):
        self.e("s_waitcnt vmcnt(0) lgkmcnt(0)")
        self.vm = []
        self.lg = []

    def wait_lg0(self):
        self.e("s_waitcnt lgkmcnt(0)")
        self.lg = []

    def wait_vm0(self):
        self.e("s_waitcnt vmcnt(0)")
        self.vm = []


def vr(b, n=1):
    return "v%d" % b if n == 1 else "v[%d:%d]" % (b, b + n - 1)


def ar(b, n=1):
    return "a%d" % b if n == 1 else "a[%d:%d]" % (b, b + n - 1)


def sr(b, n=1):
    return "s%d" % b if n == 1 else "s[%d:%d]" % (b, b + n - 1)


def build_srd(a, d, ptr, off, size):
    if off:
        a.e("s_add_u32 s%d, s%d, 0x%x" % (d, ptr, off))
        a.e("s_addc_u32 s%d, s%d, 0" % (d + 1, ptr + 1))
        a.e("s_and_b32 s%d, s%d, 0xffff" % (d + 1, d + 1))
    else:
        a.e("s_mov_b32 s%d, s%d" % (d, ptr))
        a.e("s_and_b32 s%d, s%d, 0xffff" % (d + 1, ptr + 1))
    a.e("s_mov_b32 s%d, 0x%x" % (d + 2, size))
    a.e("s_mov_b32 s%d, 0x00020000" % (d + 3))


def f32bits(x):
    import struct
    return struct.unpack("<I", struct.pack("<f", x))[0]


def sigma(nt, t, r):
    if nt == 5:
        return t
    if nt == 8:
        return t ^ r
    if nt == 6:
        return (t + (r >> 2)) % 6
    raise ValueError(nt)


def round_bf16(a, dst, src, tmp):
    a.e("v_cvt_pk_bf16_f32 %s, %s, %s" % (vr(tmp), vr(src), vr(src)))
    a.e("v_lshlrev_b32 %s, 16, %s" % (vr(dst), vr(tmp)))


def kernel_header(a, name):
    a.lines.append(".p2align 8")
    a.lines.append(".globl %s" % name)
    a.lines.append(".type %s,@function" % name)
    a.label(name)


def kernel_desc(name, nvgpr_arch, nagpr, nsgpr=96):
    acc = (nvgpr_arch + 3) // 4 * 4
    tot = acc + nagpr if nagpr else nvgpr_arch
    return """.amdhsa_kernel %s
  .amdhsa_next_free_vgpr %d
  .amdhsa_next_free_sgpr %d
  .amdhsa_accum_offset %d
  .amdhsa_group_segment_fixed_size 0
  .amdhsa_kernarg_size 88
  .amdhsa_user_sgpr_count 2
  .amdhsa_user_sgpr_kernarg_segment_ptr 1
  .amdhsa_system_sgpr_workgroup_id_x 1
.end_amdhsa_kernel
""" % (name, tot, nsgpr, acc)


GELU_C1 = -2.0 * 0.7978845608028654 * 1.4426950408889634
GELU_C2 = GELU_C1 * 0.044715


def gelu_inplace(a, x, t1, t2, s_c1, s_c2):
    a.e("v_mul_f32 %s, %s, %s" % (vr(t1), vr(x), vr(x)))
    a.e("v_mov_b32 %s, %s" % (vr(t2), sr(s_c1)))
    a.e("v_fma_f32 %s, %s, %s, %s" % (vr(t1), vr(t1), sr(s_c2), vr(t2)))
    a.e("v_mul_f32 %s, %s, %s" % (vr(t1), vr(t1), vr(x)))
    a.e("v_exp_f32 %s, %s" % (vr(t1), vr(t1)))
    a.e("s_nop 0")
    a.e("v_add_f32 %s, 1.0, %s" % (vr(t1), vr(t1)))
    a.e("v_rcp_f32 %s, %s" % (vr(t1), vr(t1)))
    a.e("s_nop 0")
    a.e("v_mul_f32 %s, %s, %s" % (vr(x), vr(x), vr(t1)))


def gen_gemm(name, K, N, Mt, Nt, a_src, w_key, ln, epi, shift=False, nbuf=None):
    a = Asm()
    mt = Mt // 64
    nt = Nt // 16
    WR = Mt // 4
    P = Nt * 2
    CH = 128 * P
    nch = K // 128
    nks = K // 32
    RB = S // Mt
    CB = N // Nt
    ntiles = RB * CB
    if nbuf is None:
        nbuf = min(nch, (160 * 1024) // CH)
    lds_bytes = nbuf * CH
    pitchA = K * 2

    V_LANE, V_L15, V_G = 1, 2, 3
    nxt = 4
    ngrp = 4 if shift else 1
    V_AOFF = nxt; nxt += mt * ngrp
    V_DMA = nxt; nxt += nt
    nset = (lds_bytes + 65535) // 65536
    V_B = nxt; nxt += nt * nset
    V_X16 = nxt; nxt += 1
    V_X32 = nxt; nxt += 1
    V_T = nxt; nxt += 12
    nxt = (nxt + 3) // 4 * 4
    V_ONES = nxt; nxt += 4
    V_ST = nxt; nxt += 4 * mt
    nxt = (nxt + 3) // 4 * 4
    NF = 6
    V_BF = nxt; nxt += NF * 4
    V_R1 = nxt; nxt += 2 * nt * mt if epi in ('res', 'x1', 'out') else 0
    V_R2 = nxt; nxt += 2 * nt * mt if epi in ('out',) else 0
    V_RS = nxt; nxt += 2 * mt if epi == 'x1' else 0
    nxt = (nxt + 3) // 4 * 4
    NAch = min(nch, (256 - nxt) // (16 * mt))
    nar = NAch * 4
    V_A = nxt; nxt += nar * mt * 4
    V_CS = V_A
    V_E = V_A + nt * 4
    V_AL = V_E + 16
    V_BE = V_AL + 4 * mt
    nv = nxt
    assert nv <= 256, (name, nv)
    assert nar * mt * 4 >= nt * 4 + 16 + 8 * mt
    A_ACC = 0
    A_CS = mt * nt * 4
    nagpr = A_CS + nt * 4

    S_WS, S_P = 4, 6
    SRD_A, SRD_W, SRD_O, SRD_R1, SRD_R2, SRD_ST = 8, 12, 16, 20, 24, 28
    S_W, S_RB, S_CB, S_ROW0, S_COL0, S_T0, S_T1, S_LB, S_KOFF = 32, 33, 34, 35, 36, 37, 38, 39, 40
    S_C1, S_C2, S_EX = 41, 42, 44
    S_SEC = 46

    kernel_header(a, name)
    L_end = name + "_end"
    a.e("s_cmp_ge_u32 s2, %d" % ntiles)
    a.e("s_cbranch_scc1 %s" % L_end)
    a.e("s_load_dwordx2 s[%d:%d], s[0:1], %d" % (S_WS, S_WS + 1, KA['ws']))
    a.e("s_load_dwordx2 s[%d:%d], s[0:1], %d" % (SRD_W, SRD_W + 1, KA[w_key]))
    if a_src[0] == 'in':
        a.e("s_load_dwordx2 s[%d:%d], s[0:1], %d" % (SRD_A, SRD_A + 1, KA[a_src[1]]))
    if epi == 'res':
        a.e("s_load_dwordx2 s[%d:%d], s[0:1], %d" % (SRD_R1, SRD_R1 + 1, KA['x']))
    if epi == 'out':
        a.e("s_load_dwordx2 s[%d:%d], s[0:1], %d" % (SRD_O, SRD_O + 1, KA['out']))
    a.e("s_and_b32 s%d, s2, 7" % S_T0)
    a.e("s_lshr_b32 s%d, s2, 3" % S_T1)
    rbx = RB // 8
    if CB in (8, 16):
        sh = 3 if CB == 8 else 4
        a.e("s_lshr_b32 s%d, s%d, %d" % (S_RB, S_T1, sh))
        a.e("s_and_b32 s%d, s%d, %d" % (S_CB, S_T1, CB - 1))
    else:
        assert rbx == 2
        a.e("s_cmp_ge_u32 s%d, %d" % (S_T1, CB))
        a.e("s_cselect_b32 s%d, 1, 0" % S_RB)
        a.e("s_mul_i32 s%d, s%d, %d" % (S_CB, S_RB, CB))
        a.e("s_sub_u32 s%d, s%d, s%d" % (S_CB, S_T1, S_CB))
    a.e("s_mul_i32 s%d, s%d, %d" % (S_T0, S_T0, rbx))
    a.e("s_add_u32 s%d, s%d, s%d" % (S_RB, S_RB, S_T0))
    a.e("s_mul_i32 s%d, s%d, %d" % (S_ROW0, S_RB, Mt))
    a.e("s_mul_i32 s%d, s%d, %d" % (S_COL0, S_CB, Nt))
    a.e("v_and_b32 v%d, 63, v0" % V_LANE)
    a.e("v_lshrrev_b32 v%d, 6, v0" % V_T)
    a.e("v_and_b32 v%d, 15, v0" % V_L15)
    a.e("v_bfe_u32 v%d, v0, 4, 2" % V_G)
    a.e("v_readfirstlane_b32 s%d, v%d" % (S_W, V_T))
    a.e("s_waitcnt lgkmcnt(0)")
    a.e("s_and_b32 s%d, s%d, 0xffff" % (SRD_W + 1, SRD_W + 1))
    a.e("s_mov_b32 s%d, 0x%x" % (SRD_W + 2, K * N * 2))
    a.e("s_mov_b32 s%d, 0x00020000" % (SRD_W + 3))
    if a_src[0] == 'in':
        a.e("s_and_b32 s%d, s%d, 0xffff" % (SRD_A + 1, SRD_A + 1))
        a.e("s_mov_b32 s%d, 0x%x" % (SRD_A + 2, S * K * 2))
        a.e("s_mov_b32 s%d, 0x00020000" % (SRD_A + 3))
    else:
        build_srd(a, SRD_A, S_WS, a_src[1], S * K * 2)
    if epi == 'qkv':
        build_srd(a, SRD_O, S_WS, WS_Q, WS_O - WS_Q)
    elif epi == 'res':
        build_srd(a, SRD_O, S_WS, WS_H, S * D * 2)
        a.e("s_and_b32 s%d, s%d, 0xffff" % (SRD_R1 + 1, SRD_R1 + 1))
        a.e("s_mov_b32 s%d, 0x%x" % (SRD_R1 + 2, S * D * 2))
        a.e("s_mov_b32 s%d, 0x00020000" % (SRD_R1 + 3))
    elif epi == 'gelu':
        build_srd(a, SRD_O, S_WS, WS_HG if N == D else WS_G, S * N * 2)
        if ln == 2:
            build_srd(a, SRD_ST, S_WS, WS_ST, S * 8)
    elif epi == 'x1':
        build_srd(a, SRD_O, S_WS, WS_X1, S * D * 2)
        build_srd(a, SRD_R1, S_WS, WS_H, S * D * 2)
        build_srd(a, SRD_ST, S_WS, WS_ST, S * 8)
    elif epi == 'out':
        a.e("s_and_b32 s%d, s%d, 0xffff" % (SRD_O + 1, SRD_O + 1))
        a.e("s_mov_b32 s%d, 0x%x" % (SRD_O + 2, S * D * 2))
        a.e("s_mov_b32 s%d, 0x00020000" % (SRD_O + 3))
        build_srd(a, SRD_R1, S_WS, WS_X1, S * D * 2)
        build_srd(a, SRD_R2, S_WS, WS_H, S * D * 2)

    a.e("s_mul_i32 s%d, s%d, %d" % (S_T0, S_W, WR))
    a.e("s_add_u32 s%d, s%d, s%d" % (S_T0, S_T0, S_ROW0))
    a.e("v_add_u32 v%d, s%d, v%d" % (V_T, S_T0, V_L15))
    a.e("s_mov_b32 s%d, %d" % (S_T1, pitchA))
    a.e("v_mul_lo_u32 v%d, v%d, s%d" % (V_T + 1, V_T, S_T1))
    a.e("v_lshl_add_u32 v%d, v%d, 4, v%d" % (V_T + 1, V_G, V_T + 1))
    shifts = [-1, 1, -2, 2] if shift else [0]
    for gi, shv in enumerate(shifts):
        for mi in range(mt):
            off = (mi * 16 + shv) * pitchA
            a.e("v_add_u32 v%d, 0x%x, v%d" % (V_AOFF + gi * mt + mi, off & 0xffffffff, V_T + 1))
    def a_load(ks, mi):
        gi = (ks * 32) // 160 if shift else 0
        a.vmem("buffer_load_dwordx4 %s, v%d, s[%d:%d], 0 offen offset:%d" % (
            vr(V_A + ((ks % nar) * mt + mi) * 4, 4), V_AOFF + gi * mt + mi, SRD_A, SRD_A + 3, ks * 64),
            ('A', ks // 4))

    for ks in range(4):
        for mi in range(mt):
            a_load(ks, mi)

    gpr = Nt // 8
    magic = (65536 + gpr - 1) // gpr
    for G in range(32 * gpr):
        assert (G * magic) >> 16 == G // gpr
    a.e("s_mov_b32 s%d, %d" % (S_T1, magic))
    for i in range(nt):
        T = V_T
        a.e("v_add_u32 v%d, %d, v%d" % (T, i * 64, V_LANE))
        a.e("v_mul_lo_u32 v%d, v%d, s%d" % (T + 1, T, S_T1))
        a.e("v_lshrrev_b32 v%d, 16, v%d" % (T + 1, T + 1))
        a.e("v_mul_u32_u24 v%d, %d, v%d" % (T + 2, gpr, T + 1))
        a.e("v_sub_u32 v%d, v%d, v%d" % (T + 2, T, T + 2))
        a.e("v_lshrrev_b32 v%d, 1, v%d" % (T + 3, T + 2))
        a.e("v_and_b32 v%d, 1, v%d" % (T + 2, T + 2))
        a.e("v_and_b32 v%d, 7, v%d" % (T + 4, T + 1))
        if nt == 8:
            a.e("v_xor_b32 v%d, v%d, v%d" % (T + 3, T + 3, T + 4))
        elif nt == 6:
            a.e("v_lshrrev_b32 v%d, 2, v%d" % (T + 4, T + 4))
            a.e("v_sub_u32 v%d, v%d, v%d" % (T + 3, T + 3, T + 4))
            a.e("v_add_u32 v%d, 6, v%d" % (T + 4, T + 3))
            a.e("v_min_u32 v%d, v%d, v%d" % (T + 3, T + 3, T + 4))
        a.e("v_bfe_u32 v%d, v%d, 2, 2" % (T + 4, T + 1))
        a.e("v_lshrrev_b32 v%d, 4, v%d" % (T + 5, T + 1))
        a.e("v_and_b32 v%d, 3, v%d" % (T + 6, T + 1))
        a.e("v_lshl_add_u32 v%d, v%d, 3, v%d" % (T + 6, T + 4, T + 6))
        a.e("v_lshl_add_u32 v%d, v%d, 2, v%d" % (T + 6, T + 5, T + 6))
        a.e("s_lshl_b32 s%d, s%d, 5" % (S_T0, S_W))
        a.e("v_add_u32 v%d, s%d, v%d" % (T + 6, S_T0, T + 6))
        a.e("s_mov_b32 s%d, %d" % (S_T0, N * 2))
        a.e("v_mul_lo_u32 v%d, v%d, s%d" % (T + 6, T + 6, S_T0))
        a.e("v_lshlrev_b32 v%d, 5, v%d" % (T + 3, T + 3))
        a.e("v_lshl_add_u32 v%d, v%d, 4, v%d" % (T + 3, T + 2, T + 3))
        a.e("s_lshl_b32 s%d, s%d, 1" % (S_T0, S_COL0))
        a.e("v_add3_u32 v%d, v%d, v%d, s%d" % (V_DMA + i, T + 6, T + 3, S_T0))
    a.e("s_mul_i32 s%d, s%d, %d" % (S_LB, S_W, 32 * P))

    def dma_chunk(c):
        buf = c % nbuf
        a.e("s_mov_b32 s%d, 0x%x" % (S_KOFF, c * 128 * N * 2))
        for i in range(nt):
            a.e("s_add_u32 m0, s%d, 0x%x" % (S_LB, buf * CH + i * 1024))
            a.e("s_nop 0")
            a.vmem("buffer_load_dwordx4 v%d, s[%d:%d], s%d offen lds" % (V_DMA + i, SRD_W, SRD_W + 3, S_KOFF),
                   ('B', c))

    dma_chunk(0)
    for c in range(1, nch):
        if c < NAch:
            for ks in range(c * 4, c * 4 + 4):
                for mi in range(mt):
                    a_load(ks, mi)
        if c < nbuf:
            dma_chunk(c)

    T = V_T
    a.e("v_lshrrev_b32 v%d, 2, v%d" % (T, V_L15))
    a.e("v_lshl_add_u32 v%d, v%d, 2, v%d" % (T + 1, V_G, T))
    a.e("v_mul_u32_u24 v%d, %d, v%d" % (T + 2, P, T + 1))
    a.e("v_and_b32 v%d, 3, v%d" % (T + 3, V_L15))
    a.e("v_lshl_add_u32 v%d, v%d, 3, v%d" % (T + 2, T + 3, T + 2))
    a.e("v_and_b32 v%d, 7, v%d" % (T + 1, T + 1))
    for t in range(nt):
        if nt == 5:
            a.e("v_add_u32 v%d, %d, v%d" % (V_B + t, t * 32, T + 2))
        elif nt == 8:
            a.e("v_xor_b32 v%d, %d, v%d" % (T + 3, t, T + 1))
            a.e("v_lshl_add_u32 v%d, v%d, 5, v%d" % (V_B + t, T + 3, T + 2))
        else:
            a.e("v_lshrrev_b32 v%d, 2, v%d" % (T + 3, T + 1))
            if t == 5:
                a.e("v_mul_u32_u24 v%d, 5, v%d" % (T + 3, T + 3))
                a.e("v_sub_u32 v%d, 5, v%d" % (T + 3, T + 3))
            else:
                a.e("v_add_u32 v%d, %d, v%d" % (T + 3, t, T + 3))
            a.e("v_lshl_add_u32 v%d, v%d, 5, v%d" % (V_B + t, T + 3, T + 2))
    for s_ in range(1, nset):
        for t in range(nt):
            a.e("v_add_u32 v%d, 0x%x, v%d" % (V_B + s_ * nt + t, s_ * 65536, V_B + t))
    a.e("v_xor_b32 v%d, 16, v%d" % (T, V_LANE))
    a.e("v_lshlrev_b32 v%d, 2, v%d" % (V_X16, T))
    a.e("v_xor_b32 v%d, 32, v%d" % (T, V_LANE))
    a.e("v_lshlrev_b32 v%d, 2, v%d" % (V_X32, T))
    for i in range(4):
        a.e("v_mov_b32 v%d, 0x3f803f80" % (V_ONES + i))
    for i in range(4 * mt):
        a.e("v_mov_b32 v%d, 0" % (V_ST + i))
    for i in range(nagpr):
        a.e("v_accvgpr_write_b32 a%d, 0" % i)

    V_OO = V_T + 8
    a.e("s_mul_i32 s%d, s%d, %d" % (S_T0, S_W, WR))
    a.e("s_add_u32 s%d, s%d, s%d" % (S_T0, S_T0, S_ROW0))
    a.e("v_add_u32 v%d, s%d, v%d" % (V_T + 9, S_T0, V_L15))
    opitch = N * 2
    a.e("s_mov_b32 s%d, %d" % (S_T1, opitch))
    a.e("v_mul_lo_u32 v%d, v%d, s%d" % (V_OO, V_T + 9, S_T1))
    a.e("v_lshl_add_u32 v%d, v%d, 3, v%d" % (V_OO, V_G, V_OO))
    a.e("s_lshl_b32 s%d, s%d, 1" % (S_T0, S_COL0))
    a.e("v_add_u32 v%d, s%d, v%d" % (V_OO, S_T0, V_OO))
    if mt == 2:
        a.e("v_add_u32 v%d, 0x%x, v%d" % (V_T + 10, 16 * opitch, V_OO))
    V_OOm = [V_OO, V_T + 10]
    if epi in ('res', 'x1', 'out'):
        for mi in range(mt):
            for t in range(nt):
                a.vmem("buffer_load_dwordx2 %s, v%d, s[%d:%d], 0 offen offset:%d" % (
                    vr(V_R1 + (mi * nt + t) * 2, 2), V_OOm[mi], SRD_R1, SRD_R1 + 3, t * 32), 'R')
    if epi == 'out':
        for mi in range(mt):
            for t in range(nt):
                a.vmem("buffer_load_dwordx2 %s, v%d, s[%d:%d], 0 offen offset:%d" % (
                    vr(V_R2 + (mi * nt + t) * 2, 2), V_OOm[mi], SRD_R2, SRD_R2 + 3, t * 32), 'R')
    if epi == 'x1':
        a.e("v_lshlrev_b32 v%d, 3, v%d" % (V_T + 11, V_T + 9))
        for mi in range(mt):
            a.vmem("buffer_load_dwordx2 %s, v%d, s[%d:%d], 0 offen offset:%d" % (
                vr(V_RS + mi * 2, 2), V_T + 11, SRD_ST, SRD_ST + 3, mi * 128), 'R')

    def main_loop(swapped):
        for c in range(nch):
            a.wait_vm([('A', c), ('B', c)])
            a.e("s_barrier")
            nc = c + nbuf - 1
            if c >= 1 and nc < nch:
                dma_chunk(nc)
            na = c + NAch - 1
            if c >= 1 and na < nch:
                for ks in range(na * 4, na * 4 + 4):
                    for mi in range(mt):
                        a_load(ks, mi)
            buf = c % nbuf
            frs = [(ks, t) for ks in range(4) for t in range(nt)]
            PD = NF - 1

            def rd(idx):
                ks, t = frs[idx]
                reg = V_BF + (idx % NF) * 4
                for r_ in range(2):
                    off = buf * CH + (ks * 32 + r_ * 16) * P
                    st = off // 65536
                    a.lds("ds_read_b64_tr_b16 %s, v%d offset:%d" % (vr(reg + r_ * 2, 2), V_B + st * nt + t, off % 65536),
                          ('F', idx))
            for idx in range(min(PD, len(frs))):
                rd(idx)
            for idx, (ks, t) in enumerate(frs):
                if idx + PD < len(frs):
                    rd(idx + PD)
                a.wait_lg([('F', idx)])
                reg = V_BF + (idx % NF) * 4
                gks = (c * 4 + ks) % nar
                for mi in range(mt):
                    av = vr(V_A + (gks * mt + mi) * 4, 4)
                    acc = ar(A_ACC + (mi * nt + t) * 4, 4)
                    if swapped:
                        a.e("v_mfma_f32_16x16x32_bf16 %s, %s, %s, %s" % (acc, vr(reg, 4), av, acc))
                    else:
                        a.e("v_mfma_f32_16x16x32_bf16 %s, %s, %s, %s" % (acc, av, vr(reg, 4), acc))
                if ln:
                    lab = a.newlabel("cs")
                    a.e("s_cmp_eq_u32 s%d, %d" % (S_W, t % 4))
                    a.e("s_cbranch_scc0 %s" % lab)
                    acc = ar(A_CS + t * 4, 4)
                    if swapped:
                        a.e("v_mfma_f32_16x16x32_bf16 %s, %s, %s, %s" % (acc, vr(reg, 4), vr(V_ONES, 4), acc))
                    else:
                        a.e("v_mfma_f32_16x16x32_bf16 %s, %s, %s, %s" % (acc, vr(V_ONES, 4), vr(reg, 4), acc))
                    a.label(lab)
                    jobs = [(mi, r_) for mi in range(mt) for r_ in range(4)]
                    per = (len(jobs) + nt - 1) // nt
                    for (mi, r_) in jobs[t * per:(t + 1) * per]:
                        ra = V_A + (gks * mt + mi) * 4 + r_
                        st = V_ST + mi * 4 + (r_ & 1) * 2
                        a.e("v_dot2c_f32_bf16 v%d, v%d, v%d" % (st, ra, V_ONES))
                        a.e("v_dot2c_f32_bf16 v%d, v%d, v%d" % (st + 1, ra, ra))

    def stats_finalize():
        for mi in range(mt):
            st = V_ST + mi * 4
            a.e("v_add_f32 v%d, v%d, v%d" % (st, st, st + 2))
            a.e("v_add_f32 v%d, v%d, v%d" % (st + 1, st + 1, st + 3))
        for xr in (V_X16, V_X32):
            for mi in range(mt):
                st = V_ST + mi * 4
                a.lds("ds_bpermute_b32 v%d, v%d, v%d" % (st + 2, xr, st))
                a.lds("ds_bpermute_b32 v%d, v%d, v%d" % (st + 3, xr, st + 1))
            a.wait_lg0()
            for mi in range(mt):
                st = V_ST + mi * 4
                a.e("v_add_f32 v%d, v%d, v%d" % (st, st, st + 2))
                a.e("v_add_f32 v%d, v%d, v%d" % (st + 1, st + 1, st + 3))
        a.e("s_mov_b32 s%d, 0x%x" % (S_T0, f32bits(1.0 / K)))
        a.e("s_mov_b32 s%d, 0x%x" % (S_T1, f32bits(1e-5)))
        for mi in range(mt):
            st = V_ST + mi * 4
            T = V_E
            a.e("v_mul_f32 v%d, s%d, v%d" % (st, S_T0, st))
            a.e("v_mul_f32 v%d, s%d, v%d" % (st + 1, S_T0, st + 1))
            a.e("v_fma_f32 v%d, -v%d, v%d, v%d" % (st + 1, st, st, st + 1))
            a.e("v_max_f32 v%d, 0, v%d" % (st + 1, st + 1))
            round_bf16(a, st + 2, st, T)
            round_bf16(a, T + 1, st + 1, T)
            a.e("v_add_f32 v%d, s%d, v%d" % (T + 1, S_T1, T + 1))
            round_bf16(a, T + 1, T + 1, T)
            a.e("v_sqrt_f32 v%d, v%d" % (T + 1, T + 1))
            a.e("s_nop 0")
            round_bf16(a, T + 1, T + 1, T)
            a.e("v_rcp_f32 v%d, v%d" % (st + 3, T + 1))
            a.e("s_nop 0")
            if ln == 1:
                a.e("v_mov_b32 v%d, v%d" % (V_AL + mi * 4, st + 3))
                a.e("v_mul_f32 v%d, v%d, v%d" % (V_BE + mi * 4, st + 2, st + 3))
            else:
                a.e("v_sub_f32 v%d, v%d, v%d" % (T + 2, st, st + 2))
                a.e("v_mul_f32 v%d, v%d, v%d" % (T + 2, T + 2, st + 3))
                round_bf16(a, T + 2, T + 2, T)
                a.e("v_mul_f32 v%d, v%d, v%d" % (T + 3, st + 1, st + 3))
                a.e("v_mul_f32 v%d, v%d, v%d" % (T + 3, T + 3, st + 3))
                round_bf16(a, T + 3, T + 3, T)
                a.e("v_add_f32 v%d, s%d, v%d" % (T + 3, S_T1, T + 3))
                round_bf16(a, T + 3, T + 3, T)
                a.e("v_sqrt_f32 v%d, v%d" % (T + 3, T + 3))
                a.e("s_nop 0")
                round_bf16(a, T + 3, T + 3, T)
                a.e("v_rcp_f32 v%d, v%d" % (T + 3, T + 3))
                a.e("s_nop 0")
                a.e("v_mul_f32 v%d, v%d, v%d" % (V_AL + mi * 4, st + 3, T + 3))
                a.e("v_mul_f32 v%d, v%d, v%d" % (T + 2, T + 2, T + 3))
                a.e("v_fma_f32 v%d, v%d, v%d, v%d" % (V_BE + mi * 4, st + 2, V_AL + mi * 4, T + 2))

    def colsum_exchange(swapped):
        a.wait_lg0()
        a.e("s_barrier")
        T = V_E
        if swapped:
            a.e("v_lshlrev_b32 v%d, 4, v%d" % (T, V_G))
            a.e("v_cmp_eq_u32 vcc, 0, v%d" % V_L15)
        else:
            a.e("v_lshlrev_b32 v%d, 2, v%d" % (T, V_L15))
            a.e("v_cmp_eq_u32 vcc, 0, v%d" % V_G)
        a.e("s_and_saveexec_b64 s[%d:%d], vcc" % (S_EX, S_EX + 1))
        for t in range(nt):
            lab = a.newlabel("cx")
            a.e("s_cmp_eq_u32 s%d, %d" % (S_W, t % 4))
            a.e("s_cbranch_scc0 %s" % lab)
            if swapped:
                for r_ in range(4):
                    a.e("v_accvgpr_read_b32 v%d, a%d" % (T + 4 + r_, A_CS + t * 4 + r_))
                a.e("ds_write_b128 v%d, %s offset:%d" % (T, vr(T + 4, 4), t * 64))
            else:
                a.e("v_accvgpr_read_b32 v%d, a%d" % (T + 4, A_CS + t * 4))
                a.e("ds_write_b32 v%d, v%d offset:%d" % (T, T + 4, t * 64))
            a.label(lab)
        a.e("s_mov_b64 exec, s[%d:%d]" % (S_EX, S_EX + 1))
        a.e("s_waitcnt lgkmcnt(0)")
        a.e("s_barrier")
        for t in range(nt):
            if swapped:
                a.lds("ds_read_b128 %s, v%d offset:%d" % (vr(V_CS + t * 4, 4), T, t * 64))
            else:
                a.lds("ds_read_b32 v%d, v%d offset:%d" % (V_CS + t * 4, T, t * 64))
        a.wait_lg0()

    def ln_apply_swapped(mi, t, dst):
        for r_ in range(4):
            a.e("v_accvgpr_read_b32 v%d, a%d" % (dst + r_, A_ACC + (mi * nt + t) * 4 + r_))
        for r_ in range(4):
            a.e("v_mul_f32 v%d, v%d, v%d" % (dst + r_, dst + r_, V_AL + mi * 4))
            a.e("v_fma_f32 v%d, -v%d, v%d, v%d" % (dst + r_, V_BE + mi * 4, V_CS + t * 4 + r_, dst + r_))

    E = V_E + 4

    if epi == 'qkv':
        L_v = name + "_vpath"
        a.e("s_cmp_ge_u32 s%d, 10" % S_CB)
        a.e("s_cbranch_scc1 %s" % L_v)
        saved = (list(a.vm), list(a.lg))
        main_loop(True)
        a.e("s_nop 7")
        a.e("s_nop 7")
        stats_finalize()
        colsum_exchange(True)
        a.e("s_cmp_ge_u32 s%d, 5" % S_CB)
        a.e("s_cselect_b32 s%d, 640, 0" % S_T0)
        a.e("s_cselect_b32 s%d, 0x%x, 0" % (S_SEC, WS_K - WS_Q))
        a.e("s_sub_u32 s%d, s%d, s%d" % (S_T0, S_COL0, S_T0))
        a.e("s_mov_b32 s%d, 3277" % S_T1)
        a.e("v_mov_b32 v%d, 0" % (E + 8))
        a.e("v_mov_b32 v%d, 0" % (E + 9))
        a.e("v_mov_b32 v%d, 0" % (E + 10))
        a.e("v_mov_b32 v%d, 0" % (E + 11))
        for t in range(nt):
            T = V_E
            a.e("v_lshl_add_u32 v%d, v%d, 2, s%d" % (T, V_G, S_T0))
            a.e("v_add_u32 v%d, %d, v%d" % (T, t * 16, T))
            a.e("v_mul_lo_u32 v%d, v%d, s%d" % (T + 1, T, S_T1))
            a.e("v_lshrrev_b32 v%d, 16, v%d" % (T + 1, T + 1))
            a.e("v_mul_u32_u24 v%d, 20, v%d" % (T + 2, T + 1))
            a.e("v_sub_u32 v%d, v%d, v%d" % (T + 2, T, T + 2))
            a.e("v_lshlrev_b32 v%d, 17, v%d" % (T + 1, T + 1))
            a.e("v_lshl_add_u32 v%d, v%d, 1, v%d" % (T + 1, T + 2, T + 1))
            a.e("v_lshl_add_u32 v%d, v%d, 6, v%d" % (T + 1, V_T + 9, T + 1))
            a.e("v_add_u32 v%d, s%d, v%d" % (T + 1, S_SEC, T + 1))
            a.e("v_cmp_eq_u32 vcc, 16, v%d" % (T + 2))
            for mi in range(mt):
                ln_apply_swapped(mi, t, E)
                a.e("v_cvt_pk_bf16_f32 v%d, v%d, v%d" % (E + 4, E, E + 1))
                a.e("v_cvt_pk_bf16_f32 v%d, v%d, v%d" % (E + 5, E + 2, E + 3))
                a.e("buffer_store_dwordx2 %s, v%d, s[%d:%d], 0 offen offset:%d" % (
                    vr(E + 4, 2), T + 1, SRD_O, SRD_O + 3, mi * 1024))
            lab = a.newlabel("pad")
            a.e("s_and_saveexec_b64 s[%d:%d], vcc" % (S_EX, S_EX + 1))
            a.e("s_cbranch_execz %s" % lab)
            for mi in range(mt):
                a.e("buffer_store_dwordx2 %s, v%d, s[%d:%d], 0 offen offset:%d" % (
                    vr(E + 8, 2), T + 1, SRD_O, SRD_O + 3, mi * 1024 + 8))
                a.e("buffer_store_dwordx4 %s, v%d, s[%d:%d], 0 offen offset:%d" % (
                    vr(E + 8, 4), T + 1, SRD_O, SRD_O + 3, mi * 1024 + 16))
            a.label(lab)
            a.e("s_mov_b64 exec, s[%d:%d]" % (S_EX, S_EX + 1))
        a.e("s_endpgm")
        a.label(L_v)
        a.vm, a.lg = saved
        main_loop(False)
        a.e("s_nop 7")
        a.e("s_nop 7")
        stats_finalize()
        colsum_exchange(False)
        T = V_E
        a.e("v_lshlrev_b32 v%d, 4, v%d" % (T, V_G))
        for mi in range(mt):
            for r_ in (3, 2, 1, 0):
                a.e("v_add_u32 v%d, %d, v%d" % (T + 1, r_ * 4, T))
                a.lds("ds_bpermute_b32 v%d, v%d, v%d" % (V_AL + mi * 4 + r_, T + 1, V_AL + mi * 4))
                a.lds("ds_bpermute_b32 v%d, v%d, v%d" % (V_BE + mi * 4 + r_, T + 1, V_BE + mi * 4))
                a.wait_lg0()
        a.e("s_sub_u32 s%d, s%d, 1280" % (S_T0, S_COL0))
        a.e("v_add_u32 v%d, s%d, v%d" % (T, S_T0, V_L15))
        a.e("v_lshlrev_b32 v%d, 12, v%d" % (T, T))
        a.e("s_mul_i32 s%d, s%d, %d" % (S_T0, S_W, WR))
        a.e("s_add_u32 s%d, s%d, s%d" % (S_T0, S_T0, S_ROW0))
        a.e("s_lshl_b32 s%d, s%d, 1" % (S_T0, S_T0))
        a.e("s_add_u32 s%d, s%d, 0x%x" % (S_T0, S_T0, WS_VT - WS_Q))
        a.e("v_lshl_add_u32 v%d, v%d, 3, v%d" % (T, V_G, T))
        a.e("v_add_u32 v%d, s%d, v%d" % (T, S_T0, T))
        for t in range(nt):
            for mi in range(mt):
                for r_ in range(4):
                    a.e("v_accvgpr_read_b32 v%d, a%d" % (E + r_, A_ACC + (mi * nt + t) * 4 + r_))
                for r_ in range(4):
                    a.e("v_mul_f32 v%d, v%d, v%d" % (E + r_, E + r_, V_AL + mi * 4 + r_))
                    a.e("v_fma_f32 v%d, -v%d, v%d, v%d" % (E + r_, V_BE + mi * 4 + r_, V_CS + t * 4, E + r_))
                a.e("v_cvt_pk_bf16_f32 v%d, v%d, v%d" % (E + 4, E, E + 1))
                a.e("v_cvt_pk_bf16_f32 v%d, v%d, v%d" % (E + 5, E + 2, E + 3))
                a.e("buffer_store_dwordx2 %s, v%d, s[%d:%d], 0 offen offset:%d" % (
                    vr(E + 4, 2), T, SRD_O, SRD_O + 3, mi * 32))
            a.e("v_add_u32 v%d, 0x%x, v%d" % (T, 16 * 4096, T))
    else:
        main_loop(True)
        a.e("s_nop 7")
        a.e("s_nop 7")
        if ln:
            stats_finalize()
            colsum_exchange(True)
        if epi == 'gelu':
            a.e("s_mov_b32 s%d, 0x%x" % (S_C1, f32bits(GELU_C1)))
            a.e("s_mov_b32 s%d, 0x%x" % (S_C2, f32bits(GELU_C2)))
            if ln == 2:
                lab = a.newlabel("st")
                a.e("s_cmp_eq_u32 s%d, 0" % S_CB)
                a.e("s_cbranch_scc0 %s" % lab)
                a.e("v_cmp_eq_u32 vcc, 0, v%d" % V_G)
                a.e("s_and_saveexec_b64 s[%d:%d], vcc" % (S_EX, S_EX + 1))
                a.e("v_lshlrev_b32 v%d, 3, v%d" % (V_E, V_T + 9))
                for mi in range(mt):
                    st = V_ST + mi * 4
                    a.e("buffer_store_dwordx2 %s, v%d, s[%d:%d], 0 offen offset:%d" % (
                        vr(st + 2, 2), V_E, SRD_ST, SRD_ST + 3, mi * 128))
                a.e("s_mov_b64 exec, s[%d:%d]" % (S_EX, S_EX + 1))
                a.label(lab)
        else:
            a.wait_vm(['R'])
        for mi in range(mt):
            for t in range(nt):
                if ln:
                    ln_apply_swapped(mi, t, E)
                else:
                    for r_ in range(4):
                        a.e("v_accvgpr_read_b32 v%d, a%d" % (E + r_, A_ACC + (mi * nt + t) * 4 + r_))
                a.e("v_cvt_pk_bf16_f32 v%d, v%d, v%d" % (E + 4, E, E + 1))
                a.e("v_cvt_pk_bf16_f32 v%d, v%d, v%d" % (E + 5, E + 2, E + 3))
                a.e("v_lshlrev_b32 v%d, 16, v%d" % (E, E + 4))
                a.e("v_and_b32 v%d, 0xffff0000, v%d" % (E + 1, E + 4))
                a.e("v_lshlrev_b32 v%d, 16, v%d" % (E + 2, E + 5))
                a.e("v_and_b32 v%d, 0xffff0000, v%d" % (E + 3, E + 5))
                if epi == 'gelu':
                    for r_ in range(4):
                        gelu_inplace(a, E + r_, E + 6, E + 7, S_C1, S_C2)
                else:
                    r1 = V_R1 + (mi * nt + t) * 2
                    a.e("v_lshlrev_b32 v%d, 16, v%d" % (E + 4, r1))
                    a.e("v_and_b32 v%d, 0xffff0000, v%d" % (E + 5, r1))
                    a.e("v_lshlrev_b32 v%d, 16, v%d" % (E + 6, r1 + 1))
                    a.e("v_and_b32 v%d, 0xffff0000, v%d" % (E + 7, r1 + 1))
                    if epi == 'x1':
                        for r_ in range(4):
                            a.e("v_sub_f32 v%d, v%d, v%d" % (E + 4 + r_, E + 4 + r_, V_RS + mi * 2))
                        a.e("v_cvt_pk_bf16_f32 v%d, v%d, v%d" % (E + 8, E + 4, E + 5))
                        a.e("v_cvt_pk_bf16_f32 v%d, v%d, v%d" % (E + 9, E + 6, E + 7))
                        a.e("v_lshlrev_b32 v%d, 16, v%d" % (E + 4, E + 8))
                        a.e("v_and_b32 v%d, 0xffff0000, v%d" % (E + 5, E + 8))
                        a.e("v_lshlrev_b32 v%d, 16, v%d" % (E + 6, E + 9))
                        a.e("v_and_b32 v%d, 0xffff0000, v%d" % (E + 7, E + 9))
                        for r_ in range(4):
                            a.e("v_mul_f32 v%d, v%d, v%d" % (E + 4 + r_, E + 4 + r_, V_RS + mi * 2 + 1))
                        a.e("v_cvt_pk_bf16_f32 v%d, v%d, v%d" % (E + 8, E + 4, E + 5))
                        a.e("v_cvt_pk_bf16_f32 v%d, v%d, v%d" % (E + 9, E + 6, E + 7))
                        a.e("v_lshlrev_b32 v%d, 16, v%d" % (E + 4, E + 8))
                        a.e("v_and_b32 v%d, 0xffff0000, v%d" % (E + 5, E + 8))
                        a.e("v_lshlrev_b32 v%d, 16, v%d" % (E + 6, E + 9))
                        a.e("v_and_b32 v%d, 0xffff0000, v%d" % (E + 7, E + 9))
                    for r_ in range(4):
                        a.e("v_add_f32 v%d, v%d, v%d" % (E + r_, E + r_, E + 4 + r_))
                    if epi == 'out':
                        a.e("v_cvt_pk_bf16_f32 v%d, v%d, v%d" % (E + 8, E, E + 1))
                        a.e("v_cvt_pk_bf16_f32 v%d, v%d, v%d" % (E + 9, E + 2, E + 3))
                        a.e("v_lshlrev_b32 v%d, 16, v%d" % (E, E + 8))
                        a.e("v_and_b32 v%d, 0xffff0000, v%d" % (E + 1, E + 8))
                        a.e("v_lshlrev_b32 v%d, 16, v%d" % (E + 2, E + 9))
                        a.e("v_and_b32 v%d, 0xffff0000, v%d" % (E + 3, E + 9))
                        r2 = V_R2 + (mi * nt + t) * 2
                        a.e("v_lshlrev_b32 v%d, 16, v%d" % (E + 4, r2))
                        a.e("v_and_b32 v%d, 0xffff0000, v%d" % (E + 5, r2))
                        a.e("v_lshlrev_b32 v%d, 16, v%d" % (E + 6, r2 + 1))
                        a.e("v_and_b32 v%d, 0xffff0000, v%d" % (E + 7, r2 + 1))
                        for r_ in range(4):
                            a.e("v_add_f32 v%d, v%d, v%d" % (E + r_, E + r_, E + 4 + r_))
                a.e("v_cvt_pk_bf16_f32 v%d, v%d, v%d" % (E + 10, E, E + 1))
                a.e("v_cvt_pk_bf16_f32 v%d, v%d, v%d" % (E + 11, E + 2, E + 3))
                a.e("buffer_store_dwordx2 %s, v%d, s[%d:%d], 0 offen offset:%d" % (
                    vr(E + 10, 2), V_OOm[mi], SRD_O, SRD_O + 3, t * 32))
    a.label(L_end)
    a.e("s_endpgm")
    return a.lines, kernel_desc(name, nv, nagpr), ntiles, lds_bytes


def gen_attn(name):
    a = Asm()
    KL = 0
    VL = 384 * 64
    PV = 800
    lds_bytes = VL + 22 * PV
    lds_bytes = (lds_bytes + 1023) // 1024 * 1024 + 1024

    V_LANE, V_L15, V_G = 1, 2, 3
    V_T = 4
    V_KA = 12
    V_VA = 14
    V_A = 16
    V_X16, V_X32, V_BS = 17, 18, 19
    V_Q = 20
    V_O = 28
    V_KF = 44
    V_VF = 60
    V_M = 76
    V_S = 80
    nv = V_S + 144
    S_WS = 4
    SRD_Q, SRD_K, SRD_V, SRD_O = 8, 12, 16, 20
    S_W, S_H, S_Q0, S_T0, S_T1, S_KS, S_C, S_EX = 32, 33, 34, 35, 36, 37, 38, 40

    kernel_header(a, name)
    L_end = name + "_end"
    a.e("s_cmp_ge_u32 s2, 512")
    a.e("s_cbranch_scc1 %s" % L_end)
    a.e("s_load_dwordx2 s[%d:%d], s[0:1], %d" % (S_WS, S_WS + 1, KA['ws']))
    a.e("s_and_b32 s%d, s2, 7" % S_T0)
    a.e("s_lshr_b32 s%d, s2, 3" % S_T1)
    a.e("s_lshl_b32 s%d, s%d, 2" % (S_H, S_T0))
    a.e("s_lshr_b32 s%d, s%d, 4" % (S_T0, S_T1))
    a.e("s_add_u32 s%d, s%d, s%d" % (S_H, S_H, S_T0))
    a.e("s_and_b32 s%d, s%d, 15" % (S_Q0, S_T1))
    a.e("s_lshl_b32 s%d, s%d, 7" % (S_Q0, S_Q0))
    a.e("v_and_b32 v%d, 63, v0" % V_LANE)
    a.e("v_lshrrev_b32 v%d, 6, v0" % V_T)
    a.e("v_and_b32 v%d, 15, v0" % V_L15)
    a.e("v_bfe_u32 v%d, v0, 4, 2" % V_G)
    a.e("v_readfirstlane_b32 s%d, v%d" % (S_W, V_T))
    a.e("s_waitcnt lgkmcnt(0)")
    build_srd(a, SRD_Q, S_WS, WS_Q, 32 * 2048 * 64)
    build_srd(a, SRD_K, S_WS, WS_K, 32 * 2048 * 64)
    build_srd(a, SRD_V, S_WS, WS_VT, 640 * 2048 * 2)
    build_srd(a, SRD_O, S_WS, WS_O, S * D * 2)
    T = V_T
    a.e("s_lshl_b32 s%d, s%d, 11" % (S_T0, S_H))
    a.e("s_add_u32 s%d, s%d, s%d" % (S_T0, S_T0, S_Q0))
    a.e("s_sub_u32 s%d, s%d, 256" % (S_T0, S_T0))
    a.e("s_mul_i32 s%d, s%d, 96" % (S_T1, S_W))
    a.e("s_add_u32 s%d, s%d, s%d" % (S_T0, S_T0, S_T1))
    a.e("s_lshl_b32 s%d, s%d, 6" % (S_KS, S_T0))
    a.e("v_lshrrev_b32 v%d, 2, v%d" % (T, V_LANE))
    a.e("v_lshlrev_b32 v%d, 6, v%d" % (T, T))
    a.e("v_add_u32 v%d, s%d, v%d" % (T, S_KS, T))
    a.e("v_and_b32 v%d, 3, v%d" % (T + 1, V_LANE))
    a.e("v_lshl_add_u32 v%d, v%d, 4, v%d" % (T + 2, T + 1, T))
    a.e("v_xor_b32 v%d, 2, v%d" % (T + 1, T + 1))
    a.e("v_lshl_add_u32 v%d, v%d, 4, v%d" % (T + 3, T + 1, T))
    a.e("s_mul_i32 s%d, s%d, 6144" % (S_T1, S_W))
    for i in range(6):
        a.e("s_add_u32 m0, s%d, %d" % (S_T1, KL + i * 1024))
        a.e("v_add_u32 v%d, %d, v%d" % (T + 4 + (i & 1), i * 1024, T + 2 + (i & 1)))
        a.vmem("buffer_load_dwordx4 v%d, s[%d:%d], 0 offen lds" % (T + 4 + (i & 1), SRD_K, SRD_K + 3))
    a.e("s_mul_i32 s%d, s%d, 20" % (S_T0, S_H))
    a.e("s_lshl_b32 s%d, s%d, 12" % (S_T0, S_T0))
    a.e("s_lshl_b32 s%d, s%d, 1" % (S_T1, S_Q0))
    a.e("s_add_u32 s%d, s%d, s%d" % (S_T0, S_T0, S_T1))
    a.e("s_sub_u32 s%d, s%d, 512" % (S_T0, S_T0))
    a.e("s_lshl_b32 s%d, s%d, 8" % (S_T1, S_W))
    a.e("s_mov_b32 s%d, 1311" % S_C)
    for G in range(1024):
        assert (G * 1311) >> 16 == G // 50
    for i in range(4):
        a.e("v_add_u32 v%d, s%d, v%d" % (T, S_T1, V_LANE))
        if i:
            a.e("v_add_u32 v%d, %d, v%d" % (T, i * 64, T))
        a.e("v_mul_lo_u32 v%d, v%d, s%d" % (T + 1, T, S_C))
        a.e("v_lshrrev_b32 v%d, 16, v%d" % (T + 1, T + 1))
        a.e("v_mul_u32_u24 v%d, 50, v%d" % (T + 2, T + 1))
        a.e("v_sub_u32 v%d, v%d, v%d" % (T + 2, T, T + 2))
        a.e("v_lshlrev_b32 v%d, 12, v%d" % (T + 3, T + 1))
        a.e("v_lshl_add_u32 v%d, v%d, 4, v%d" % (T + 3, T + 2, T + 3))
        a.e("v_add_u32 v%d, s%d, v%d" % (T + 3, S_T0, T + 3))
        a.e("v_cmp_le_u32 vcc, 20, v%d" % (T + 1))
        a.e("v_cmp_le_u32 s[%d:%d], 48, v%d" % (S_EX, S_EX + 1, T + 2))
        a.e("s_or_b64 vcc, vcc, s[%d:%d]" % (S_EX, S_EX + 1))
        a.e("v_mov_b32 v%d, 0x7fffff00" % (T + 4))
        a.e("s_lshl_b32 m0, s%d, 12" % S_W)
        a.e("v_cndmask_b32 v%d, v%d, v%d, vcc" % (T + 3, T + 3, T + 4))
        a.e("s_add_u32 m0, m0, %d" % (VL + i * 1024))
        a.e("s_nop 0")
        a.vmem("buffer_load_dwordx4 v%d, s[%d:%d], 0 offen lds" % (T + 3, SRD_V, SRD_V + 3))
    a.e("s_lshl_b32 s%d, s%d, 11" % (S_T0, S_H))
    a.e("s_add_u32 s%d, s%d, s%d" % (S_T0, S_T0, S_Q0))
    a.e("s_lshl_b32 s%d, s%d, 5" % (S_T1, S_W))
    a.e("s_add_u32 s%d, s%d, s%d" % (S_T0, S_T0, S_T1))
    a.e("v_add_u32 v%d, s%d, v%d" % (T, S_T0, V_L15))
    a.e("v_lshlrev_b32 v%d, 6, v%d" % (T, T))
    a.e("v_lshl_add_u32 v%d, v%d, 4, v%d" % (T, V_G, T))
    a.vmem("buffer_load_dwordx4 %s, v%d, s[%d:%d], 0 offen" % (vr(V_Q, 4), T, SRD_Q, SRD_Q + 3))
    a.vmem("buffer_load_dwordx4 %s, v%d, s[%d:%d], 0 offen offset:1024" % (vr(V_Q + 4, 4), T, SRD_Q, SRD_Q + 3))
    a.e("v_lshrrev_b32 v%d, 2, v%d" % (T, V_L15))
    a.e("v_and_b32 v%d, 3, v%d" % (T + 1, V_L15))
    a.e("v_lshl_add_u32 v%d, v%d, 3, v%d" % (T, T, T + 1))
    a.e("v_bfe_u32 v%d, v%d, 4, 1" % (T + 1, T))
    a.e("v_lshlrev_b32 v%d, 1, v%d" % (T + 1, T + 1))
    a.e("v_xor_b32 v%d, v%d, v%d" % (T + 1, T + 1, V_G))
    a.e("v_lshlrev_b32 v%d, 6, v%d" % (T, T))
    a.e("v_lshl_add_u32 v%d, v%d, 4, v%d" % (T, T + 1, T))
    a.e("s_lshl_b32 s%d, s%d, 11" % (S_T0, S_W))
    a.e("v_add_u32 v%d, s%d, v%d" % (V_KA, S_T0, T))
    a.e("v_add_u32 v%d, 256, v%d" % (V_KA + 1, V_KA))
    a.e("v_mul_u32_u24 v%d, %d, v%d" % (T, PV, V_L15))
    a.e("v_lshl_add_u32 v%d, v%d, 4, v%d" % (T, V_G, T))
    a.e("s_lshl_b32 s%d, s%d, 6" % (S_T0, S_W))
    a.e("s_add_u32 s%d, s%d, %d" % (S_T0, S_T0, VL))
    a.e("v_add_u32 v%d, s%d, v%d" % (V_VA, S_T0, T))
    a.e("v_add_u32 v%d, 16, v%d" % (T, V_L15))
    a.e("v_min_u32 v%d, 21, v%d" % (T, T))
    a.e("v_mul_u32_u24 v%d, %d, v%d" % (T, PV, T))
    a.e("v_lshl_add_u32 v%d, v%d, 4, v%d" % (T, V_G, T))
    a.e("v_add_u32 v%d, s%d, v%d" % (V_VA + 1, S_T0, T))
    a.e("v_lshlrev_b32 v%d, 3, v%d" % (T, V_G))
    a.e("v_sub_u32 v%d, v%d, v%d" % (V_A, V_L15, T))
    a.e("v_xor_b32 v%d, 16, v%d" % (T, V_LANE))
    a.e("v_lshlrev_b32 v%d, 2, v%d" % (V_X16, T))
    a.e("v_xor_b32 v%d, 32, v%d" % (T, V_LANE))
    a.e("v_lshlrev_b32 v%d, 2, v%d" % (V_X32, T))
    a.e("v_add_u32 v%d, 16, v%d" % (T, V_L15))
    a.e("v_lshlrev_b32 v%d, 2, v%d" % (V_BS, T))
    for i in range(16):
        a.e("v_mov_b32 v%d, 0" % (V_O + i))
    a.wait_vm0()
    a.e("s_barrier")
    a.e("v_cmp_gt_u32 vcc, 48, v%d" % V_LANE)
    a.e("s_and_saveexec_b64 s[%d:%d], vcc" % (S_EX, S_EX + 1))
    a.e("s_cmp_lt_u32 s%d, 2" % S_W)
    labz = a.newlabel("ones")
    a.e("s_cbranch_scc0 %s" % labz)
    a.e("s_cmp_eq_u32 s%d, 0" % S_W)
    a.e("s_cselect_b32 s%d, 0x3f803f80, 0" % S_T0)
    for i in range(4):
        a.e("v_mov_b32 v%d, s%d" % (T + 4 + i, S_T0))
    a.e("s_mul_i32 s%d, s%d, %d" % (S_T0, S_W, PV))
    a.e("s_add_u32 s%d, s%d, %d" % (S_T0, S_T0, VL + 20 * PV))
    a.e("v_lshlrev_b32 v%d, 4, v%d" % (T, V_LANE))
    a.e("v_add_u32 v%d, s%d, v%d" % (T, S_T0, T))
    a.e("ds_write_b128 v%d, %s" % (T, vr(T + 4, 4)))
    a.label(labz)
    a.e("s_mov_b64 exec, s[%d:%d]" % (S_EX, S_EX + 1))
    a.e("s_waitcnt lgkmcnt(0)")
    a.e("s_barrier")

    def sreg(b, qt):
        return V_S + (b * 2 + qt) * 8

    def kread(b):
        for Tt in range(2):
            a.lds("ds_read_b128 %s, v%d offset:%d" % (vr(V_KF + (b & 1) * 8 + Tt * 4, 4), V_KA + Tt, KL + b * 2048), ('K', b))
    kread(0)
    for b in range(9):
        if b + 1 < 9:
            kread(b + 1)
        a.wait_lg([('K', b)])
        for qt in range(2):
            for Tt in range(2):
                a.e("v_mfma_f32_16x16x32_bf16 %s, %s, %s, 0" % (
                    vr(sreg(b, qt) + Tt * 4, 4), vr(V_KF + (b & 1) * 8 + Tt * 4, 4), vr(V_Q + qt * 4, 4)))
    def vread(b):
        for dt in range(2):
            a.lds("ds_read_b128 %s, v%d offset:%d" % (vr(V_VF + (b & 1) * 8 + dt * 4, 4), V_VA + dt, b * 64), ('V', b))
    vread(0)
    a.e("s_nop 7")
    a.e("s_nop 3")
    a.e("v_mov_b32 v%d, 0xf149f2ca" % (V_M + 2))
    for qt in range(2):
        for Tt in range(2):
            for r_ in range(4):
                th = Tt * 4 + r_ - qt * 16
                a.e("v_cmp_gt_i32 vcc, %d, v%d" % (th, V_A))
                a.e("s_nop 1")
                r0 = sreg(0, qt) + Tt * 4 + r_
                r8 = sreg(8, qt) + Tt * 4 + r_
                a.e("v_cndmask_b32 v%d, v%d, v%d, vcc" % (r0, V_M + 2, r0))
                a.e("v_cndmask_b32 v%d, v%d, v%d, vcc" % (r8, r8, V_M + 2))
    a.e("s_lshl_b32 s%d, s%d, 5" % (S_T0, S_W))
    a.e("s_add_u32 s%d, s%d, s%d" % (S_T0, S_T0, S_Q0))
    for b in range(8):
        lab = a.newlabel("neg")
        a.e("s_cmp_lt_i32 s%d, %d" % (S_T0, 256 - b * 32))
        a.e("s_cbranch_scc0 %s" % lab)
        for i in range(16):
            a.e("v_mov_b32 v%d, v%d" % (sreg(b, 0) + i, V_M + 2))
        a.label(lab)
    for qt in range(2):
        regs = [sreg(b, qt) + i for b in range(9) for i in range(8)]
        a.e("v_max3_f32 v%d, v%d, v%d, v%d" % (V_M + qt, regs[0], regs[1], regs[2]))
        for i in range(3, 71, 2):
            a.e("v_max3_f32 v%d, v%d, v%d, v%d" % (V_M + qt, V_M + qt, regs[i], regs[i + 1]))
        a.e("v_max_f32 v%d, v%d, v%d" % (V_M + qt, V_M + qt, regs[71]))
    for xr in (V_X16, V_X32):
        for qt in range(2):
            a.lds("ds_bpermute_b32 v%d, v%d, v%d" % (V_M + 2 + qt, xr, V_M + qt), 'x')
        a.wait_lg(['x'])
        for qt in range(2):
            a.e("v_max_f32 v%d, v%d, v%d" % (V_M + qt, V_M + qt, V_M + 2 + qt))
    cs = (DH ** -0.5) * 1.4426950408889634
    a.e("s_mov_b32 s%d, 0x%x" % (S_C, f32bits(cs)))
    for qt in range(2):
        a.e("v_mul_f32 v%d, s%d, v%d" % (V_M + qt, S_C, V_M + qt))
    for b in range(9):
        for qt in range(2):
            r0 = sreg(b, qt)
            for i in range(8):
                a.e("v_fma_f32 v%d, v%d, s%d, -v%d" % (r0 + i, r0 + i, S_C, V_M + qt))
            for i in range(8):
                a.e("v_exp_f32 v%d, v%d" % (r0 + i, r0 + i))
            a.e("s_nop 0")
            for i in range(4):
                a.e("v_cvt_pk_bf16_f32 v%d, v%d, v%d" % (r0 + i, r0 + 2 * i, r0 + 2 * i + 1))
        if b + 1 < 9:
            vread(b + 1)
        a.wait_lg([('V', b)])
        a.e("s_nop 1")
        for dt in range(2):
            for qt in range(2):
                o = vr(V_O + (dt * 2 + qt) * 4, 4)
                a.e("v_mfma_f32_16x16x32_bf16 %s, %s, %s, %s" % (
                    o, vr(V_VF + (b & 1) * 8 + dt * 4, 4), vr(sreg(b, qt), 4), o))
    a.e("s_nop 7")
    a.e("s_nop 3")
    for qt in range(2):
        a.lds("ds_bpermute_b32 v%d, v%d, v%d" % (V_M + qt, V_BS, V_O + (2 + qt) * 4), 'x')
    a.e("s_lshl_b32 s%d, s%d, 5" % (S_T0, S_W))
    a.e("s_add_u32 s%d, s%d, s%d" % (S_T0, S_T0, S_Q0))
    a.e("v_add_u32 v%d, s%d, v%d" % (T, S_T0, V_L15))
    a.e("s_movk_i32 s%d, 1280" % S_T1)
    a.e("v_mul_lo_u32 v%d, v%d, s%d" % (T, T, S_T1))
    a.e("v_lshl_add_u32 v%d, v%d, 3, v%d" % (T, V_G, T))
    a.e("s_mul_i32 s%d, s%d, 40" % (S_T0, S_H))
    a.e("v_add_u32 v%d, s%d, v%d" % (T, S_T0, T))
    a.e("v_add_u32 v%d, %d, v%d" % (T + 1, 16 * 1280, T))
    a.wait_lg(['x'])
    for qt in range(2):
        a.e("v_rcp_f32 v%d, v%d" % (V_M + qt, V_M + qt))
    a.e("s_nop 0")
    for qt in range(2):
        for dt in range(2):
            o = V_O + (dt * 2 + qt) * 4
            for r_ in range(4):
                a.e("v_mul_f32 v%d, v%d, v%d" % (o + r_, o + r_, V_M + qt))
            a.e("v_cvt_pk_bf16_f32 v%d, v%d, v%d" % (o, o, o + 1))
            a.e("v_cvt_pk_bf16_f32 v%d, v%d, v%d" % (o + 1, o + 2, o + 3))
    for qt in range(2):
        a.e("buffer_store_dwordx2 %s, v%d, s[%d:%d], 0 offen offset:%d" % (
            vr(V_O + qt * 4, 2), T + qt, SRD_O, SRD_O + 3, 0))
    a.e("v_cmp_eq_u32 vcc, 0, v%d" % V_G)
    a.e("s_and_saveexec_b64 s[%d:%d], vcc" % (S_EX, S_EX + 1))
    for qt in range(2):
        a.e("buffer_store_dwordx2 %s, v%d, s[%d:%d], 0 offen offset:%d" % (
            vr(V_O + (2 + qt) * 4, 2), T + qt, SRD_O, SRD_O + 3, 32))
    a.label(L_end)
    a.e("s_endpgm")
    return a.lines, kernel_desc(name, nv, 0), 512, lds_bytes


def main():
    out = sys.argv[1] if len(sys.argv) > 1 else "sequential_preLN__sliding_block__mixer_s_mlp__prompt.s"
    ks = []
    ks.append(("k1_kernel",) + gen_gemm("k1_kernel", 640, 1920, 128, 128, ('in', 'x'), 'wqkv', 1, 'qkv'))
    ks.append(("k2_kernel",) + gen_attn("k2_kernel"))
    ks.append(("k3_kernel",) + gen_gemm("k3_kernel", 640, 640, 64, 80, ('ws', WS_O), 'wo', 0, 'res'))
    ks.append(("k4_kernel",) + gen_gemm("k4_kernel", 640, 640, 64, 80, ('ws', WS_H), 'w1', 2, 'gelu'))
    ks.append(("k5_kernel",) + gen_gemm("k5_kernel", 640, 640, 64, 80, ('ws', WS_HG), 'w2', 0, 'x1', shift=True))
    ks.append(("k6_kernel",) + gen_gemm("k6_kernel", 640, 1536, 128, 96, ('ws', WS_X1), 'w3', 1, 'gelu'))
    ks.append(("k7_kernel",) + gen_gemm("k7_kernel", 1536, 640, 64, 80, ('ws', WS_G), 'w4', 0, 'out'))
    hdr = open("sequential_preLN__sliding_block__mixer_s_mlp__prompt.s.ref").read().split("\n")
    txt = []
    for l in hdr:
        if l.startswith("; @launch") or l.startswith("; Override") or l.startswith("; grid="):
            continue
        if not l.startswith(";"):
            break
        txt.append(l)
    for (nm, lines, desc, ntiles, lds) in ks:
        txt.append("; @launch kernel=%s grid=(%d,1,1) block=(256,1,1) lds=%d" % (nm, ntiles, lds))
    txt.append('.amdgcn_target "amdgcn-amd-amdhsa--gfx950"')
    txt.append(".text")
    for (nm, lines, desc, ntiles, lds) in ks:
        txt += lines
    txt.append('.section .rodata,"a"')
    for (nm, lines, desc, ntiles, lds) in ks:
        txt.append(".p2align 6")
        txt.append(desc)
    open(out, "w").write("\n".join(txt) + "\n")
    print("wrote", out, "lines", len(txt))


if __name__ == "__main__":
    main()
```

```python
import sys, os
ABL = set(os.environ.get('ABL', '').split(','))

S = 2048
D = 640
F = 1536
H = 32
DH = 20

WS_Q = 0
WS_K = WS_Q + 32 * 2048 * 64
WS_VT = WS_K + 32 * 2048 * 64
WS_O = WS_VT + 640 * 2048 * 2
WS_H = WS_O + S * D * 2
WS_HG = WS_H + S * D * 2
WS_X1 = WS_HG + S * D * 2
WS_G = WS_X1 + S * D * 2
WS_ST = WS_G + S * F * 2
WS_PW = {}
_o = WS_ST + S * 8
for _k, _n in (('wo', 640 * 640 * 2), ('w1', 640 * 640 * 2), ('w2', 640 * 640 * 2), ('w3', 640 * 1536 * 2), ('w4', 640 * 1536 * 2)):
    WS_PW[_k] = _o
    _o += _n
WS_END = _o
PACK = dict(wo=(640, 640, 80, 128), w1=(640, 640, 80, 128), w2=(640, 640, 80, 128), w3=(640, 1536, 96, 64), w4=(1536, 640, 80, 128))

KA = dict(x=0, wqkv=8, wo=16, bx=24, w1=32, w2=40, w3=48, w4=56, out=64, dbg=72, ws=80)


class Asm:
    def __init__(self):
        self.lines = []
        self.vm = []
        self.lg = []
        Asm.uid = getattr(Asm, 'uid', 0)

    def e(self, s):
        self.lines.append("    " + s)

    def label(self, s):
        self.lines.append(s + ":")

    def c(self, s):
        self.lines.append("    ; " + s)

    def newlabel(self, p):
        Asm.uid += 1
        return "L_%s_%d" % (p, Asm.uid)

    def vmem(self, s, tag=None):
        self.e(s)
        self.vm.append(tag)

    def lds(self, s, tag=None):
        self.e(s)
        self.lg.append(tag)

    def _need(self, lst, tags):
        last = -1
        for i, t in enumerate(lst):
            if t in tags:
                last = i
        return last

    def wait_vm(self, tags):
        last = self._need(self.vm, tags)
        if last < 0:
            return
        n = len(self.vm) - 1 - last
        if n <= 63:
            self.e("s_waitcnt vmcnt(%d)" % n)
        self.vm = self.vm[last + 1:]

    def wait_lg(self, tags):
        last = self._need(self.lg, tags)
        if last < 0:
            return
        n = len(self.lg) - 1 - last
        assert n <= 15, n
        self.e("s_waitcnt lgkmcnt(%d)" % n)
        self.lg = self.lg[last + 1:]

    def stamp(self, i):
        if 'stamp' not in ABL:
            return
        self.e("s_memtime s[%d:%d]" % (60 + 2 * i, 61 + 2 * i))
        self.e("s_waitcnt lgkmcnt(0)")
        self.lg = []

    def stamp_out(self, n, vtmp, wg=0):
        if 'stamp' not in ABL:
            return
        lab = self.newlabel("stamp")
        self.e("s_cmp_eq_u32 s2, %d" % wg)
        self.e("s_cbranch_scc0 %s" % lab)
        self.e("s_load_dwordx2 s[56:57], s[0:1], 72")
        self.e("s_waitcnt lgkmcnt(0)")
        self.e("s_and_b32 s57, s57, 0xffff")
        self.e("s_mov_b32 s58, 256")
        self.e("s_mov_b32 s59, 0x00020000")
        self.e("v_lshrrev_b32 v%d, 6, v0" % vtmp)
        self.e("v_lshlrev_b32 v%d, 6, v%d" % (vtmp, vtmp))
        self.e("v_and_b32 v%d, 63, v0" % (vtmp + 1))
        self.e("v_cmp_eq_u32 vcc, 0, v%d" % (vtmp + 1))
        self.e("s_and_saveexec_b64 s[80:81], vcc")
        for i in range(n):
            self.e("s_sub_u32 s82, s%d, s60" % (60 + 2 * i))
            self.e("v_mov_b32 v%d, s82" % (vtmp + 1))
            self.e("buffer_store_dword v%d, v%d, s[56:59], 0 offen offset:%d" % (vtmp + 1, vtmp, i * 4))
        self.e("s_mov_b64 exec, s[80:81]")
        self.label(lab)

    def wait_all(self):
        self.e("s_waitcnt vmcnt(0) lgkmcnt(0)")
        self.vm = []
        self.lg = []

    def wait_lg0(self):
        self.e("s_waitcnt lgkmcnt(0)")
        self.lg = []

    def wait_vm0(self):
        self.e("s_waitcnt vmcnt(0)")
        self.vm = []


def vr(b, n=1):
    return "v%d" % b if n == 1 else "v[%d:%d]" % (b, b + n - 1)


def ar(b, n=1):
    return "a%d" % b if n == 1 else "a[%d:%d]" % (b, b + n - 1)


def sr(b, n=1):
    return "s%d" % b if n == 1 else "s[%d:%d]" % (b, b + n - 1)


def build_srd(a, d, ptr, off, size):
    if off:
        a.e("s_add_u32 s%d, s%d, 0x%x" % (d, ptr, off))
        a.e("s_addc_u32 s%d, s%d, 0" % (d + 1, ptr + 1))
        a.e("s_and_b32 s%d, s%d, 0xffff" % (d + 1, d + 1))
    else:
        a.e("s_mov_b32 s%d, s%d" % (d, ptr))
        a.e("s_and_b32 s%d, s%d, 0xffff" % (d + 1, ptr + 1))
    a.e("s_mov_b32 s%d, 0x%x" % (d + 2, size))
    a.e("s_mov_b32 s%d, 0x00020000" % (d + 3))


def f32bits(x):
    import struct
    return struct.unpack("<I", struct.pack("<f", x))[0]


def sigma(nt, t, r):
    if nt == 5:
        return t
    if nt == 8:
        return t ^ r
    if nt == 6:
        return (t + (r >> 2)) % 6
    raise ValueError(nt)


def round_bf16(a, dst, src, tmp):
    a.e("v_cvt_pk_bf16_f32 %s, %s, %s" % (vr(tmp), vr(src), vr(src)))
    a.e("v_lshlrev_b32 %s, 16, %s" % (vr(dst), vr(tmp)))


def kernel_header(a, name):
    a.lines.append(".p2align 8")
    a.lines.append(".globl %s" % name)
    a.lines.append(".type %s,@function" % name)
    a.label(name)


def kernel_desc(name, nvgpr_arch, nagpr, nsgpr=96):
    acc = (nvgpr_arch + 3) // 4 * 4
    tot = acc + nagpr if nagpr else nvgpr_arch
    return """.amdhsa_kernel %s
  .amdhsa_next_free_vgpr %d
  .amdhsa_next_free_sgpr %d
  .amdhsa_accum_offset %d
  .amdhsa_group_segment_fixed_size 0
  .amdhsa_kernarg_size 88
  .amdhsa_user_sgpr_count 2
  .amdhsa_user_sgpr_kernarg_segment_ptr 1
  .amdhsa_system_sgpr_workgroup_id_x 1
.end_amdhsa_kernel
""" % (name, tot, nsgpr, acc)


def emit_prefetch(a, key, nbytes, nwg_per_xcd, s_srd, s_t0, s_w, v_lane, v_t, nwaves=4):
    if 'pf' not in ABL:
        return
    per_wg = (nbytes + nwg_per_xcd - 1) // nwg_per_xcd
    per_wave = (per_wg + nwaves - 1) // nwaves
    per_wave = (per_wave + 8191) // 8192 * 8192
    a.e("s_load_dwordx2 s[%d:%d], s[0:1], %d" % (s_srd, s_srd + 1, KA[key]))
    a.e("s_lshr_b32 s%d, s2, 3" % s_t0)
    a.e("s_mul_i32 s%d, s%d, %d" % (s_t0, s_t0, nwaves))
    a.e("s_add_u32 s%d, s%d, s%d" % (s_t0, s_t0, s_w))
    a.e("s_mul_i32 s%d, s%d, %d" % (s_t0, s_t0, per_wave))
    a.e("v_lshlrev_b32 v%d, 7, v%d" % (v_t, v_lane))
    a.e("v_add_u32 v%d, s%d, v%d" % (v_t, s_t0, v_t))
    a.e("s_waitcnt lgkmcnt(0)")
    a.lg = []
    a.e("s_and_b32 s%d, s%d, 0xffff" % (s_srd + 1, s_srd + 1))
    a.e("s_mov_b32 s%d, 0x%x" % (s_srd + 2, nbytes))
    a.e("s_mov_b32 s%d, 0x00020000" % (s_srd + 3))
    for i in range(per_wave // 8192):
        a.e("s_mov_b32 s%d, %d" % (s_t0, i * 8192))
        a.vmem("buffer_load_dword v%d, v%d, s[%d:%d], s%d offen" % (v_t + 1, v_t, s_srd, s_srd + 3, s_t0), 'PF')


def emit_b_src(a, nt, N, gpr, T, vG, dst, s_magic, s_n2):
    a.e("v_mul_lo_u32 v%d, v%d, s%d" % (T + 1, vG, s_magic))
    a.e("v_lshrrev_b32 v%d, 16, v%d" % (T + 1, T + 1))
    a.e("v_mul_u32_u24 v%d, %d, v%d" % (T + 2, gpr, T + 1))
    a.e("v_sub_u32 v%d, v%d, v%d" % (T + 2, vG, T + 2))
    a.e("v_lshrrev_b32 v%d, 1, v%d" % (T + 3, T + 2))
    a.e("v_and_b32 v%d, 1, v%d" % (T + 2, T + 2))
    a.e("v_and_b32 v%d, 7, v%d" % (T + 4, T + 1))
    if nt == 8:
        a.e("v_xor_b32 v%d, v%d, v%d" % (T + 3, T + 3, T + 4))
    elif nt == 6:
        a.e("v_lshrrev_b32 v%d, 2, v%d" % (T + 4, T + 4))
        a.e("v_sub_u32 v%d, v%d, v%d" % (T + 3, T + 3, T + 4))
        a.e("v_add_u32 v%d, 6, v%d" % (T + 4, T + 3))
        a.e("v_min_u32 v%d, v%d, v%d" % (T + 3, T + 3, T + 4))
    a.e("v_bfe_u32 v%d, v%d, 2, 2" % (T + 4, T + 1))
    a.e("v_bfe_u32 v%d, v%d, 4, 1" % (T + 5, T + 1))
    a.e("v_and_b32 v%d, 0x%x, v%d" % (T + 6, 0xffe3, T + 1))
    a.e("v_lshl_add_u32 v%d, v%d, 3, v%d" % (T + 6, T + 4, T + 6))
    a.e("v_lshl_add_u32 v%d, v%d, 2, v%d" % (T + 6, T + 5, T + 6))
    a.e("v_mul_lo_u32 v%d, v%d, s%d" % (T + 6, T + 6, s_n2))
    a.e("v_lshlrev_b32 v%d, 5, v%d" % (T + 3, T + 3))
    a.e("v_lshl_add_u32 v%d, v%d, 4, v%d" % (T + 3, T + 2, T + 3))
    a.e("v_add_u32 v%d, v%d, v%d" % (dst, T + 6, T + 3))


def emit_pack_path(a, first_wg, nwg):
    NW = 120
    NBAT = 16
    V_LANE, T, V_LS, V_L16, V_D = 1, 8, 16, 17, 20
    V_A = V_D + NBAT * 4
    S_WS, SRD_S, SRD_D = 4, 8, 12
    S_PW, S_U, S_CB, S_C, S_I, S_T0, S_T1, S_MG, S_N2 = 32, 33, 34, 35, 36, 37, 38, 39, 40
    L_done = a.newlabel("pkdone")
    a.e("s_load_dwordx2 s[%d:%d], s[0:1], %d" % (S_WS, S_WS + 1, KA['ws']))
    a.e("v_and_b32 v%d, 63, v0" % V_LANE)
    a.e("v_lshrrev_b32 v%d, 6, v0" % T)
    a.e("v_lshlrev_b32 v%d, 4, v%d" % (V_L16, V_LANE))
    a.e("v_readfirstlane_b32 s%d, v%d" % (S_PW, T))
    a.e("s_sub_u32 s%d, s2, %d" % (S_T0, first_wg))
    a.e("s_lshl_b32 s%d, s%d, 3" % (S_T0, S_T0))
    a.e("s_add_u32 s%d, s%d, s%d" % (S_PW, S_PW, S_T0))
    a.e("s_cmp_ge_u32 s%d, %d" % (S_PW, NW))
    a.e("s_cbranch_scc1 %s" % L_done)
    for key in ('wo', 'w1', 'w2', 'w3', 'w4'):
        K, N, Nt, kc = PACK[key]
        nt = Nt // 16
        gpr = Nt // 8
        U = K * N * 2 // 1024
        UC = K * Nt * 2 // 1024
        UB = kc * Nt * 2 // 1024
        NCH = K // kc
        assert NW % UB == 0 and UC % UB == 0
        magic = (65536 + gpr - 1) // gpr
        mUB = (1 << 32) // UB + 1
        mNC = (1 << 32) // NCH + 1
        nq = U // UB
        for u in range(U + NBAT * NW):
            assert (u * mUB) >> 32 == u // UB
        for q in range(nq + 200):
            assert (q * mNC) >> 32 == q // NCH
        a.e("s_load_dwordx2 s[%d:%d], s[0:1], %d" % (SRD_S, SRD_S + 1, KA[key]))
        a.e("s_mov_b32 s%d, %d" % (S_MG, magic))
        a.e("s_mov_b32 s%d, %d" % (S_N2, N * 2))
        a.e("s_mul_hi_u32 s%d, s%d, 0x%x" % (S_T0, S_PW, mUB))
        a.e("s_mul_i32 s%d, s%d, %d" % (S_T0, S_T0, UB))
        a.e("s_sub_u32 s%d, s%d, s%d" % (S_I, S_PW, S_T0))
        a.e("s_lshl_b32 s%d, s%d, 6" % (S_I, S_I))
        a.e("v_add_u32 v%d, s%d, v%d" % (T, S_I, V_LANE))
        emit_b_src(a, nt, N, gpr, T, T, V_LS, S_MG, S_N2)
        a.e("s_waitcnt lgkmcnt(0)")
        a.e("s_and_b32 s%d, s%d, 0xffff" % (SRD_S + 1, SRD_S + 1))
        a.e("s_mov_b32 s%d, 0x%x" % (SRD_S + 2, K * N * 2))
        a.e("s_mov_b32 s%d, 0x00020000" % (SRD_S + 3))
        build_srd(a, SRD_D, S_WS, WS_PW[key], K * N * 2)
        a.e("s_mov_b32 s%d, s%d" % (S_U, S_PW))
        nb = min(NBAT, (U + NW - 1) // NW)
        L = a.newlabel("pk")
        a.label(L)
        for b in range(nb):
            a.e("s_add_u32 s%d, s%d, %d" % (S_T1, S_U, b * NW))
            a.e("s_mul_hi_u32 s%d, s%d, 0x%x" % (S_C, S_T1, mUB))
            a.e("s_mul_hi_u32 s%d, s%d, 0x%x" % (S_CB, S_C, mNC))
            a.e("s_mul_i32 s%d, s%d, %d" % (S_T0, S_CB, NCH))
            a.e("s_sub_u32 s%d, s%d, s%d" % (S_C, S_C, S_T0))
            a.e("s_mul_i32 s%d, s%d, %d" % (S_C, S_C, kc * N * 2))
            a.e("s_mul_i32 s%d, s%d, %d" % (S_CB, S_CB, Nt * 2))
            a.e("s_add_u32 s%d, s%d, s%d" % (S_C, S_C, S_CB))
            a.e("s_lshl_b32 s%d, s%d, 10" % (S_T1, S_T1))
            a.e("v_add_u32 v%d, s%d, v%d" % (V_A + 2 * b, S_C, V_LS))
            a.e("v_add_u32 v%d, s%d, v%d" % (V_A + 2 * b + 1, S_T1, V_L16))
            a.e("buffer_load_dwordx4 %s, v%d, s[%d:%d], 0 offen" % (vr(V_D + b * 4, 4), V_A + 2 * b, SRD_S, SRD_S + 3))
        for b in range(nb):
            a.e("s_waitcnt vmcnt(%d)" % (nb - 1))
            a.e("buffer_store_dwordx4 %s, v%d, s[%d:%d], 0 offen" % (vr(V_D + b * 4, 4), V_A + 2 * b + 1, SRD_D, SRD_D + 3))
        a.e("s_add_u32 s%d, s%d, %d" % (S_U, S_U, nb * NW))
        a.e("s_cmp_lt_u32 s%d, %d" % (S_U, U))
        a.e("s_cbranch_scc1 %s" % L)
    a.label(L_done)
    a.e("s_endpgm")


def emit_pack_loads(a, s_w, v_lane, T, V_PD, V_PA, S0):
    S_PW, S_U, S_CB, S_C, S_I, S_T0, S_T1, S_MG, S_N2 = [S0 + i for i in range(9)]
    SRD_S = S0 + 12
    a.e("s_lshl_b32 s%d, s2, 2" % S_PW)
    a.e("s_add_u32 s%d, s%d, s%d" % (S_PW, S_PW, s_w))
    for idx, (key, wofs) in enumerate((('wo', 0), ('w1', 800), ('w2', 1240), ('w3', 0), ('w4', 0))):
        K, N, Nt, kc = PACK[key]
        nt = Nt // 16
        gpr = Nt // 8
        U = K * N * 2 // 1024
        UB = kc * Nt * 2 // 1024
        NCH = K // kc
        magic = (65536 + gpr - 1) // gpr
        mUB = (1 << 32) // UB + 1
        mNC = (1 << 32) // NCH + 1
        for u in range(2100):
            assert (u * mUB) >> 32 == u // UB
            assert (u * mNC) >> 32 == u // NCH
        a.e("s_load_dwordx2 s[%d:%d], s[0:1], %d" % (SRD_S, SRD_S + 1, KA[key]))
        a.e("s_mov_b32 s%d, %d" % (S_MG, magic))
        a.e("s_mov_b32 s%d, %d" % (S_N2, N * 2))
        a.e("s_sub_u32 s%d, s%d, %d" % (S_U, S_PW, wofs))
        a.e("s_cmp_lt_u32 s%d, %d" % (S_U, U))
        a.e("s_cselect_b32 s%d, s%d, 0x100000" % (S_U, S_U))
        a.e("s_mul_hi_u32 s%d, s%d, 0x%x" % (S_C, S_U, mUB))
        a.e("s_mul_i32 s%d, s%d, %d" % (S_T0, S_C, UB))
        a.e("s_sub_u32 s%d, s%d, s%d" % (S_I, S_U, S_T0))
        a.e("s_lshl_b32 s%d, s%d, 6" % (S_I, S_I))
        a.e("v_add_u32 v%d, s%d, v%d" % (T, S_I, v_lane))
        emit_b_src(a, nt, N, gpr, T, T, T + 7, S_MG, S_N2)
        a.e("s_mul_hi_u32 s%d, s%d, 0x%x" % (S_CB, S_C, mNC))
        a.e("s_mul_i32 s%d, s%d, %d" % (S_T0, S_CB, NCH))
        a.e("s_sub_u32 s%d, s%d, s%d" % (S_C, S_C, S_T0))
        a.e("s_mul_i32 s%d, s%d, %d" % (S_C, S_C, kc * N * 2))
        a.e("s_mul_i32 s%d, s%d, %d" % (S_CB, S_CB, Nt * 2))
        a.e("s_add_u32 s%d, s%d, s%d" % (S_C, S_C, S_CB))
        a.e("s_cmp_lt_u32 s%d, %d" % (S_U, U))
        a.e("s_cselect_b32 s%d, s%d, 0x7ff00000" % (S_C, S_C))
        a.e("v_add_u32 v%d, s%d, v%d" % (T + 7, S_C, T + 7))
        a.e("s_lshl_b32 s%d, s%d, 10" % (S_T1, S_U))
        a.e("s_add_u32 s%d, s%d, 0x%x" % (S_T1, S_T1, WS_PW[key] - WS_PW['wo']))
        a.e("v_lshl_add_u32 v%d, v%d, 4, s%d" % (V_PA + idx, v_lane, S_T1))
        a.e("s_waitcnt lgkmcnt(0)")
        a.e("s_and_b32 s%d, s%d, 0xffff" % (SRD_S + 1, SRD_S + 1))
        a.e("s_mov_b32 s%d, 0x%x" % (SRD_S + 2, K * N * 2))
        a.e("s_mov_b32 s%d, 0x00020000" % (SRD_S + 3))
        a.vmem("buffer_load_dwordx4 %s, v%d, s[%d:%d], 0 offen" % (vr(V_PD + idx * 4, 4), T + 7, SRD_S, SRD_S + 3), 'PK')


def emit_pack_stores(a, s_ws, V_PD, V_PA, S0):
    SRD_D = S0 + 12
    build_srd(a, SRD_D, s_ws, WS_PW['wo'], WS_END - WS_PW['wo'])
    a.wait_vm(['PK'])
    for idx in range(5):
        a.vmem("buffer_store_dwordx4 %s, v%d, s[%d:%d], 0 offen" % (vr(V_PD + idx * 4, 4), V_PA + idx, SRD_D, SRD_D + 3), 'PS')


GELU_C1 = -2.0 * 0.7978845608028654 * 1.4426950408889634
GELU_C2 = GELU_C1 * 0.044715


def gelu_inplace(a, x, t1, t2, s_c1, s_c2):
    a.e("v_mul_f32 %s, %s, %s" % (vr(t1), vr(x), vr(x)))
    a.e("v_mov_b32 %s, %s" % (vr(t2), sr(s_c1)))
    a.e("v_fma_f32 %s, %s, %s, %s" % (vr(t1), vr(t1), sr(s_c2), vr(t2)))
    a.e("v_mul_f32 %s, %s, %s" % (vr(t1), vr(t1), vr(x)))
    a.e("v_exp_f32 %s, %s" % (vr(t1), vr(t1)))
    a.e("s_nop 0")
    a.e("v_add_f32 %s, 1.0, %s" % (vr(t1), vr(t1)))
    a.e("v_rcp_f32 %s, %s" % (vr(t1), vr(t1)))
    a.e("s_nop 0")
    a.e("v_mul_f32 %s, %s, %s" % (vr(x), vr(x), vr(t1)))


def gen_gemm(name, K, N, Mt, Nt, a_src, w_key, ln, epi, kc, shift=False, nbuf=None, LA=None, pf=None, packwg=0):
    a = Asm()
    packed = w_key in PACK
    if packed:
        assert PACK[w_key] == (K, N, Nt, kc)
    mt = Mt // 64
    nt = Nt // 16
    WR = Mt // 4
    P = Nt * 2
    PA = kc * 2
    ABYTES = Mt * PA
    BBYTES = kc * P
    CH = ABYTES + BBYTES
    nch = K // kc
    kpc = kc // 32
    RB = S // Mt
    CB = N // Nt
    ntiles = RB * CB
    if nbuf is None:
        nbuf = min(nch, (156 * 1024) // CH)
    if LA is None:
        LA = nbuf - 1 if nbuf < nch else nbuf
    MISC = nbuf * CH
    CSL = MISC
    ABL_ = MISC + 1024
    lds_bytes = MISC + 1024 + Mt * 8
    pitchA = K * 2
    nA = ABYTES // 4096
    nB = BBYTES // 4096
    assert ABYTES % 4096 == 0 and BBYTES % 4096 == 0
    lpr = kc // 8
    rpi = 64 // lpr
    gpr = Nt // 8
    ROT = 1 if nt == 5 else 2
    NCS = 2
    nS = nA

    V_LANE, V_L15, V_G = 1, 2, 3
    nxt = 4
    nset = (MISC + 65535) // 65536
    V_B = nxt; nxt += nt * nset
    V_AR = nxt; nxt += kpc * nset
    V_T = nxt; nxt += 12
    nxt = (nxt + 3) // 4 * 4
    V_ONES = nxt; nxt += 4
    NF = 6
    V_BF = nxt; nxt += NF * 4
    V_AF = nxt; nxt += 2 * mt * 4
    V_CS = nxt; nxt += nt * 4
    V_E = nxt; nxt += 24
    V_AL = nxt; nxt += 4 * mt
    V_BE = nxt; nxt += 4 * mt
    V_ADMA = V_B
    V_BDMA = V_B + nA
    V_SA = V_BDMA + nB
    assert nA + nB + 1 <= nt * nset + kpc * nset
    V_SD = V_BF
    V_SS = V_CS
    assert nS * 4 <= NF * 4 + 2 * mt * 4 and 2 * nS <= nt * 4
    EG = Mt * gpr
    nE = (EG + 511) // 512
    if epi == 'qkv':
        nE = 0
    V_EO = nxt; nxt += nE
    V_EL = nxt; nxt += nE
    nxt = (nxt + 3) // 4 * 4
    V_R1 = nxt; nxt += 4 * nE if epi in ('res', 'x1', 'out') else 0
    V_R2 = nxt; nxt += 4 * nE if epi in ('out',) else 0
    V_RS = nxt; nxt += 2 * nE if epi == 'x1' else 0
    nv = nxt
    A_ACC = 0
    A_CS = mt * nt * 4
    nagpr = A_CS + NCS * 4
    assert (nv + 3) // 4 * 4 + nagpr <= 256, (name, nv, nagpr)

    S_WS, S_P = 4, 6
    SRD_A, SRD_W, SRD_O, SRD_R1, SRD_R2, SRD_ST = 8, 12, 16, 20, 24, 28
    S_W, S_RB, S_CB, S_ROW0, S_COL0, S_T0, S_T1, S_LA, S_LB, S_KA, S_KB = 32, 33, 34, 35, 36, 37, 38, 39, 40, 41, 42
    S_W8 = 43
    S_EX = 44
    S_SEC = 46
    S_C2 = 47
    S_TT = 48
    S_WR0 = 56 if 'stamp' not in ABL else 84

    kernel_header(a, name)
    L_end = name + "_end"
    a.e("s_cmp_ge_u32 s2, %d" % (ntiles + packwg))
    a.e("s_cbranch_scc1 %s" % L_end)
    if packwg:
        a.e("s_cmp_ge_u32 s2, %d" % ntiles)
        a.e("s_cbranch_scc1 %s_pack" % name)
    a.stamp(0)
    a.e("s_load_dwordx2 s[%d:%d], s[0:1], %d" % (S_WS, S_WS + 1, KA['ws']))
    if not packed:
        a.e("s_load_dwordx2 s[%d:%d], s[0:1], %d" % (SRD_W, SRD_W + 1, KA[w_key]))
    if a_src[0] == 'in':
        a.e("s_load_dwordx2 s[%d:%d], s[0:1], %d" % (SRD_A, SRD_A + 1, KA[a_src[1]]))
    if epi == 'res':
        a.e("s_load_dwordx2 s[%d:%d], s[0:1], %d" % (SRD_R1, SRD_R1 + 1, KA['x']))
    if epi == 'out':
        a.e("s_load_dwordx2 s[%d:%d], s[0:1], %d" % (SRD_O, SRD_O + 1, KA['out']))
    a.e("s_and_b32 s%d, s2, 7" % S_T0)
    a.e("s_lshr_b32 s%d, s2, 3" % S_T1)
    rbx = RB // 8
    if CB in (8, 16):
        sh = 3 if CB == 8 else 4
        a.e("s_lshr_b32 s%d, s%d, %d" % (S_RB, S_T1, sh))
        a.e("s_and_b32 s%d, s%d, %d" % (S_CB, S_T1, CB - 1))
    else:
        assert rbx == 2
        a.e("s_cmp_ge_u32 s%d, %d" % (S_T1, CB))
        a.e("s_cselect_b32 s%d, 1, 0" % S_RB)
        a.e("s_mul_i32 s%d, s%d, %d" % (S_CB, S_RB, CB))
        a.e("s_sub_u32 s%d, s%d, s%d" % (S_CB, S_T1, S_CB))
    a.e("s_mul_i32 s%d, s%d, %d" % (S_T0, S_T0, rbx))
    a.e("s_add_u32 s%d, s%d, s%d" % (S_RB, S_RB, S_T0))
    a.e("s_mul_i32 s%d, s%d, %d" % (S_ROW0, S_RB, Mt))
    a.e("s_mul_i32 s%d, s%d, %d" % (S_COL0, S_CB, Nt))
    a.e("v_and_b32 v%d, 63, v0" % V_LANE)
    a.e("v_lshrrev_b32 v%d, 6, v0" % V_T)
    a.e("v_and_b32 v%d, 15, v0" % V_L15)
    a.e("v_bfe_u32 v%d, v0, 4, 2" % V_G)
    a.e("v_readfirstlane_b32 s%d, v%d" % (S_W8, V_T))
    T = V_T
    lsh = {16: 4, 8: 3}[lpr]
    magic = (65536 + gpr - 1) // gpr
    for G in range(max(kc * gpr, nE * 512)):
        assert (G * magic) >> 16 == G // gpr
    PT = P + 16
    opitch = N * 2
    L_cons = name + "_cons"
    L_p2 = name + "_phase2"
    a.e("s_and_b32 s%d, s%d, 3" % (S_W, S_W8))
    a.e("s_mul_i32 s%d, s%d, %d" % (S_WR0, S_W, WR))
    a.e("s_cmp_lt_u32 s%d, 4" % S_W8)
    a.e("s_cbranch_scc1 %s" % L_cons)

    def out_srds():
        if epi == 'qkv':
            build_srd(a, SRD_O, S_WS, WS_Q, WS_O - WS_Q)
        elif epi == 'res':
            build_srd(a, SRD_O, S_WS, WS_H, S * D * 2)
            a.e("s_and_b32 s%d, s%d, 0xffff" % (SRD_R1 + 1, SRD_R1 + 1))
            a.e("s_mov_b32 s%d, 0x%x" % (SRD_R1 + 2, S * D * 2))
            a.e("s_mov_b32 s%d, 0x00020000" % (SRD_R1 + 3))
        elif epi == 'gelu':
            build_srd(a, SRD_O, S_WS, WS_HG if N == D else WS_G, S * N * 2)
            if ln == 2:
                build_srd(a, SRD_ST, S_WS, WS_ST, S * 8)
        elif epi == 'x1':
            build_srd(a, SRD_O, S_WS, WS_X1, S * D * 2)
            build_srd(a, SRD_R1, S_WS, WS_H, S * D * 2)
            build_srd(a, SRD_ST, S_WS, WS_ST, S * 8)
        elif epi == 'out':
            a.e("s_and_b32 s%d, s%d, 0xffff" % (SRD_O + 1, SRD_O + 1))
            a.e("s_mov_b32 s%d, 0x%x" % (SRD_O + 2, S * D * 2))
            a.e("s_mov_b32 s%d, 0x00020000" % (SRD_O + 3))
            build_srd(a, SRD_R1, S_WS, WS_X1, S * D * 2)
            build_srd(a, SRD_R2, S_WS, WS_H, S * D * 2)

    def e_setup():
        a.e("s_mov_b32 s%d, %d" % (S_T1, magic))
        a.e("s_mul_i32 s%d, s%d, %d" % (S_T0, S_W8, nE * 64))
        for e_ in range(nE):
            a.e("v_add_u32 v%d, s%d, v%d" % (T, S_T0, V_LANE))
            if e_:
                a.e("v_add_u32 v%d, %d, v%d" % (T, e_ * 64, T))
            a.e("v_mul_lo_u32 v%d, v%d, s%d" % (T + 1, T, S_T1))
            a.e("v_lshrrev_b32 v%d, 16, v%d" % (T + 1, T + 1))
            a.e("v_mul_u32_u24 v%d, %d, v%d" % (T + 2, gpr, T + 1))
            a.e("v_sub_u32 v%d, v%d, v%d" % (T + 2, T, T + 2))
            a.e("v_mul_u32_u24 v%d, %d, v%d" % (T + 3, PT, T + 1))
            a.e("v_lshl_add_u32 v%d, v%d, 4, v%d" % (V_EL + e_, T + 2, T + 3))
            a.e("v_add_u32 v%d, s%d, v%d" % (T + 3, S_ROW0, T + 1))
            if epi == 'x1':
                a.e("v_lshlrev_b32 v%d, 3, v%d" % (V_RS + 2 * e_, T + 3))
            a.e("v_mul_u32_u24 v%d, %d, v%d" % (T + 3, opitch, T + 3))
            a.e("v_lshl_add_u32 v%d, v%d, 4, v%d" % (T + 3, T + 2, T + 3))
            a.e("v_lshl_add_u32 v%d, s%d, 1, v%d" % (V_EO + e_, S_COL0, T + 3))
            if nE * 512 > EG:
                a.e("v_cmp_le_u32 vcc, %d, v%d" % (EG, T))
                a.e("v_mov_b32 v%d, 0x7fffff00" % (T + 4))
                a.e("v_mov_b32 v%d, 0" % (T + 5))
                a.e("v_cndmask_b32 v%d, v%d, v%d, vcc" % (V_EO + e_, V_EO + e_, T + 4))
                if epi == 'x1':
                    a.e("v_cndmask_b32 v%d, v%d, v%d, vcc" % (V_RS + 2 * e_, V_RS + 2 * e_, T + 4))
                a.e("v_cndmask_b32 v%d, v%d, v%d, vcc" % (V_EL + e_, V_EL + e_, T + 5))

    def res_loads():
        if epi in ('res', 'x1', 'out'):
            for e_ in range(nE):
                a.vmem("buffer_load_dwordx4 %s, v%d, s[%d:%d], 0 offen" % (
                    vr(V_R1 + e_ * 4, 4), V_EO + e_, SRD_R1, SRD_R1 + 3), 'R')
        if epi == 'out':
            for e_ in range(nE):
                a.vmem("buffer_load_dwordx4 %s, v%d, s[%d:%d], 0 offen" % (
                    vr(V_R2 + e_ * 4, 4), V_EO + e_, SRD_R2, SRD_R2 + 3), 'R')
        if epi == 'x1':
            for e_ in range(nE):
                a.vmem("buffer_load_dwordx2 %s, v%d, s[%d:%d], 0 offen" % (
                    vr(V_RS + e_ * 2, 2), V_RS + e_ * 2, SRD_ST, SRD_ST + 3), 'R')

    a.e("v_lshrrev_b32 v%d, %d, v%d" % (T, lsh, V_LANE))
    a.e("v_and_b32 v%d, %d, v%d" % (T + 1, lpr - 1, V_LANE))
    a.e("v_add_u32 v%d, s%d, v%d" % (T, S_WR0, T))
    assert nA * rpi == WR
    a.e("s_mov_b32 s%d, %d" % (S_T1, pitchA))
    for i in range(nA):
        a.e("v_add_u32 v%d, %d, v%d" % (T + 2, i * rpi, T))
        if lpr == 16:
            a.e("v_and_b32 v%d, 15, v%d" % (T + 3, T + 2))
        else:
            a.e("v_bfe_u32 v%d, v%d, 1, 3" % (T + 3, T + 2))
        a.e("v_xor_b32 v%d, v%d, v%d" % (T + 3, T + 3, T + 1))
        a.e("v_add_u32 v%d, s%d, v%d" % (T + 2, S_ROW0, T + 2))
        a.e("v_mul_lo_u32 v%d, v%d, s%d" % (T + 2, T + 2, S_T1))
        a.e("v_lshl_add_u32 v%d, v%d, 4, v%d" % (V_ADMA + i, T + 3, T + 2))
    if packed:
        a.e("s_mul_i32 s%d, s%d, %d" % (S_T0, S_CB, K * Nt * 2))
        a.e("s_mul_i32 s%d, s%d, %d" % (S_T1, S_W, nB * 1024))
        a.e("s_add_u32 s%d, s%d, s%d" % (S_T0, S_T0, S_T1))
        a.e("v_lshl_add_u32 v%d, v%d, 4, s%d" % (V_BDMA, V_LANE, S_T0))
    else:
        a.e("s_mov_b32 s%d, %d" % (S_T1, magic))
        a.e("s_mul_i32 s%d, s%d, %d" % (S_T0, S_W, nB * 64))
        a.e("v_add_u32 v%d, s%d, v%d" % (T + 7, S_T0, V_LANE))
        a.e("s_lshl_b32 s%d, s%d, 1" % (S_T0, S_COL0))
        a.e("s_mov_b32 s%d, %d" % (S_KB, N * 2))
        for i in range(nB):
            a.e("v_add_u32 v%d, %d, v%d" % (T, i * 64, T + 7))
            emit_b_src(a, nt, N, gpr, T, T, V_BDMA + i, S_T1, S_KB)
            a.e("v_add_u32 v%d, s%d, v%d" % (V_BDMA + i, S_T0, V_BDMA + i))
    a.e("s_waitcnt lgkmcnt(0)")
    if packed:
        build_srd(a, SRD_W, S_WS, WS_PW[w_key], K * N * 2)
    else:
        a.e("s_and_b32 s%d, s%d, 0xffff" % (SRD_W + 1, SRD_W + 1))
        a.e("s_mov_b32 s%d, 0x%x" % (SRD_W + 2, K * N * 2))
        a.e("s_mov_b32 s%d, 0x00020000" % (SRD_W + 3))
    if a_src[0] == 'in':
        a.e("s_and_b32 s%d, s%d, 0xffff" % (SRD_A + 1, SRD_A + 1))
        a.e("s_mov_b32 s%d, 0x%x" % (SRD_A + 2, S * K * 2))
        a.e("s_mov_b32 s%d, 0x00020000" % (SRD_A + 3))
    else:
        build_srd(a, SRD_A, S_WS, a_src[1], S * K * 2)
    a.e("s_mul_i32 s%d, s%d, %d" % (S_LA, S_W, nA * 1024))
    a.e("s_mul_i32 s%d, s%d, %d" % (S_LB, S_W, nB * 1024))

    def dma_a(c):
        buf = c % nbuf
        a.e("s_mov_b32 s%d, 0x%x" % (S_KA, c * kc * 2))
        for i in range(nA):
            src = V_ADMA + i
            if shift:
                k0 = c * kc
                g0 = k0 // 160
                g1 = (k0 + kc - 1) // 160
                sh = [-1, 1, -2, 2]
                if g0 == g1:
                    a.e("v_add_u32 v%d, 0x%x, v%d" % (T + 4, (sh[g0] * pitchA) & 0xffffffff, src))
                else:
                    thr = (g1 * 160 - k0) // 8
                    a.e("v_bfe_u32 v%d, v%d, 4, %d" % (T + 5, src, lsh))
                    a.e("v_cmp_gt_u32 vcc, %d, v%d" % (thr, T + 5))
                    a.e("v_add_u32 v%d, 0x%x, v%d" % (T + 4, (sh[g0] * pitchA) & 0xffffffff, src))
                    a.e("v_add_u32 v%d, 0x%x, v%d" % (T + 5, (sh[g1] * pitchA) & 0xffffffff, src))
                    a.e("v_cndmask_b32 v%d, v%d, v%d, vcc" % (T + 4, T + 5, T + 4))
                src = T + 4
            a.e("s_add_u32 m0, s%d, 0x%x" % (S_LA, buf * CH + i * 1024))
            a.e("s_nop 0")
            a.vmem("buffer_load_dwordx4 v%d, s[%d:%d], s%d offen lds" % (src, SRD_A, SRD_A + 3, S_KA), ('A', c))

    def dma_b(c):
        buf = c % nbuf
        if not packed:
            a.e("s_mov_b32 s%d, 0x%x" % (S_KB, c * kc * N * 2))
        for i in range(nB):
            a.e("s_add_u32 m0, s%d, 0x%x" % (S_LB, buf * CH + ABYTES + i * 1024))
            if packed:
                a.e("s_mov_b32 s%d, 0x%x" % (S_KB, c * BBYTES + i * 1024))
            else:
                a.e("s_nop 0")
            a.vmem("buffer_load_dwordx4 v%d, s[%d:%d], s%d offen lds" % (V_BDMA + (0 if packed else i), SRD_W, SRD_W + 3, S_KB), ('B', c))

    for c in range(0, LA):
        dma_a(c)
        dma_b(c)
    out_srds()
    e_setup()
    if ln:
        a.e("v_mov_b32 v%d, 0x3f803f80" % V_ONES)
        for i in range(2 * nS):
            a.e("v_mov_b32 v%d, 0" % (V_SS + i))
        a.e("v_lshlrev_b32 v%d, 4, v%d" % (V_SA, V_LANE))
        a.e("v_add_u32 v%d, s%d, v%d" % (V_SA, S_LA, V_SA))
    for c in range(nch):
        a.wait_vm([('A', c), ('B', c)])
        a.e("s_barrier")
        buf = c % nbuf
        if ln:
            if buf * CH + (nS - 1) * 1024 > 65535:
                a.e("v_add_u32 v%d, 0x%x, v%d" % (T + 8, buf * CH, V_SA))
                ad, bo = T + 8, 0
            else:
                ad, bo = V_SA, buf * CH
            for e_ in range(nS):
                a.lds("ds_read_b128 %s, v%d offset:%d" % (vr(V_SD + e_ * 4, 4), ad, bo + e_ * 1024), ('s', e_))
        nc = c + LA
        if nc < nch:
            assert nc - nbuf < c
            dma_a(nc)
            dma_b(nc)
        if c == max(0, nch - 2):
            res_loads()
        if ln:
            for e_ in range(nS):
                a.wait_lg([('s', e_)])
                for r_ in range(4):
                    a.e("v_dot2c_f32_bf16 v%d, v%d, v%d" % (V_SS + 2 * e_, V_SD + e_ * 4 + r_, V_ONES))
                    a.e("v_dot2c_f32_bf16 v%d, v%d, v%d" % (V_SS + 2 * e_ + 1, V_SD + e_ * 4 + r_, V_SD + e_ * 4 + r_))
    if ln:
        a.e("s_nop 3")
        steps = ["quad_perm:[1,0,3,2]", "quad_perm:[2,3,0,1]", "row_half_mirror"] + (["row_mirror"] if lpr == 16 else [])
        for stp in steps:
            for i in range(2 * nS):
                a.e("v_add_f32_dpp v%d, v%d, v%d %s row_mask:0xf bank_mask:0xf" % (V_SS + i, V_SS + i, V_SS + i, stp))
            a.e("s_nop 1")
        a.e("v_and_b32 v%d, %d, v%d" % (T + 9, lpr - 1, V_LANE))
        for e_ in range(1, nS):
            a.e("v_cmp_eq_u32 vcc, %d, v%d" % (e_, T + 9))
            a.e("s_nop 1")
            a.e("v_cndmask_b32 v%d, v%d, v%d, vcc" % (V_SS, V_SS, V_SS + 2 * e_))
            a.e("v_cndmask_b32 v%d, v%d, v%d, vcc" % (V_SS + 1, V_SS + 1, V_SS + 2 * e_ + 1))
        a.e("s_mov_b32 s%d, 0x%x" % (S_T0, f32bits(1.0 / K)))
        a.e("s_mov_b32 s%d, 0x%x" % (S_T1, f32bits(1e-5)))
        a.e("v_lshrrev_b32 v%d, %d, v%d" % (T + 10, lsh, V_LANE))
        a.e("v_add_u32 v%d, s%d, v%d" % (T + 10, S_WR0, T + 10))
        a.e("v_mul_u32_u24 v%d, %d, v%d" % (T + 11, rpi, T + 9))
        a.e("v_add_u32 v%d, v%d, v%d" % (T + 10, T + 10, T + 11))
        a.e("v_lshlrev_b32 v%d, 2, v%d" % (T + 11, T + 10))
        a.e("v_add_u32 v%d, 0x%x, v%d" % (T + 11, ABL_, T + 11))
        a.e("v_cmp_gt_u32 s[%d:%d], %d, v%d" % (S_EX, S_EX + 1, nS, T + 9))
        sm, sq = V_SS, V_SS + 1
        mb, r1 = V_SD + 0, V_SD + 1
        a.e("v_mul_f32 v%d, s%d, v%d" % (sm, S_T0, sm))
        a.e("v_mul_f32 v%d, s%d, v%d" % (sq, S_T0, sq))
        a.e("v_fma_f32 v%d, -v%d, v%d, v%d" % (sq, sm, sm, sq))
        a.e("v_max_f32 v%d, 0, v%d" % (sq, sq))
        round_bf16(a, mb, sm, T)
        round_bf16(a, T + 1, sq, T)
        a.e("v_add_f32 v%d, s%d, v%d" % (T + 1, S_T1, T + 1))
        round_bf16(a, T + 1, T + 1, T)
        a.e("v_sqrt_f32 v%d, v%d" % (T + 1, T + 1))
        a.e("s_nop 0")
        round_bf16(a, T + 1, T + 1, T)
        a.e("v_rcp_f32 v%d, v%d" % (r1, T + 1))
        a.e("s_nop 0")
        al, be = T + 4, T + 5
        if ln == 1:
            a.e("v_mov_b32 v%d, v%d" % (al, r1))
            a.e("v_mul_f32 v%d, v%d, v%d" % (be, mb, r1))
        else:
            a.e("v_sub_f32 v%d, v%d, v%d" % (T + 2, sm, mb))
            a.e("v_mul_f32 v%d, v%d, v%d" % (T + 2, T + 2, r1))
            round_bf16(a, T + 2, T + 2, T)
            a.e("v_mul_f32 v%d, v%d, v%d" % (T + 3, sq, r1))
            a.e("v_mul_f32 v%d, v%d, v%d" % (T + 3, T + 3, r1))
            round_bf16(a, T + 3, T + 3, T)
            a.e("v_add_f32 v%d, s%d, v%d" % (T + 3, S_T1, T + 3))
            round_bf16(a, T + 3, T + 3, T)
            a.e("v_sqrt_f32 v%d, v%d" % (T + 3, T + 3))
            a.e("s_nop 0")
            round_bf16(a, T + 3, T + 3, T)
            a.e("v_rcp_f32 v%d, v%d" % (T + 3, T + 3))
            a.e("s_nop 0")
            a.e("v_mul_f32 v%d, v%d, v%d" % (al, r1, T + 3))
            a.e("v_mul_f32 v%d, v%d, v%d" % (T + 2, T + 2, T + 3))
            a.e("v_fma_f32 v%d, v%d, v%d, v%d" % (be, mb, al, T + 2))
        a.e("s_mov_b64 s[90:91], exec")
        a.e("s_mov_b64 exec, s[%d:%d]" % (S_EX, S_EX + 1))
        a.e("ds_write_b32 v%d, v%d" % (T + 11, al))
        a.e("ds_write_b32 v%d, v%d offset:%d" % (T + 11, be, Mt * 4))
        if ln == 2:
            lab = a.newlabel("st")
            a.e("s_cmp_eq_u32 s%d, 0" % S_CB)
            a.e("s_cbranch_scc0 %s" % lab)
            a.e("v_add_u32 v%d, s%d, v%d" % (T + 6, S_ROW0, T + 10))
            a.e("v_lshlrev_b32 v%d, 3, v%d" % (T + 6, T + 6))
            a.e("buffer_store_dwordx2 %s, v%d, s[%d:%d], 0 offen" % (vr(mb, 2), T + 6, SRD_ST, SRD_ST + 3))
            a.label(lab)
        a.e("s_mov_b64 exec, s[90:91]")
        a.e("s_waitcnt lgkmcnt(0)")
        a.lg = []
    a.e("s_barrier")
    a.e("s_branch %s" % L_p2)
    prod_vm = list(a.vm)

    a.vm = []
    a.lg = []
    a.label(L_cons)
    a.e("s_waitcnt lgkmcnt(0)")
    out_srds()
    for j in range(nt):
        if ln:
            a.e("s_mul_i32 s%d, s%d, %d" % (S_TT + j, S_W, ROT))
            a.e("s_add_u32 s%d, s%d, %d" % (S_TT + j, S_TT + j, j))
            a.e("s_cmp_ge_u32 s%d, %d" % (S_TT + j, nt))
            a.e("s_cselect_b32 s%d, %d, 0" % (S_T0, nt))
            a.e("s_sub_u32 s%d, s%d, s%d" % (S_TT + j, S_TT + j, S_T0))
        else:
            a.e("s_mov_b32 s%d, %d" % (S_TT + j, j))
    a.e("v_lshrrev_b32 v%d, 2, v%d" % (T, V_L15))
    a.e("v_lshl_add_u32 v%d, v%d, 2, v%d" % (T + 1, V_G, T))
    a.e("v_mul_u32_u24 v%d, %d, v%d" % (T + 2, P, T + 1))
    a.e("v_and_b32 v%d, 3, v%d" % (T + 3, V_L15))
    a.e("v_lshl_add_u32 v%d, v%d, 3, v%d" % (T + 2, T + 3, T + 2))
    a.e("v_add_u32 v%d, %d, v%d" % (T + 2, ABYTES, T + 2))
    a.e("v_and_b32 v%d, 7, v%d" % (T + 1, T + 1))
    for j in range(nt):
        if nt == 5:
            a.e("s_lshl_b32 s%d, s%d, 5" % (S_T0, S_TT + j))
            a.e("v_add_u32 v%d, s%d, v%d" % (V_B + j, S_T0, T + 2))
        elif nt == 8:
            a.e("v_xor_b32 v%d, s%d, v%d" % (T + 3, S_TT + j, T + 1))
            a.e("v_lshl_add_u32 v%d, v%d, 5, v%d" % (V_B + j, T + 3, T + 2))
        else:
            a.e("v_lshrrev_b32 v%d, 2, v%d" % (T + 3, T + 1))
            a.e("v_add_u32 v%d, s%d, v%d" % (T + 3, S_TT + j, T + 3))
            a.e("v_subrev_u32 v%d, 6, v%d" % (T + 4, T + 3))
            a.e("v_min_u32 v%d, v%d, v%d" % (T + 3, T + 3, T + 4))
            a.e("v_lshl_add_u32 v%d, v%d, 5, v%d" % (V_B + j, T + 3, T + 2))
    a.e("v_add_u32 v%d, s%d, v%d" % (T, S_WR0, V_L15))
    a.e("v_mul_u32_u24 v%d, %d, v%d" % (T, PA, T))
    if lpr == 16:
        a.e("v_xor_b32 v%d, v%d, v%d" % (T + 1, V_L15, V_G))
    else:
        a.e("v_lshrrev_b32 v%d, 1, v%d" % (T + 1, V_L15))
        a.e("v_xor_b32 v%d, v%d, v%d" % (T + 1, T + 1, V_G))
    for ks in range(kpc):
        a.e("v_xor_b32 v%d, %d, v%d" % (T + 2, ks * 4, T + 1))
        a.e("v_lshl_add_u32 v%d, v%d, 4, v%d" % (V_AR + ks, T + 2, T))
    for s_ in range(1, nset):
        for j in range(nt):
            a.e("v_add_u32 v%d, 0x%x, v%d" % (V_B + s_ * nt + j, s_ * 65536, V_B + j))
        for ks in range(kpc):
            a.e("v_add_u32 v%d, 0x%x, v%d" % (V_AR + s_ * kpc + ks, s_ * 65536, V_AR + ks))
    for i in range(4):
        a.e("v_mov_b32 v%d, 0x3f803f80" % (V_ONES + i))
    for i in range(nagpr):
        a.e("v_accvgpr_write_b32 a%d, 0" % i)
    e_setup()

    def main_loop(swapped):
        for c in range(nch):
            if c == 0:
                a.stamp(1)
            a.e("s_barrier")
            if c < 5:
                a.stamp(2 + c)
            if c == max(0, nch - 2):
                res_loads()
            buf = c % nbuf
            frs = [(ks, t) for ks in range(kpc) for t in range(nt)]
            if 'nocomp' in ABL:
                frs = []
            PD = NF - 1

            def rd(idx):
                ks, t = frs[idx]
                if t == 0:
                    for mi in range(mt):
                        off = buf * CH + mi * 16 * PA
                        st = off // 65536
                        a.lds("ds_read_b128 %s, v%d offset:%d" % (
                            vr(V_AF + ((ks & 1) * mt + mi) * 4, 4), V_AR + st * kpc + ks, off % 65536), ('F', idx))
                reg = V_BF + (idx % NF) * 4
                for r_ in range(2):
                    off = buf * CH + (ks * 32 + r_ * 16) * P
                    st = off // 65536
                    a.lds("ds_read_b64_tr_b16 %s, v%d offset:%d" % (vr(reg + r_ * 2, 2), V_B + st * nt + t, off % 65536),
                          ('F', idx))
            for idx in range(min(PD, len(frs))):
                rd(idx)
            for idx, (ks, t) in enumerate(frs):
                if idx + PD < len(frs):
                    rd(idx + PD)
                a.wait_lg([('F', idx)])
                reg = V_BF + (idx % NF) * 4
                for mi in range(mt):
                    av = vr(V_AF + ((ks & 1) * mt + mi) * 4, 4)
                    acc = ar(A_ACC + (mi * nt + t) * 4, 4)
                    if swapped:
                        a.e("v_mfma_f32_16x16x32_bf16 %s, %s, %s, %s" % (acc, vr(reg, 4), av, acc))
                    else:
                        a.e("v_mfma_f32_16x16x32_bf16 %s, %s, %s, %s" % (acc, av, vr(reg, 4), acc))
                if ln and t < NCS:
                    acc = ar(A_CS + t * 4, 4)
                    if swapped:
                        a.e("v_mfma_f32_16x16x32_bf16 %s, %s, %s, %s" % (acc, vr(reg, 4), vr(V_ONES, 4), acc))
                    else:
                        a.e("v_mfma_f32_16x16x32_bf16 %s, %s, %s, %s" % (acc, vr(V_ONES, 4), vr(reg, 4), acc))

    def post_loop(swapped):
        a.stamp(7)
        a.e("s_nop 7")
        a.e("s_nop 1")
        T = V_E
        if ln:
            if swapped:
                a.e("v_lshlrev_b32 v%d, 4, v%d" % (T, V_G))
                a.e("v_cmp_eq_u32 vcc, 0, v%d" % V_L15)
            else:
                a.e("v_lshlrev_b32 v%d, 2, v%d" % (T, V_L15))
                a.e("v_cmp_eq_u32 vcc, 0, v%d" % V_G)
            a.e("v_add_u32 v%d, 0x%x, v%d" % (T, CSL, T))
            for j in range(nt):
                a.e("s_lshl_b32 s%d, s%d, 6" % (S_T0, S_TT + j))
                a.e("v_add_u32 v%d, s%d, v%d" % (V_CS + j * 4 + 3, S_T0, T))
            a.e("s_and_saveexec_b64 s[%d:%d], vcc" % (S_EX, S_EX + 1))
            for j in range(NCS):
                if swapped:
                    for r_ in range(4):
                        a.e("v_accvgpr_read_b32 v%d, a%d" % (T + 4 + r_, A_CS + j * 4 + r_))
                    a.e("ds_write_b128 v%d, %s" % (V_CS + j * 4 + 3, vr(T + 4, 4)))
                else:
                    a.e("v_accvgpr_read_b32 v%d, a%d" % (T + 4, A_CS + j * 4))
                    a.e("ds_write_b32 v%d, v%d" % (V_CS + j * 4 + 3, T + 4))
            a.e("s_mov_b64 exec, s[%d:%d]" % (S_EX, S_EX + 1))
        a.wait_lg0()
        a.e("s_barrier")
        if ln:
            for j in range(nt):
                if swapped:
                    a.lds("ds_read_b128 %s, v%d" % (vr(V_CS + j * 4, 4), V_CS + j * 4 + 3))
                else:
                    a.lds("ds_read_b32 v%d, v%d" % (V_CS + j * 4, V_CS + j * 4 + 3))
            if swapped:
                a.e("v_add_u32 v%d, s%d, v%d" % (T, S_WR0, V_L15))
                a.e("v_lshlrev_b32 v%d, 2, v%d" % (T, T))
                a.e("v_add_u32 v%d, 0x%x, v%d" % (T, ABL_, T))
                for mi in range(mt):
                    a.lds("ds_read_b32 v%d, v%d offset:%d" % (V_AL + mi * 4, T, mi * 64))
                    a.lds("ds_read_b32 v%d, v%d offset:%d" % (V_BE + mi * 4, T, mi * 64 + Mt * 4))
            else:
                a.e("v_lshl_add_u32 v%d, v%d, 2, s%d" % (T, V_G, S_WR0))
                a.e("v_lshlrev_b32 v%d, 2, v%d" % (T, T))
                a.e("v_add_u32 v%d, 0x%x, v%d" % (T, ABL_, T))
                for mi in range(mt):
                    a.lds("ds_read_b128 %s, v%d offset:%d" % (vr(V_AL + mi * 4, 4), T, mi * 64))
                    a.lds("ds_read_b128 %s, v%d offset:%d" % (vr(V_BE + mi * 4, 4), T, mi * 64 + Mt * 4))
            a.wait_lg0()
        a.stamp(8)

    def acc_read(mi, j, dst):
        for r_ in range(4):
            a.e("v_accvgpr_read_b32 v%d, a%d" % (dst + r_, A_ACC + (mi * nt + j) * 4 + r_))

    def unpack(dst, src, n):
        for i in range(n):
            a.e("v_lshlrev_b32 v%d, 16, v%d" % (dst + 2 * i, src + i))
            a.e("v_and_b32 v%d, 0xffff0000, v%d" % (dst + 2 * i + 1, src + i))

    def pack(dst, src, n):
        for i in range(n):
            a.e("v_cvt_pk_bf16_f32 v%d, v%d, v%d" % (dst + i, src + 2 * i, src + 2 * i + 1))

    E = V_E + 4
    PTV = Mt * 2 + 16

    def phase1(swapped):
        if swapped:
            a.e("v_add_u32 v%d, s%d, v%d" % (V_E, S_WR0, V_L15))
            a.e("v_mul_u32_u24 v%d, %d, v%d" % (V_E, PT, V_E))
            a.e("v_lshl_add_u32 v%d, v%d, 3, v%d" % (V_E, V_G, V_E))
        else:
            a.e("v_mul_u32_u24 v%d, %d, v%d" % (V_E, PTV, V_L15))
            a.e("v_lshl_add_u32 v%d, v%d, 3, v%d" % (V_E, V_G, V_E))
            a.e("v_lshl_add_u32 v%d, s%d, 1, v%d" % (V_E, S_WR0, V_E))
        for j in range(nt):
            a.e("s_mul_i32 s%d, s%d, %d" % (S_T0, S_TT + j, 32 if swapped else 16 * PTV))
            a.e("v_add_u32 v%d, s%d, v%d" % (V_E + 1, S_T0, V_E))
            for mi in range(mt):
                W_ = E + (mi & 1) * 8
                acc_read(mi, j, W_)
                if ln:
                    for r_ in range(4):
                        a.e("v_mul_f32 v%d, v%d, v%d" % (W_ + r_, W_ + r_, V_AL + mi * 4 + (0 if swapped else r_)))
                    for r_ in range(4):
                        if swapped:
                            a.e("v_fma_f32 v%d, -v%d, v%d, v%d" % (W_ + r_, V_BE + mi * 4, V_CS + j * 4 + r_, W_ + r_))
                        else:
                            a.e("v_fma_f32 v%d, -v%d, v%d, v%d" % (W_ + r_, V_BE + mi * 4 + r_, V_CS + j * 4, W_ + r_))
                pack(W_ + 4, W_, 2)
                a.lds("ds_write_b64 v%d, %s offset:%d" % (V_E + 1, vr(W_ + 4, 2), mi * 16 * PT if swapped else mi * 32))
        a.wait_lg0()

    if epi == 'qkv':
        L_v = name + "_vpath"
        a.e("s_cmp_ge_u32 s%d, 10" % S_CB)
        a.e("s_cbranch_scc1 %s" % L_v)
        saved = (list(a.vm), list(a.lg))
        main_loop(True)
        post_loop(True)
        phase1(True)
        a.e("s_branch %s" % L_p2)
        a.label(L_v)
        a.vm, a.lg = saved
        main_loop(False)
        post_loop(False)
        phase1(False)
    else:
        main_loop(True)
        post_loop(True)
        phase1(True)

    a.label(L_p2)
    a.e("s_barrier")
    a.vm = [None] * 70
    T = V_E
    if epi == 'qkv':
        L_v2 = name + "_v2"
        a.e("s_cmp_ge_u32 s%d, 10" % S_CB)
        a.e("s_cbranch_scc1 %s" % L_v2)
        a.e("s_cmp_ge_u32 s%d, 5" % S_CB)
        a.e("s_cselect_b32 s%d, 640, 0" % S_T0)
        a.e("s_cselect_b32 s%d, 0x%x, 0" % (S_SEC, WS_K - WS_Q))
        a.e("s_sub_u32 s%d, s%d, s%d" % (S_T0, S_COL0, S_T0))
        a.e("s_mov_b32 s%d, 3277" % S_T1)
        a.e("v_and_b32 v%d, 31, v%d" % (T, V_LANE))
        a.e("v_lshrrev_b32 v%d, 5, v%d" % (T + 1, V_LANE))
        a.e("v_lshl_add_u32 v%d, s%d, 4, v%d" % (T + 1, S_W8, T + 1))
        a.e("v_mul_u32_u24 v%d, %d, v%d" % (T + 2, PT, T + 1))
        a.e("v_lshl_add_u32 v%d, v%d, 3, v%d" % (T + 2, T, T + 2))
        a.e("v_lshl_add_u32 v%d, v%d, 2, s%d" % (T, T, S_T0))
        a.e("v_mul_lo_u32 v%d, v%d, s%d" % (T + 3, T, S_T1))
        a.e("v_lshrrev_b32 v%d, 16, v%d" % (T + 3, T + 3))
        a.e("v_mul_u32_u24 v%d, 20, v%d" % (E, T + 3))
        a.e("v_sub_u32 v%d, v%d, v%d" % (T, T, E))
        a.e("v_lshlrev_b32 v%d, 17, v%d" % (T + 3, T + 3))
        a.e("v_lshl_add_u32 v%d, v%d, 1, v%d" % (T + 3, T, T + 3))
        a.e("v_add_u32 v%d, s%d, v%d" % (T + 1, S_ROW0, T + 1))
        a.e("v_lshl_add_u32 v%d, v%d, 6, v%d" % (T + 3, T + 1, T + 3))
        a.e("v_add_u32 v%d, s%d, v%d" % (T + 3, S_SEC, T + 3))
        for e_ in range(8):
            a.lds("ds_read_b64 %s, v%d offset:%d" % (vr(E + e_ * 2, 2), T + 2, e_ * 2 * PT), ('e', e_))
        for e_ in range(8):
            a.wait_lg([('e', e_)])
            a.e("buffer_store_dwordx2 %s, v%d, s[%d:%d], 0 offen offset:%d" % (
                vr(E + e_ * 2, 2), T + 3, SRD_O, SRD_O + 3, e_ * 128))
        a.stamp(9)
        a.stamp_out(10, V_E)
        a.e("s_endpgm")
        a.label(L_v2)
        a.e("v_lshrrev_b32 v%d, 4, v%d" % (T, V_LANE))
        a.e("v_lshl_add_u32 v%d, s%d, 4, v%d" % (T, S_W8, T))
        a.e("v_mul_u32_u24 v%d, %d, v%d" % (T + 1, PTV, T))
        a.e("v_lshl_add_u32 v%d, v%d, 4, v%d" % (T + 1, V_L15, T + 1))
        a.e("s_sub_u32 s%d, s%d, 1280" % (S_T0, S_COL0))
        a.e("v_add_u32 v%d, s%d, v%d" % (T, S_T0, T))
        a.e("v_lshlrev_b32 v%d, 12, v%d" % (T, T))
        a.e("v_lshl_add_u32 v%d, v%d, 4, v%d" % (T, V_L15, T))
        a.e("s_lshl_b32 s%d, s%d, 1" % (S_T0, S_ROW0))
        a.e("s_add_u32 s%d, s%d, 0x%x" % (S_T0, S_T0, WS_VT - WS_Q))
        a.e("v_add_u32 v%d, s%d, v%d" % (T, S_T0, T))
        for e_ in range(4):
            a.lds("ds_read_b128 %s, v%d offset:%d" % (vr(E + e_ * 4, 4), T + 1, e_ * 4 * PTV), ('e', e_))
        for e_ in range(4):
            a.wait_lg([('e', e_)])
            a.e("buffer_store_dwordx4 %s, v%d, s[%d:%d], 0 offen" % (vr(E + e_ * 4, 4), T, SRD_O, SRD_O + 3))
            a.e("v_add_u32 v%d, 0x4000, v%d" % (T, T))
    else:
        for e_ in range(nE):
            a.lds("ds_read_b128 %s, v%d" % (vr(V_CS + e_ * 4, 4), V_EL + e_), ('e', e_))
        assert nE * 4 <= nt * 4
        if epi == 'gelu':
            a.e("s_mov_b32 s%d, 0x%x" % (S_C2, f32bits(GELU_C2)))
            a.e("v_mov_b32 v%d, 0x%x" % (V_E, f32bits(GELU_C1)))
        else:
            a.e("s_waitcnt vmcnt(0)")
        for e_ in range(nE):
            a.wait_lg([('e', e_)])
            src = V_CS + e_ * 4
            unpack(E, src, 4)
            if epi == 'gelu':
                for r_ in range(8):
                    a.e("v_mul_f32 v%d, v%d, v%d" % (E + 8 + r_, E + r_, E + r_))
                for r_ in range(8):
                    a.e("v_fma_f32 v%d, v%d, s%d, v%d" % (E + 8 + r_, E + 8 + r_, S_C2, V_E))
                for r_ in range(8):
                    a.e("v_mul_f32 v%d, v%d, v%d" % (E + 8 + r_, E + 8 + r_, E + r_))
                for r_ in range(8):
                    a.e("v_exp_f32 v%d, v%d" % (E + 8 + r_, E + 8 + r_))
                for r_ in range(8):
                    a.e("v_add_f32 v%d, 1.0, v%d" % (E + 8 + r_, E + 8 + r_))
                for r_ in range(8):
                    a.e("v_rcp_f32 v%d, v%d" % (E + 8 + r_, E + 8 + r_))
                for r_ in range(8):
                    a.e("v_mul_f32 v%d, v%d, v%d" % (E + r_, E + r_, E + 8 + r_))
            else:
                unpack(E + 8, V_R1 + e_ * 4, 4)
                if epi == 'x1':
                    for r_ in range(8):
                        a.e("v_sub_f32 v%d, v%d, v%d" % (E + 8 + r_, E + 8 + r_, V_RS + e_ * 2))
                    pack(E + 16, E + 8, 4)
                    unpack(E + 8, E + 16, 4)
                    for r_ in range(8):
                        a.e("v_mul_f32 v%d, v%d, v%d" % (E + 8 + r_, E + 8 + r_, V_RS + e_ * 2 + 1))
                    pack(E + 16, E + 8, 4)
                    unpack(E + 8, E + 16, 4)
                for r_ in range(8):
                    a.e("v_add_f32 v%d, v%d, v%d" % (E + r_, E + r_, E + 8 + r_))
                if epi == 'out':
                    pack(E + 16, E, 4)
                    unpack(E, E + 16, 4)
                    unpack(E + 8, V_R2 + e_ * 4, 4)
                    for r_ in range(8):
                        a.e("v_add_f32 v%d, v%d, v%d" % (E + r_, E + r_, E + 8 + r_))
            pack(src, E, 4)
            a.e("buffer_store_dwordx4 %s, v%d, s[%d:%d], 0 offen" % (vr(src, 4), V_EO + e_, SRD_O, SRD_O + 3))
        a.stamp(9)
        a.stamp_out(10, V_E)
    a.label(L_end)
    a.e("s_endpgm")
    if packwg:
        a.label(name + "_pack")
        emit_pack_path(a, ntiles, packwg)
    return a.lines, kernel_desc(name, nv, nagpr), ntiles + packwg, lds_bytes, 512


def gen_attn(name):
    a = Asm()
    KL = 0
    VL = 384 * 64
    PV = 800
    lds_bytes = VL + 22 * PV
    lds_bytes = (lds_bytes + 1023) // 1024 * 1024 + 1024

    V_LANE, V_L15, V_G = 1, 2, 3
    V_T = 4
    V_KA = 12
    V_VA = 14
    V_A = 16
    V_X16, V_X32, V_BS = 17, 18, 19
    V_Q = 20
    V_O = 28
    V_KF = 44
    V_VF = 60
    V_M = 76
    V_S = 80
    V_PD = V_S + 144
    V_PA = V_PD + 20
    nv = V_PA + 5
    S_WS = 4
    SRD_Q, SRD_K, SRD_V, SRD_O = 8, 12, 16, 20
    S_W, S_H, S_Q0, S_T0, S_T1, S_KS, S_C, S_EX = 32, 33, 34, 35, 36, 37, 38, 40

    kernel_header(a, name)
    L_end = name + "_end"
    a.e("s_cmp_ge_u32 s2, 512")
    a.e("s_cbranch_scc1 %s" % L_end)
    a.e("s_load_dwordx2 s[%d:%d], s[0:1], %d" % (S_WS, S_WS + 1, KA['ws']))
    a.e("s_and_b32 s%d, s2, 7" % S_T0)
    a.e("s_lshr_b32 s%d, s2, 3" % S_T1)
    a.e("s_lshr_b32 s%d, s%d, 1" % (S_H, S_T1))
    a.e("s_and_b32 s%d, s%d, 1" % (S_Q0, S_T1))
    a.e("s_lshl_b32 s%d, s%d, 1" % (S_T0, S_T0))
    a.e("s_add_u32 s%d, s%d, s%d" % (S_Q0, S_Q0, S_T0))
    a.e("s_lshl_b32 s%d, s%d, 7" % (S_Q0, S_Q0))
    a.e("v_and_b32 v%d, 63, v0" % V_LANE)
    a.e("v_lshrrev_b32 v%d, 6, v0" % V_T)
    a.e("v_and_b32 v%d, 15, v0" % V_L15)
    a.e("v_bfe_u32 v%d, v0, 4, 2" % V_G)
    a.e("v_readfirstlane_b32 s%d, v%d" % (S_W, V_T))
    a.e("s_waitcnt lgkmcnt(0)")
    build_srd(a, SRD_Q, S_WS, WS_Q, 32 * 2048 * 64)
    build_srd(a, SRD_K, S_WS, WS_K, 32 * 2048 * 64)
    build_srd(a, SRD_V, S_WS, WS_VT, 640 * 2048 * 2)
    build_srd(a, SRD_O, S_WS, WS_O, S * D * 2)
    T = V_T
    a.e("s_lshl_b32 s%d, s%d, 11" % (S_T0, S_H))
    a.e("s_add_u32 s%d, s%d, s%d" % (S_T0, S_T0, S_Q0))
    a.e("s_sub_u32 s%d, s%d, 256" % (S_T0, S_T0))
    a.e("s_mul_i32 s%d, s%d, 96" % (S_T1, S_W))
    a.e("s_add_u32 s%d, s%d, s%d" % (S_T0, S_T0, S_T1))
    a.e("s_lshl_b32 s%d, s%d, 6" % (S_KS, S_T0))
    a.e("v_lshrrev_b32 v%d, 2, v%d" % (T, V_LANE))
    a.e("v_lshlrev_b32 v%d, 6, v%d" % (T, T))
    a.e("v_add_u32 v%d, s%d, v%d" % (T, S_KS, T))
    a.e("v_and_b32 v%d, 3, v%d" % (T + 1, V_LANE))
    a.e("v_lshl_add_u32 v%d, v%d, 4, v%d" % (T + 2, T + 1, T))
    a.e("v_xor_b32 v%d, 2, v%d" % (T + 1, T + 1))
    a.e("v_lshl_add_u32 v%d, v%d, 4, v%d" % (T + 3, T + 1, T))
    a.e("s_mul_i32 s%d, s%d, 6144" % (S_T1, S_W))
    for i in range(6):
        a.e("s_add_u32 m0, s%d, %d" % (S_T1, KL + i * 1024))
        a.e("v_add_u32 v%d, %d, v%d" % (T + 4 + (i & 1), i * 1024, T + 2 + (i & 1)))
        a.vmem("buffer_load_dwordx4 v%d, s[%d:%d], 0 offen lds" % (T + 4 + (i & 1), SRD_K, SRD_K + 3))
    a.e("s_mul_i32 s%d, s%d, 20" % (S_T0, S_H))
    a.e("s_lshl_b32 s%d, s%d, 12" % (S_T0, S_T0))
    a.e("s_lshl_b32 s%d, s%d, 1" % (S_T1, S_Q0))
    a.e("s_add_u32 s%d, s%d, s%d" % (S_T0, S_T0, S_T1))
    a.e("s_sub_u32 s%d, s%d, 512" % (S_T0, S_T0))
    a.e("s_lshl_b32 s%d, s%d, 8" % (S_T1, S_W))
    a.e("s_mov_b32 s%d, 1311" % S_C)
    for G in range(1024):
        assert (G * 1311) >> 16 == G // 50
    for i in range(4):
        a.e("v_add_u32 v%d, s%d, v%d" % (T, S_T1, V_LANE))
        if i:
            a.e("v_add_u32 v%d, %d, v%d" % (T, i * 64, T))
        a.e("v_mul_lo_u32 v%d, v%d, s%d" % (T + 1, T, S_C))
        a.e("v_lshrrev_b32 v%d, 16, v%d" % (T + 1, T + 1))
        a.e("v_mul_u32_u24 v%d, 50, v%d" % (T + 2, T + 1))
        a.e("v_sub_u32 v%d, v%d, v%d" % (T + 2, T, T + 2))
        a.e("v_lshlrev_b32 v%d, 12, v%d" % (T + 3, T + 1))
        a.e("v_lshl_add_u32 v%d, v%d, 4, v%d" % (T + 3, T + 2, T + 3))
        a.e("v_add_u32 v%d, s%d, v%d" % (T + 3, S_T0, T + 3))
        a.e("v_cmp_le_u32 vcc, 20, v%d" % (T + 1))
        a.e("v_cmp_le_u32 s[%d:%d], 48, v%d" % (S_EX, S_EX + 1, T + 2))
        a.e("s_or_b64 vcc, vcc, s[%d:%d]" % (S_EX, S_EX + 1))
        a.e("v_mov_b32 v%d, 0x7fffff00" % (T + 4))
        a.e("s_lshl_b32 m0, s%d, 12" % S_W)
        a.e("v_cndmask_b32 v%d, v%d, v%d, vcc" % (T + 3, T + 3, T + 4))
        a.e("s_add_u32 m0, m0, %d" % (VL + i * 1024))
        a.e("s_nop 0")
        a.vmem("buffer_load_dwordx4 v%d, s[%d:%d], 0 offen lds" % (T + 3, SRD_V, SRD_V + 3))
    a.e("s_lshl_b32 s%d, s%d, 11" % (S_T0, S_H))
    a.e("s_add_u32 s%d, s%d, s%d" % (S_T0, S_T0, S_Q0))
    a.e("s_lshl_b32 s%d, s%d, 5" % (S_T1, S_W))
    a.e("s_add_u32 s%d, s%d, s%d" % (S_T0, S_T0, S_T1))
    a.e("v_add_u32 v%d, s%d, v%d" % (T, S_T0, V_L15))
    a.e("v_lshlrev_b32 v%d, 6, v%d" % (T, T))
    a.e("v_lshl_add_u32 v%d, v%d, 4, v%d" % (T, V_G, T))
    a.vmem("buffer_load_dwordx4 %s, v%d, s[%d:%d], 0 offen" % (vr(V_Q, 4), T, SRD_Q, SRD_Q + 3), 'Q')
    a.vmem("buffer_load_dwordx4 %s, v%d, s[%d:%d], 0 offen offset:1024" % (vr(V_Q + 4, 4), T, SRD_Q, SRD_Q + 3), 'Q')
    emit_pack_loads(a, S_W, V_LANE, T, V_PD, V_PA, 44)
    a.e("v_lshrrev_b32 v%d, 2, v%d" % (T, V_L15))
    a.e("v_and_b32 v%d, 3, v%d" % (T + 1, V_L15))
    a.e("v_lshl_add_u32 v%d, v%d, 3, v%d" % (T, T, T + 1))
    a.e("v_bfe_u32 v%d, v%d, 4, 1" % (T + 1, T))
    a.e("v_lshlrev_b32 v%d, 1, v%d" % (T + 1, T + 1))
    a.e("v_xor_b32 v%d, v%d, v%d" % (T + 1, T + 1, V_G))
    a.e("v_lshlrev_b32 v%d, 6, v%d" % (T, T))
    a.e("v_lshl_add_u32 v%d, v%d, 4, v%d" % (T, T + 1, T))
    a.e("s_lshl_b32 s%d, s%d, 11" % (S_T0, S_W))
    a.e("v_add_u32 v%d, s%d, v%d" % (V_KA, S_T0, T))
    a.e("v_add_u32 v%d, 256, v%d" % (V_KA + 1, V_KA))
    a.e("v_mul_u32_u24 v%d, %d, v%d" % (T, PV, V_L15))
    a.e("v_lshl_add_u32 v%d, v%d, 4, v%d" % (T, V_G, T))
    a.e("s_lshl_b32 s%d, s%d, 6" % (S_T0, S_W))
    a.e("s_add_u32 s%d, s%d, %d" % (S_T0, S_T0, VL))
    a.e("v_add_u32 v%d, s%d, v%d" % (V_VA, S_T0, T))
    a.e("v_add_u32 v%d, 16, v%d" % (T, V_L15))
    a.e("v_min_u32 v%d, 21, v%d" % (T, T))
    a.e("v_mul_u32_u24 v%d, %d, v%d" % (T, PV, T))
    a.e("v_lshl_add_u32 v%d, v%d, 4, v%d" % (T, V_G, T))
    a.e("v_add_u32 v%d, s%d, v%d" % (V_VA + 1, S_T0, T))
    a.e("v_lshlrev_b32 v%d, 3, v%d" % (T, V_G))
    a.e("v_sub_u32 v%d, v%d, v%d" % (V_A, V_L15, T))
    a.e("v_xor_b32 v%d, 16, v%d" % (T, V_LANE))
    a.e("v_lshlrev_b32 v%d, 2, v%d" % (V_X16, T))
    a.e("v_xor_b32 v%d, 32, v%d" % (T, V_LANE))
    a.e("v_lshlrev_b32 v%d, 2, v%d" % (V_X32, T))
    a.e("v_add_u32 v%d, 16, v%d" % (T, V_L15))
    a.e("v_lshlrev_b32 v%d, 2, v%d" % (V_BS, T))
    for i in range(16):
        a.e("v_mov_b32 v%d, 0" % (V_O + i))
    a.wait_vm(['Q'])
    a.e("s_barrier")
    a.e("v_mov_b32 v%d, 0" % (T + 4))
    a.e("v_mov_b32 v%d, 0" % (T + 5))
    a.e("v_mov_b32 v%d, 0" % (T + 6))
    a.e("v_mov_b32 v%d, 0" % (T + 7))
    a.e("v_bfe_u32 v%d, v0, 4, 1" % T)
    a.e("v_lshlrev_b32 v%d, 5, v%d" % (T, T))
    a.e("v_lshlrev_b32 v%d, 6, v0" % (T + 1))
    a.e("v_xor_b32 v%d, 32, v%d" % (T + 2, T))
    a.e("v_add_u32 v%d, v%d, v%d" % (T + 2, T + 1, T + 2))
    a.e("v_xor_b32 v%d, 48, v%d" % (T + 3, T))
    a.e("v_add_u32 v%d, v%d, v%d" % (T + 3, T + 1, T + 3))
    a.e("ds_write_b64 v%d, %s offset:%d" % (T + 2, vr(T + 4, 2), KL + 8))
    a.e("ds_write_b128 v%d, %s offset:%d" % (T + 3, vr(T + 4, 4), KL))
    a.e("v_cmp_gt_u32 vcc, 128, v0")
    a.e("s_and_saveexec_b64 s[%d:%d], vcc" % (S_EX, S_EX + 1))
    a.e("ds_write_b64 v%d, %s offset:%d" % (T + 2, vr(T + 4, 2), KL + 8 + 256 * 64))
    a.e("ds_write_b128 v%d, %s offset:%d" % (T + 3, vr(T + 4, 4), KL + 256 * 64))
    a.e("s_mov_b64 exec, s[%d:%d]" % (S_EX, S_EX + 1))
    a.e("v_cmp_gt_u32 vcc, 2, v%d" % V_G)
    a.e("v_cmp_gt_u32 s[%d:%d], 3, v%d" % (S_EX, S_EX + 1, V_G))
    a.e("s_nop 1")
    for qt in range(2):
        a.e("v_cndmask_b32 v%d, 0, v%d, s[%d:%d]" % (V_Q + qt * 4, V_Q + qt * 4, S_EX, S_EX + 1))
        a.e("v_cndmask_b32 v%d, 0, v%d, s[%d:%d]" % (V_Q + qt * 4 + 1, V_Q + qt * 4 + 1, S_EX, S_EX + 1))
        a.e("v_cndmask_b32 v%d, 0, v%d, vcc" % (V_Q + qt * 4 + 2, V_Q + qt * 4 + 2))
        a.e("v_cndmask_b32 v%d, 0, v%d, vcc" % (V_Q + qt * 4 + 3, V_Q + qt * 4 + 3))
    a.e("v_cmp_gt_u32 vcc, 48, v%d" % V_LANE)
    a.e("s_and_saveexec_b64 s[%d:%d], vcc" % (S_EX, S_EX + 1))
    a.e("s_cmp_lt_u32 s%d, 2" % S_W)
    labz = a.newlabel("ones")
    a.e("s_cbranch_scc0 %s" % labz)
    a.e("s_cmp_eq_u32 s%d, 0" % S_W)
    a.e("s_cselect_b32 s%d, 0x3f803f80, 0" % S_T0)
    for i in range(4):
        a.e("v_mov_b32 v%d, s%d" % (T + 4 + i, S_T0))
    a.e("s_mul_i32 s%d, s%d, %d" % (S_T0, S_W, PV))
    a.e("s_add_u32 s%d, s%d, %d" % (S_T0, S_T0, VL + 20 * PV))
    a.e("v_lshlrev_b32 v%d, 4, v%d" % (T, V_LANE))
    a.e("v_add_u32 v%d, s%d, v%d" % (T, S_T0, T))
    a.e("ds_write_b128 v%d, %s" % (T, vr(T + 4, 4)))
    a.label(labz)
    a.e("s_mov_b64 exec, s[%d:%d]" % (S_EX, S_EX + 1))
    a.e("s_waitcnt lgkmcnt(0)")
    a.e("s_barrier")

    def sreg(b, qt):
        return V_S + (b * 2 + qt) * 8

    def kread(b):
        for Tt in range(2):
            a.lds("ds_read_b128 %s, v%d offset:%d" % (vr(V_KF + (b & 1) * 8 + Tt * 4, 4), V_KA + Tt, KL + b * 2048), ('K', b))
    kread(0)
    for b in range(9):
        if b + 1 < 9:
            kread(b + 1)
        a.wait_lg([('K', b)])
        for qt in range(2):
            for Tt in range(2):
                a.e("v_mfma_f32_16x16x32_bf16 %s, %s, %s, 0" % (
                    vr(sreg(b, qt) + Tt * 4, 4), vr(V_KF + (b & 1) * 8 + Tt * 4, 4), vr(V_Q + qt * 4, 4)))
    a.wait_lg0()
    emit_prefetch(a, 'wo', 640 * 640 * 2, 64, 88, S_T0, S_W, V_LANE, V_T + 4)
    def vread(b):
        for dt in range(2):
            a.lds("ds_read_b128 %s, v%d offset:%d" % (vr(V_VF + (b & 1) * 8 + dt * 4, 4), V_VA + dt, b * 64), ('V', b))
    vread(0)
    a.e("s_nop 7")
    a.e("s_nop 3")
    a.e("v_mov_b32 v%d, 0xf149f2ca" % (V_M + 2))
    for qt in range(2):
        for Tt in range(2):
            for r_ in range(4):
                th = Tt * 4 + r_ - qt * 16
                a.e("v_cmp_gt_i32 vcc, %d, v%d" % (th, V_A))
                a.e("s_nop 1")
                r0 = sreg(0, qt) + Tt * 4 + r_
                r8 = sreg(8, qt) + Tt * 4 + r_
                a.e("v_cndmask_b32 v%d, v%d, v%d, vcc" % (r0, V_M + 2, r0))
                a.e("v_cndmask_b32 v%d, v%d, v%d, vcc" % (r8, r8, V_M + 2))
    a.e("s_lshl_b32 s%d, s%d, 5" % (S_T0, S_W))
    a.e("s_add_u32 s%d, s%d, s%d" % (S_T0, S_T0, S_Q0))
    for b in range(8):
        lab = a.newlabel("neg")
        a.e("s_cmp_lt_i32 s%d, %d" % (S_T0, 256 - b * 32))
        a.e("s_cbranch_scc0 %s" % lab)
        for i in range(16):
            a.e("v_mov_b32 v%d, v%d" % (sreg(b, 0) + i, V_M + 2))
        a.label(lab)
    for qt in range(2):
        regs = [sreg(b, qt) + i for b in range(9) for i in range(8)]
        a.e("v_max3_f32 v%d, v%d, v%d, v%d" % (V_M + qt, regs[0], regs[1], regs[2]))
        for i in range(3, 71, 2):
            a.e("v_max3_f32 v%d, v%d, v%d, v%d" % (V_M + qt, V_M + qt, regs[i], regs[i + 1]))
        a.e("v_max_f32 v%d, v%d, v%d" % (V_M + qt, V_M + qt, regs[71]))
    for xr in (V_X16, V_X32):
        for qt in range(2):
            a.lds("ds_bpermute_b32 v%d, v%d, v%d" % (V_M + 2 + qt, xr, V_M + qt), 'x')
        a.wait_lg(['x'])
        for qt in range(2):
            a.e("v_max_f32 v%d, v%d, v%d" % (V_M + qt, V_M + qt, V_M + 2 + qt))
    cs = (DH ** -0.5) * 1.4426950408889634
    a.e("s_mov_b32 s%d, 0x%x" % (S_C, f32bits(cs)))
    for qt in range(2):
        a.e("v_mul_f32 v%d, s%d, v%d" % (V_M + qt, S_C, V_M + qt))
    for b in range(9):
        for qt in range(2):
            r0 = sreg(b, qt)
            for i in range(8):
                a.e("v_fma_f32 v%d, v%d, s%d, -v%d" % (r0 + i, r0 + i, S_C, V_M + qt))
            for i in range(8):
                a.e("v_exp_f32 v%d, v%d" % (r0 + i, r0 + i))
            a.e("s_nop 0")
            for i in range(4):
                a.e("v_cvt_pk_bf16_f32 v%d, v%d, v%d" % (r0 + i, r0 + 2 * i, r0 + 2 * i + 1))
        if b + 1 < 9:
            vread(b + 1)
        a.wait_lg([('V', b)])
        a.e("s_nop 1")
        for dt in range(2):
            for qt in range(2):
                o = vr(V_O + (dt * 2 + qt) * 4, 4)
                a.e("v_mfma_f32_16x16x32_bf16 %s, %s, %s, %s" % (
                    o, vr(V_VF + (b & 1) * 8 + dt * 4, 4), vr(sreg(b, qt), 4), o))
    a.e("s_nop 7")
    a.e("s_nop 3")
    emit_pack_stores(a, S_WS, V_PD, V_PA, 44)
    for qt in range(2):
        a.lds("ds_bpermute_b32 v%d, v%d, v%d" % (V_M + qt, V_BS, V_O + (2 + qt) * 4), 'x')
    a.e("s_lshl_b32 s%d, s%d, 5" % (S_T0, S_W))
    a.e("s_add_u32 s%d, s%d, s%d" % (S_T0, S_T0, S_Q0))
    a.e("v_add_u32 v%d, s%d, v%d" % (T, S_T0, V_L15))
    a.e("s_movk_i32 s%d, 1280" % S_T1)
    a.e("v_mul_lo_u32 v%d, v%d, s%d" % (T, T, S_T1))
    a.e("v_lshl_add_u32 v%d, v%d, 3, v%d" % (T, V_G, T))
    a.e("s_mul_i32 s%d, s%d, 40" % (S_T0, S_H))
    a.e("v_add_u32 v%d, s%d, v%d" % (T, S_T0, T))
    a.e("v_add_u32 v%d, %d, v%d" % (T + 1, 16 * 1280, T))
    a.wait_lg(['x'])
    for qt in range(2):
        a.e("v_rcp_f32 v%d, v%d" % (V_M + qt, V_M + qt))
    a.e("s_nop 0")
    for qt in range(2):
        for dt in range(2):
            o = V_O + (dt * 2 + qt) * 4
            for r_ in range(4):
                a.e("v_mul_f32 v%d, v%d, v%d" % (o + r_, o + r_, V_M + qt))
            a.e("v_cvt_pk_bf16_f32 v%d, v%d, v%d" % (o, o, o + 1))
            a.e("v_cvt_pk_bf16_f32 v%d, v%d, v%d" % (o + 1, o + 2, o + 3))
    for qt in range(2):
        a.e("buffer_store_dwordx2 %s, v%d, s[%d:%d], 0 offen offset:%d" % (
            vr(V_O + qt * 4, 2), T + qt, SRD_O, SRD_O + 3, 0))
    a.e("v_cmp_eq_u32 vcc, 0, v%d" % V_G)
    a.e("s_and_saveexec_b64 s[%d:%d], vcc" % (S_EX, S_EX + 1))
    for qt in range(2):
        a.e("buffer_store_dwordx2 %s, v%d, s[%d:%d], 0 offen offset:%d" % (
            vr(V_O + (2 + qt) * 4, 2), T + qt, SRD_O, SRD_O + 3, 32))
    a.label(L_end)
    a.e("s_endpgm")
    return a.lines, kernel_desc(name, nv, 0), 512, lds_bytes, 256


def main():
    out = sys.argv[1] if len(sys.argv) > 1 else "sequential_preLN__sliding_block__mixer_s_mlp__prompt.s"
    ks = []
    ks.append(("k1_kernel",) + gen_gemm("k1_kernel", 640, 1920, 128, 128, ('in', 'x'), 'wqkv', 1, 'qkv', 64))
    ks.append(("k2_kernel",) + gen_attn("k2_kernel"))
    ks.append(("k3_kernel",) + gen_gemm("k3_kernel", 640, 640, 64, 80, ('ws', WS_O), 'wo', 0, 'res', 128, pf=('w1', 640 * 640 * 2)))
    ks.append(("k4_kernel",) + gen_gemm("k4_kernel", 640, 640, 64, 80, ('ws', WS_H), 'w1', 2, 'gelu', 128, pf=('w2', 640 * 640 * 2)))
    ks.append(("k5_kernel",) + gen_gemm("k5_kernel", 640, 640, 64, 80, ('ws', WS_HG), 'w2', 0, 'x1', 128, shift=True, pf=('w3', 640 * 1536 * 2)))
    ks.append(("k6_kernel",) + gen_gemm("k6_kernel", 640, 1536, 128, 96, ('ws', WS_X1), 'w3', 1, 'gelu', 64, pf=('w4', 640 * 1536 * 2)))
    ks.append(("k7_kernel",) + gen_gemm("k7_kernel", 1536, 640, 64, 80, ('ws', WS_G), 'w4', 0, 'out', 128))
    hdr = open("sequential_preLN__sliding_block__mixer_s_mlp__prompt.s.ref").read().split("\n")
    txt = []
    for l in hdr:
        if l.startswith("; @launch") or l.startswith("; Override") or l.startswith("; grid="):
            continue
        if not l.startswith(";"):
            break
        txt.append(l)
    for (nm, lines, desc, ntiles, lds, blk) in ks:
        txt.append("; @launch kernel=%s grid=(%d,1,1) block=(%d,1,1) lds=%d" % (nm, ntiles, blk, lds))
    txt.append('.amdgcn_target "amdgcn-amd-amdhsa--gfx950"')
    txt.append(".text")
    for (nm, lines, desc, ntiles, lds, blk) in ks:
        txt += lines
    txt.append('.section .rodata,"a"')
    for (nm, lines, desc, ntiles, lds, blk) in ks:
        txt.append(".p2align 6")
        txt.append(desc)
    open(out, "w").write("\n".join(txt) + "\n")
    print("wrote", out, "lines", len(txt))


if __name__ == "__main__":
    main()
```

```python
import sys, os
ABL = set(os.environ.get('ABL', '').split(','))

S = 2048
D = 640
F = 1536
H = 32
DH = 20

WS_Q = 0
WS_K = WS_Q + 32 * 2048 * 64
WS_VT = WS_K + 32 * 2048 * 64
WS_O = WS_VT + 640 * 2048 * 2
WS_H = WS_O + S * D * 2
WS_HG = WS_H + S * D * 2
WS_X1 = WS_HG + S * D * 2
WS_G = WS_X1 + S * D * 2
WS_ST = WS_G + S * F * 2
WS_PW = {}
_o = WS_ST + S * 8
for _k, _n in (('wo', 640 * 640 * 2), ('w1', 640 * 640 * 2), ('w2', 640 * 640 * 2), ('w3', 640 * 1536 * 2), ('w4', 640 * 1536 * 2)):
    WS_PW[_k] = _o
    _o += _n
WS_END = _o
PACK = dict(wo=(640, 640, 80, 128), w1=(640, 640, 80, 128), w2=(640, 640, 80, 128), w3=(640, 1536, 96, 64), w4=(1536, 640, 80, 128))

KA = dict(x=0, wqkv=8, wo=16, bx=24, w1=32, w2=40, w3=48, w4=56, out=64, dbg=72, ws=80)


class Asm:
    def __init__(self):
        self.lines = []
        self.vm = []
        self.lg = []
        Asm.uid = getattr(Asm, 'uid', 0)

    def e(self, s):
        self.lines.append("    " + s)

    def label(self, s):
        self.lines.append(s + ":")

    def c(self, s):
        self.lines.append("    ; " + s)

    def newlabel(self, p):
        Asm.uid += 1
        return "L_%s_%d" % (p, Asm.uid)

    def vmem(self, s, tag=None):
        self.e(s)
        self.vm.append(tag)

    def lds(self, s, tag=None):
        self.e(s)
        self.lg.append(tag)

    def _need(self, lst, tags):
        last = -1
        for i, t in enumerate(lst):
            if t in tags:
                last = i
        return last

    def wait_vm(self, tags):
        last = self._need(self.vm, tags)
        if last < 0:
            return
        n = len(self.vm) - 1 - last
        if n <= 63:
            self.e("s_waitcnt vmcnt(%d)" % n)
        self.vm = self.vm[last + 1:]

    def wait_lg(self, tags):
        last = self._need(self.lg, tags)
        if last < 0:
            return
        n = len(self.lg) - 1 - last
        assert n <= 15, n
        self.e("s_waitcnt lgkmcnt(%d)" % n)
        self.lg = self.lg[last + 1:]

    def stamp(self, i):
        if 'stamp' not in ABL:
            return
        self.e("s_memtime s[%d:%d]" % (60 + 2 * i, 61 + 2 * i))
        if i == 0:
            self.e("s_memrealtime s[92:93]")
        if i == 9:
            self.e("s_memrealtime s[94:95]")
        self.e("s_waitcnt lgkmcnt(0)")
        self.lg = []

    def stamp_out(self, n, vtmp, wg=0):
        if 'stamp' not in ABL:
            return
        Asm.kidx = getattr(Asm, 'kidx', 0) + 1
        self.e("s_load_dwordx2 s[56:57], s[0:1], 80")
        self.e("s_waitcnt lgkmcnt(0)")
        self.e("s_add_u32 s56, s56, 0x%x" % ((64 << 20) + self.kslot * 65536))
        self.e("s_addc_u32 s57, s57, 0")
        self.e("s_and_b32 s57, s57, 0xffff")
        self.e("s_mov_b32 s58, 65536")
        self.e("s_mov_b32 s59, 0x00020000")
        self.e("v_cmp_eq_u32 vcc, 0, v0")
        self.e("s_and_saveexec_b64 s[80:81], vcc")
        self.e("s_lshl_b32 s82, s2, 3")
        self.e("v_mov_b32 v%d, s82" % vtmp)
        self.e("v_mov_b32 v%d, s92" % (vtmp + 1))
        self.e("buffer_store_dword v%d, v%d, s[56:59], 0 offen" % (vtmp + 1, vtmp))
        self.e("v_mov_b32 v%d, s94" % (vtmp + 1))
        self.e("buffer_store_dword v%d, v%d, s[56:59], 0 offen offset:4" % (vtmp + 1, vtmp))
        self.e("s_mov_b64 exec, s[80:81]")
        lab = self.newlabel("stamp")
        self.e("s_cmp_eq_u32 s2, %d" % wg)
        self.e("s_cbranch_scc0 %s" % lab)
        self.e("s_load_dwordx2 s[56:57], s[0:1], 72")
        self.e("s_waitcnt lgkmcnt(0)")
        self.e("s_and_b32 s57, s57, 0xffff")
        self.e("s_mov_b32 s58, 256")
        self.e("s_mov_b32 s59, 0x00020000")
        self.e("v_lshrrev_b32 v%d, 6, v0" % vtmp)
        self.e("v_lshlrev_b32 v%d, 6, v%d" % (vtmp, vtmp))
        self.e("v_and_b32 v%d, 63, v0" % (vtmp + 1))
        self.e("v_cmp_eq_u32 vcc, 0, v%d" % (vtmp + 1))
        self.e("s_and_saveexec_b64 s[80:81], vcc")
        for i in range(n):
            self.e("s_sub_u32 s82, s%d, s60" % (60 + 2 * i))
            self.e("v_mov_b32 v%d, s82" % (vtmp + 1))
            self.e("buffer_store_dword v%d, v%d, s[56:59], 0 offen offset:%d" % (vtmp + 1, vtmp, i * 4))
        self.e("s_sub_u32 s82, s94, s92")
        self.e("v_mov_b32 v%d, s82" % (vtmp + 1))
        self.e("buffer_store_dword v%d, v%d, s[56:59], 0 offen offset:%d" % (vtmp + 1, vtmp, 40))
        self.e("v_mov_b32 v%d, s92" % (vtmp + 1))
        self.e("buffer_store_dword v%d, v%d, s[56:59], 0 offen offset:%d" % (vtmp + 1, vtmp, 44))
        self.e("v_mov_b32 v%d, s94" % (vtmp + 1))
        self.e("buffer_store_dword v%d, v%d, s[56:59], 0 offen offset:%d" % (vtmp + 1, vtmp, 48))
        self.e("s_mov_b64 exec, s[80:81]")
        self.label(lab)

    def wait_all(self):
        self.e("s_waitcnt vmcnt(0) lgkmcnt(0)")
        self.vm = []
        self.lg = []

    def wait_lg0(self):
        self.e("s_waitcnt lgkmcnt(0)")
        self.lg = []

    def wait_vm0(self):
        self.e("s_waitcnt vmcnt(0)")
        self.vm = []


def vr(b, n=1):
    return "v%d" % b if n == 1 else "v[%d:%d]" % (b, b + n - 1)


def ar(b, n=1):
    return "a%d" % b if n == 1 else "a[%d:%d]" % (b, b + n - 1)


def sr(b, n=1):
    return "s%d" % b if n == 1 else "s[%d:%d]" % (b, b + n - 1)


def build_srd(a, d, ptr, off, size):
    if off:
        a.e("s_add_u32 s%d, s%d, 0x%x" % (d, ptr, off))
        a.e("s_addc_u32 s%d, s%d, 0" % (d + 1, ptr + 1))
        a.e("s_and_b32 s%d, s%d, 0xffff" % (d + 1, d + 1))
    else:
        a.e("s_mov_b32 s%d, s%d" % (d, ptr))
        a.e("s_and_b32 s%d, s%d, 0xffff" % (d + 1, ptr + 1))
    a.e("s_mov_b32 s%d, 0x%x" % (d + 2, size))
    a.e("s_mov_b32 s%d, 0x00020000" % (d + 3))


def f32bits(x):
    import struct
    return struct.unpack("<I", struct.pack("<f", x))[0]


def sigma(nt, t, r):
    if nt == 5:
        return t
    if nt == 8:
        return t ^ r
    if nt == 6:
        return (t + (r >> 2)) % 6
    raise ValueError(nt)


def round_bf16(a, dst, src, tmp):
    a.e("v_cvt_pk_bf16_f32 %s, %s, %s" % (vr(tmp), vr(src), vr(src)))
    a.e("v_lshlrev_b32 %s, 16, %s" % (vr(dst), vr(tmp)))


def kernel_header(a, name):
    a.kslot = int(name[1])
    a.lines.append(".p2align 8")
    a.lines.append(".globl %s" % name)
    a.lines.append(".type %s,@function" % name)
    a.label(name)


def kernel_desc(name, nvgpr_arch, nagpr, nsgpr=96):
    acc = (nvgpr_arch + 3) // 4 * 4
    tot = acc + nagpr if nagpr else nvgpr_arch
    return """.amdhsa_kernel %s
  .amdhsa_next_free_vgpr %d
  .amdhsa_next_free_sgpr %d
  .amdhsa_accum_offset %d
  .amdhsa_group_segment_fixed_size 0
  .amdhsa_kernarg_size 88
  .amdhsa_user_sgpr_count 2
  .amdhsa_user_sgpr_kernarg_segment_ptr 1
  .amdhsa_system_sgpr_workgroup_id_x 1
.end_amdhsa_kernel
""" % (name, tot, nsgpr, acc)


def emit_prefetch(a, key, nbytes, nwg_per_xcd, s_srd, s_t0, s_w, v_lane, v_t, nwaves=4):
    if 'pf' not in ABL:
        return
    per_wg = (nbytes + nwg_per_xcd - 1) // nwg_per_xcd
    per_wave = (per_wg + nwaves - 1) // nwaves
    per_wave = (per_wave + 8191) // 8192 * 8192
    a.e("s_load_dwordx2 s[%d:%d], s[0:1], %d" % (s_srd, s_srd + 1, KA[key]))
    a.e("s_lshr_b32 s%d, s2, 3" % s_t0)
    a.e("s_mul_i32 s%d, s%d, %d" % (s_t0, s_t0, nwaves))
    a.e("s_add_u32 s%d, s%d, s%d" % (s_t0, s_t0, s_w))
    a.e("s_mul_i32 s%d, s%d, %d" % (s_t0, s_t0, per_wave))
    a.e("v_lshlrev_b32 v%d, 7, v%d" % (v_t, v_lane))
    a.e("v_add_u32 v%d, s%d, v%d" % (v_t, s_t0, v_t))
    a.e("s_waitcnt lgkmcnt(0)")
    a.lg = []
    a.e("s_and_b32 s%d, s%d, 0xffff" % (s_srd + 1, s_srd + 1))
    a.e("s_mov_b32 s%d, 0x%x" % (s_srd + 2, nbytes))
    a.e("s_mov_b32 s%d, 0x00020000" % (s_srd + 3))
    for i in range(per_wave // 8192):
        a.e("s_mov_b32 s%d, %d" % (s_t0, i * 8192))
        a.vmem("buffer_load_dword v%d, v%d, s[%d:%d], s%d offen" % (v_t + 1, v_t, s_srd, s_srd + 3, s_t0), 'PF')


def emit_b_src(a, nt, N, gpr, T, vG, dst, s_magic, s_n2):
    a.e("v_mul_lo_u32 v%d, v%d, s%d" % (T + 1, vG, s_magic))
    a.e("v_lshrrev_b32 v%d, 16, v%d" % (T + 1, T + 1))
    a.e("v_mul_u32_u24 v%d, %d, v%d" % (T + 2, gpr, T + 1))
    a.e("v_sub_u32 v%d, v%d, v%d" % (T + 2, vG, T + 2))
    a.e("v_lshrrev_b32 v%d, 1, v%d" % (T + 3, T + 2))
    a.e("v_and_b32 v%d, 1, v%d" % (T + 2, T + 2))
    a.e("v_and_b32 v%d, 7, v%d" % (T + 4, T + 1))
    if nt == 8:
        a.e("v_xor_b32 v%d, v%d, v%d" % (T + 3, T + 3, T + 4))
    elif nt == 6:
        a.e("v_lshrrev_b32 v%d, 2, v%d" % (T + 4, T + 4))
        a.e("v_sub_u32 v%d, v%d, v%d" % (T + 3, T + 3, T + 4))
        a.e("v_add_u32 v%d, 6, v%d" % (T + 4, T + 3))
        a.e("v_min_u32 v%d, v%d, v%d" % (T + 3, T + 3, T + 4))
    a.e("v_bfe_u32 v%d, v%d, 2, 2" % (T + 4, T + 1))
    a.e("v_bfe_u32 v%d, v%d, 4, 1" % (T + 5, T + 1))
    a.e("v_and_b32 v%d, 0x%x, v%d" % (T + 6, 0xffe3, T + 1))
    a.e("v_lshl_add_u32 v%d, v%d, 3, v%d" % (T + 6, T + 4, T + 6))
    a.e("v_lshl_add_u32 v%d, v%d, 2, v%d" % (T + 6, T + 5, T + 6))
    a.e("v_mul_lo_u32 v%d, v%d, s%d" % (T + 6, T + 6, s_n2))
    a.e("v_lshlrev_b32 v%d, 5, v%d" % (T + 3, T + 3))
    a.e("v_lshl_add_u32 v%d, v%d, 4, v%d" % (T + 3, T + 2, T + 3))
    a.e("v_add_u32 v%d, v%d, v%d" % (dst, T + 6, T + 3))


def emit_pack_path(a, first_wg, nwg):
    NW = 120
    NBAT = 16
    V_LANE, T, V_LS, V_L16, V_D = 1, 8, 16, 17, 20
    V_A = V_D + NBAT * 4
    S_WS, SRD_S, SRD_D = 4, 8, 12
    S_PW, S_U, S_CB, S_C, S_I, S_T0, S_T1, S_MG, S_N2 = 32, 33, 34, 35, 36, 37, 38, 39, 40
    L_done = a.newlabel("pkdone")
    a.e("s_load_dwordx2 s[%d:%d], s[0:1], %d" % (S_WS, S_WS + 1, KA['ws']))
    a.e("v_and_b32 v%d, 63, v0" % V_LANE)
    a.e("v_lshrrev_b32 v%d, 6, v0" % T)
    a.e("v_lshlrev_b32 v%d, 4, v%d" % (V_L16, V_LANE))
    a.e("v_readfirstlane_b32 s%d, v%d" % (S_PW, T))
    a.e("s_sub_u32 s%d, s2, %d" % (S_T0, first_wg))
    a.e("s_lshl_b32 s%d, s%d, 3" % (S_T0, S_T0))
    a.e("s_add_u32 s%d, s%d, s%d" % (S_PW, S_PW, S_T0))
    a.e("s_cmp_ge_u32 s%d, %d" % (S_PW, NW))
    a.e("s_cbranch_scc1 %s" % L_done)
    for key in ('wo', 'w1', 'w2', 'w3', 'w4'):
        K, N, Nt, kc = PACK[key]
        nt = Nt // 16
        gpr = Nt // 8
        U = K * N * 2 // 1024
        UC = K * Nt * 2 // 1024
        UB = kc * Nt * 2 // 1024
        NCH = K // kc
        assert NW % UB == 0 and UC % UB == 0
        magic = (65536 + gpr - 1) // gpr
        mUB = (1 << 32) // UB + 1
        mNC = (1 << 32) // NCH + 1
        nq = U // UB
        for u in range(U + NBAT * NW):
            assert (u * mUB) >> 32 == u // UB
        for q in range(nq + 200):
            assert (q * mNC) >> 32 == q // NCH
        a.e("s_load_dwordx2 s[%d:%d], s[0:1], %d" % (SRD_S, SRD_S + 1, KA[key]))
        a.e("s_mov_b32 s%d, %d" % (S_MG, magic))
        a.e("s_mov_b32 s%d, %d" % (S_N2, N * 2))
        a.e("s_mul_hi_u32 s%d, s%d, 0x%x" % (S_T0, S_PW, mUB))
        a.e("s_mul_i32 s%d, s%d, %d" % (S_T0, S_T0, UB))
        a.e("s_sub_u32 s%d, s%d, s%d" % (S_I, S_PW, S_T0))
        a.e("s_lshl_b32 s%d, s%d, 6" % (S_I, S_I))
        a.e("v_add_u32 v%d, s%d, v%d" % (T, S_I, V_LANE))
        emit_b_src(a, nt, N, gpr, T, T, V_LS, S_MG, S_N2)
        a.e("s_waitcnt lgkmcnt(0)")
        a.e("s_and_b32 s%d, s%d, 0xffff" % (SRD_S + 1, SRD_S + 1))
        a.e("s_mov_b32 s%d, 0x%x" % (SRD_S + 2, K * N * 2))
        a.e("s_mov_b32 s%d, 0x00020000" % (SRD_S + 3))
        build_srd(a, SRD_D, S_WS, WS_PW[key], K * N * 2)
        a.e("s_mov_b32 s%d, s%d" % (S_U, S_PW))
        nb = min(NBAT, (U + NW - 1) // NW)
        L = a.newlabel("pk")
        a.label(L)
        for b in range(nb):
            a.e("s_add_u32 s%d, s%d, %d" % (S_T1, S_U, b * NW))
            a.e("s_mul_hi_u32 s%d, s%d, 0x%x" % (S_C, S_T1, mUB))
            a.e("s_mul_hi_u32 s%d, s%d, 0x%x" % (S_CB, S_C, mNC))
            a.e("s_mul_i32 s%d, s%d, %d" % (S_T0, S_CB, NCH))
            a.e("s_sub_u32 s%d, s%d, s%d" % (S_C, S_C, S_T0))
            a.e("s_mul_i32 s%d, s%d, %d" % (S_C, S_C, kc * N * 2))
            a.e("s_mul_i32 s%d, s%d, %d" % (S_CB, S_CB, Nt * 2))
            a.e("s_add_u32 s%d, s%d, s%d" % (S_C, S_C, S_CB))
            a.e("s_lshl_b32 s%d, s%d, 10" % (S_T1, S_T1))
            a.e("v_add_u32 v%d, s%d, v%d" % (V_A + 2 * b, S_C, V_LS))
            a.e("v_add_u32 v%d, s%d, v%d" % (V_A + 2 * b + 1, S_T1, V_L16))
            a.e("buffer_load_dwordx4 %s, v%d, s[%d:%d], 0 offen" % (vr(V_D + b * 4, 4), V_A + 2 * b, SRD_S, SRD_S + 3))
        for b in range(nb):
            a.e("s_waitcnt vmcnt(%d)" % (nb - 1))
            a.e("buffer_store_dwordx4 %s, v%d, s[%d:%d], 0 offen" % (vr(V_D + b * 4, 4), V_A + 2 * b + 1, SRD_D, SRD_D + 3))
        a.e("s_add_u32 s%d, s%d, %d" % (S_U, S_U, nb * NW))
        a.e("s_cmp_lt_u32 s%d, %d" % (S_U, U))
        a.e("s_cbranch_scc1 %s" % L)
    a.label(L_done)
    a.e("s_endpgm")


def emit_pack_calc(a, s_w, v_lane, T, V_PD, V_PA, S0):
    S_PW, S_U, S_CB, S_C, S_I, S_T0, S_T1, S_MG, S_N2 = [S0 + i for i in range(9)]
    SRD_S = S0 + 12
    a.e("s_lshl_b32 s%d, s2, 2" % S_PW)
    a.e("s_add_u32 s%d, s%d, s%d" % (S_PW, S_PW, s_w))
    for idx, (key, wofs) in enumerate((('wo', 0), ('w1', 800), ('w2', 1240), ('w3', 0), ('w4', 0))):
        K, N, Nt, kc = PACK[key]
        nt = Nt // 16
        gpr = Nt // 8
        U = K * N * 2 // 1024
        UB = kc * Nt * 2 // 1024
        NCH = K // kc
        magic = (65536 + gpr - 1) // gpr
        mUB = (1 << 32) // UB + 1
        mNC = (1 << 32) // NCH + 1
        for u in range(2100):
            assert (u * mUB) >> 32 == u // UB
            assert (u * mNC) >> 32 == u // NCH
        a.e("s_mov_b32 s%d, %d" % (S_MG, magic))
        a.e("s_mov_b32 s%d, %d" % (S_N2, N * 2))
        a.e("s_sub_u32 s%d, s%d, %d" % (S_U, S_PW, wofs))
        a.e("s_cmp_lt_u32 s%d, %d" % (S_U, U))
        a.e("s_cselect_b32 s%d, s%d, 0x100000" % (S_U, S_U))
        a.e("s_mul_hi_u32 s%d, s%d, 0x%x" % (S_C, S_U, mUB))
        a.e("s_mul_i32 s%d, s%d, %d" % (S_T0, S_C, UB))
        a.e("s_sub_u32 s%d, s%d, s%d" % (S_I, S_U, S_T0))
        a.e("s_lshl_b32 s%d, s%d, 6" % (S_I, S_I))
        a.e("v_add_u32 v%d, s%d, v%d" % (T, S_I, v_lane))
        emit_b_src(a, nt, N, gpr, T, T, T + 7, S_MG, S_N2)
        a.e("s_mul_hi_u32 s%d, s%d, 0x%x" % (S_CB, S_C, mNC))
        a.e("s_mul_i32 s%d, s%d, %d" % (S_T0, S_CB, NCH))
        a.e("s_sub_u32 s%d, s%d, s%d" % (S_C, S_C, S_T0))
        a.e("s_mul_i32 s%d, s%d, %d" % (S_C, S_C, kc * N * 2))
        a.e("s_mul_i32 s%d, s%d, %d" % (S_CB, S_CB, Nt * 2))
        a.e("s_add_u32 s%d, s%d, s%d" % (S_C, S_C, S_CB))
        a.e("s_cmp_lt_u32 s%d, %d" % (S_U, U))
        a.e("s_cselect_b32 s%d, s%d, 0x7ff00000" % (S_C, S_C))
        a.e("v_add_u32 v%d, s%d, v%d" % (V_PD + idx * 4, S_C, T + 7))
        a.e("s_lshl_b32 s%d, s%d, 10" % (S_T1, S_U))
        a.e("s_add_u32 s%d, s%d, 0x%x" % (S_T1, S_T1, WS_PW[key] - WS_PW['wo']))
        a.e("v_lshl_add_u32 v%d, v%d, 4, s%d" % (V_PA + idx, v_lane, S_T1))


def emit_pack_issue(a, V_PD, S0):
    SRD_S = S0 + 12
    for idx, key in enumerate(('wo', 'w1', 'w2', 'w3', 'w4')):
        K, N, Nt, kc = PACK[key]
        sp = {'wo': 24, 'w1': 84, 'w2': 86, 'w3': 88, 'w4': 90}[key]
        a.e("s_mov_b32 s%d, s%d" % (SRD_S, sp))
        a.e("s_and_b32 s%d, s%d, 0xffff" % (SRD_S + 1, sp + 1))
        a.e("s_mov_b32 s%d, 0x%x" % (SRD_S + 2, K * N * 2))
        a.e("s_mov_b32 s%d, 0x00020000" % (SRD_S + 3))
        a.vmem("buffer_load_dwordx4 %s, v%d, s[%d:%d], 0 offen" % (vr(V_PD + idx * 4, 4), V_PD + idx * 4, SRD_S, SRD_S + 3), 'PK')


def emit_pack_stores(a, s_ws, V_PD, V_PA, S0):
    SRD_D = S0 + 12
    build_srd(a, SRD_D, s_ws, WS_PW['wo'], WS_END - WS_PW['wo'])
    a.wait_vm(['PK'])
    for idx in range(5):
        a.vmem("buffer_store_dwordx4 %s, v%d, s[%d:%d], 0 offen" % (vr(V_PD + idx * 4, 4), V_PA + idx, SRD_D, SRD_D + 3), 'PS')


GELU_C1 = -2.0 * 0.7978845608028654 * 1.4426950408889634
GELU_C2 = GELU_C1 * 0.044715


def gelu_inplace(a, x, t1, t2, s_c1, s_c2):
    a.e("v_mul_f32 %s, %s, %s" % (vr(t1), vr(x), vr(x)))
    a.e("v_mov_b32 %s, %s" % (vr(t2), sr(s_c1)))
    a.e("v_fma_f32 %s, %s, %s, %s" % (vr(t1), vr(t1), sr(s_c2), vr(t2)))
    a.e("v_mul_f32 %s, %s, %s" % (vr(t1), vr(t1), vr(x)))
    a.e("v_exp_f32 %s, %s" % (vr(t1), vr(t1)))
    a.e("s_nop 0")
    a.e("v_add_f32 %s, 1.0, %s" % (vr(t1), vr(t1)))
    a.e("v_rcp_f32 %s, %s" % (vr(t1), vr(t1)))
    a.e("s_nop 0")
    a.e("v_mul_f32 %s, %s, %s" % (vr(x), vr(x), vr(t1)))


def gen_gemm(name, K, N, Mt, Nt, a_src, w_key, ln, epi, kc, shift=False, nbuf=None, LA=None, pf=None, packwg=0, early=False):
    a = Asm()
    packed = w_key in PACK
    if packed:
        assert PACK[w_key] == (K, N, Nt, kc)
    mt = Mt // 64
    nt = Nt // 16
    WR = Mt // 4
    P = Nt * 2
    PA = kc * 2
    ABYTES = Mt * PA
    BBYTES = kc * P
    BREG = (BBYTES + 4095) // 4096 * 4096
    CH = ABYTES + BREG
    nch = K // kc
    kpc = kc // 32
    RB = S // Mt
    CB = N // Nt
    ntiles = RB * CB
    if nbuf is None:
        nbuf = min(nch, (156 * 1024) // CH)
    if LA is None:
        LA = nbuf - 1 if nbuf < nch else nbuf
        if early and nbuf < nch and 'safe' in ABL:
            LA = nbuf - 2
    MISC = nbuf * CH
    CSL = MISC
    ABL_ = MISC + 1024
    lds_bytes = MISC + 1024 + Mt * 8
    pitchA = K * 2
    nA = ABYTES // 4096
    nB = BREG // 4096
    assert ABYTES % 4096 == 0 and (BBYTES % 4096 == 0 or packed)
    lpr = kc // 8
    rpi = 64 // lpr
    gpr = Nt // 8
    ROT = 1 if nt == 5 else 2
    NCS = 2
    nS = nA

    V_LANE, V_L15, V_G = 1, 2, 3
    nxt = 4
    nset = (MISC + 65535) // 65536
    V_B = nxt; nxt += nt * nset
    V_AR = nxt; nxt += kpc * nset
    V_T = nxt; nxt += 12
    nxt = (nxt + 3) // 4 * 4
    V_ONES = nxt; nxt += 4
    NF = int(os.environ.get('NF', '6'))
    V_BF = nxt; nxt += NF * 4
    V_AF = nxt; nxt += 2 * mt * 4
    V_CS = nxt; nxt += nt * 4
    V_E = nxt; nxt += 24
    V_AL = nxt; nxt += 4 * mt
    V_BE = nxt; nxt += 4 * mt
    V_ADMA = V_B
    V_BDMA = V_B + nA
    V_SA = V_BDMA + nB
    assert nA + nB + 1 <= nt * nset + kpc * nset
    V_SD = V_BF
    V_SS = V_CS
    assert nS * 4 <= NF * 4 + 2 * mt * 4 and 2 * nS <= nt * 4
    EG = Mt * gpr
    nE = (EG + 511) // 512
    if epi == 'qkv':
        nE = 0
    V_EO = nxt; nxt += nE
    V_EL = nxt; nxt += nE
    nxt = (nxt + 3) // 4 * 4
    V_R1 = nxt; nxt += 4 * nE if epi in ('res', 'x1', 'out') else 0
    V_R2 = nxt; nxt += 4 * nE if epi in ('out',) else 0
    V_RS = nxt; nxt += 2 * nE if epi == 'x1' else 0
    nv = nxt
    A_ACC = 0
    A_CS = mt * nt * 4
    A_SM = A_CS + NCS * 4
    A_GR = A_SM + mt * 4
    nagpr = A_GR + mt * 4 if ln else A_CS
    assert (nv + 3) // 4 * 4 + nagpr <= 256, (name, nv, nagpr)

    S_WS, S_P = 4, 6
    SRD_A, SRD_W, SRD_O, SRD_R1, SRD_R2, SRD_ST = 8, 12, 16, 20, 24, 28
    S_W, S_RB, S_CB, S_ROW0, S_COL0, S_T0, S_T1, S_LA, S_LB, S_KA, S_KB = 32, 33, 34, 35, 36, 37, 38, 39, 40, 41, 42
    S_W8 = 43
    S_EX = 44
    S_SEC = 46
    S_C2 = 47
    S_TT = 48
    S_WR0 = 56 if 'stamp' not in ABL else 84

    kernel_header(a, name)
    L_end = name + "_end"
    a.e("s_cmp_ge_u32 s2, %d" % (ntiles + packwg))
    a.e("s_cbranch_scc1 %s" % L_end)
    if packwg:
        a.e("s_cmp_ge_u32 s2, %d" % ntiles)
        a.e("s_cbranch_scc1 %s_pack" % name)
    a.stamp(0)
    a.e("s_load_dwordx2 s[%d:%d], s[0:1], %d" % (S_WS, S_WS + 1, KA['ws']))
    if not packed:
        a.e("s_load_dwordx2 s[%d:%d], s[0:1], %d" % (SRD_W, SRD_W + 1, KA[w_key]))
    if a_src[0] == 'in':
        a.e("s_load_dwordx2 s[%d:%d], s[0:1], %d" % (SRD_A, SRD_A + 1, KA[a_src[1]]))
    if epi == 'res':
        a.e("s_load_dwordx2 s[%d:%d], s[0:1], %d" % (SRD_R1, SRD_R1 + 1, KA['x']))
    if epi == 'out':
        a.e("s_load_dwordx2 s[%d:%d], s[0:1], %d" % (SRD_O, SRD_O + 1, KA['out']))
    a.e("s_and_b32 s%d, s2, 7" % S_T0)
    a.e("s_lshr_b32 s%d, s2, 3" % S_T1)
    rbx = RB // 8
    if CB in (8, 16):
        sh = 3 if CB == 8 else 4
        a.e("s_lshr_b32 s%d, s%d, %d" % (S_RB, S_T1, sh))
        a.e("s_and_b32 s%d, s%d, %d" % (S_CB, S_T1, CB - 1))
    else:
        assert rbx == 2
        a.e("s_cmp_ge_u32 s%d, %d" % (S_T1, CB))
        a.e("s_cselect_b32 s%d, 1, 0" % S_RB)
        a.e("s_mul_i32 s%d, s%d, %d" % (S_CB, S_RB, CB))
        a.e("s_sub_u32 s%d, s%d, s%d" % (S_CB, S_T1, S_CB))
    a.e("s_mul_i32 s%d, s%d, %d" % (S_T0, S_T0, rbx))
    a.e("s_add_u32 s%d, s%d, s%d" % (S_RB, S_RB, S_T0))
    a.e("s_mul_i32 s%d, s%d, %d" % (S_ROW0, S_RB, Mt))
    a.e("s_mul_i32 s%d, s%d, %d" % (S_COL0, S_CB, Nt))
    a.e("v_and_b32 v%d, 63, v0" % V_LANE)
    a.e("v_lshrrev_b32 v%d, 6, v0" % V_T)
    a.e("v_and_b32 v%d, 15, v0" % V_L15)
    a.e("v_bfe_u32 v%d, v0, 4, 2" % V_G)
    a.e("v_readfirstlane_b32 s%d, v%d" % (S_W8, V_T))
    T = V_T
    lsh = {16: 4, 8: 3, 4: 2}[lpr]
    magic = (65536 + gpr - 1) // gpr
    for G in range(max(kc * gpr, nE * 512)):
        assert (G * magic) >> 16 == G // gpr
    PT = P + 16
    opitch = N * 2
    L_cons = name + "_cons"
    L_p2 = name + "_phase2"
    a.e("s_and_b32 s%d, s%d, 3" % (S_W, S_W8))
    a.e("s_mul_i32 s%d, s%d, %d" % (S_WR0, S_W, WR))
    a.e("s_cmp_lt_u32 s%d, 4" % S_W8)
    a.e("s_cbranch_scc1 %s" % L_cons)

    def out_srds():
        if epi == 'qkv':
            build_srd(a, SRD_O, S_WS, WS_Q, WS_O - WS_Q)
        elif epi == 'res':
            build_srd(a, SRD_O, S_WS, WS_H, S * D * 2)
            a.e("s_and_b32 s%d, s%d, 0xffff" % (SRD_R1 + 1, SRD_R1 + 1))
            a.e("s_mov_b32 s%d, 0x%x" % (SRD_R1 + 2, S * D * 2))
            a.e("s_mov_b32 s%d, 0x00020000" % (SRD_R1 + 3))
        elif epi == 'gelu':
            build_srd(a, SRD_O, S_WS, WS_HG if N == D else WS_G, S * N * 2)
            if ln == 2:
                build_srd(a, SRD_ST, S_WS, WS_ST, S * 8)
        elif epi == 'x1':
            build_srd(a, SRD_O, S_WS, WS_X1, S * D * 2)
            build_srd(a, SRD_R1, S_WS, WS_H, S * D * 2)
            build_srd(a, SRD_ST, S_WS, WS_ST, S * 8)
        elif epi == 'out':
            a.e("s_and_b32 s%d, s%d, 0xffff" % (SRD_O + 1, SRD_O + 1))
            a.e("s_mov_b32 s%d, 0x%x" % (SRD_O + 2, S * D * 2))
            a.e("s_mov_b32 s%d, 0x00020000" % (SRD_O + 3))
            build_srd(a, SRD_R1, S_WS, WS_X1, S * D * 2)
            build_srd(a, SRD_R2, S_WS, WS_H, S * D * 2)

    def e_setup():
        a.e("s_mov_b32 s%d, %d" % (S_T1, magic))
        a.e("s_mul_i32 s%d, s%d, %d" % (S_T0, S_W8, nE * 64))
        for e_ in range(nE):
            a.e("v_add_u32 v%d, s%d, v%d" % (T, S_T0, V_LANE))
            if e_:
                a.e("v_add_u32 v%d, %d, v%d" % (T, e_ * 64, T))
            a.e("v_mul_lo_u32 v%d, v%d, s%d" % (T + 1, T, S_T1))
            a.e("v_lshrrev_b32 v%d, 16, v%d" % (T + 1, T + 1))
            a.e("v_mul_u32_u24 v%d, %d, v%d" % (T + 2, gpr, T + 1))
            a.e("v_sub_u32 v%d, v%d, v%d" % (T + 2, T, T + 2))
            a.e("v_mul_u32_u24 v%d, %d, v%d" % (T + 3, PT, T + 1))
            a.e("v_lshl_add_u32 v%d, v%d, 4, v%d" % (V_EL + e_, T + 2, T + 3))
            a.e("v_add_u32 v%d, s%d, v%d" % (T + 3, S_ROW0, T + 1))
            if epi == 'x1':
                a.e("v_lshlrev_b32 v%d, 3, v%d" % (V_RS + 2 * e_, T + 3))
            a.e("v_mul_u32_u24 v%d, %d, v%d" % (T + 3, opitch, T + 3))
            a.e("v_lshl_add_u32 v%d, v%d, 4, v%d" % (T + 3, T + 2, T + 3))
            a.e("v_lshl_add_u32 v%d, s%d, 1, v%d" % (V_EO + e_, S_COL0, T + 3))
            if nE * 512 > EG:
                a.e("v_cmp_le_u32 vcc, %d, v%d" % (EG, T))
                a.e("v_mov_b32 v%d, 0x7fffff00" % (T + 4))
                a.e("v_mov_b32 v%d, 0" % (T + 5))
                a.e("v_cndmask_b32 v%d, v%d, v%d, vcc" % (V_EO + e_, V_EO + e_, T + 4))
                if epi == 'x1':
                    a.e("v_cndmask_b32 v%d, v%d, v%d, vcc" % (V_RS + 2 * e_, V_RS + 2 * e_, T + 4))
                a.e("v_cndmask_b32 v%d, v%d, v%d, vcc" % (V_EL + e_, V_EL + e_, T + 5))

    def res_loads():
        if epi in ('res', 'x1', 'out'):
            for e_ in range(nE):
                a.vmem("buffer_load_dwordx4 %s, v%d, s[%d:%d], 0 offen" % (
                    vr(V_R1 + e_ * 4, 4), V_EO + e_, SRD_R1, SRD_R1 + 3), 'R')
        if epi == 'out':
            for e_ in range(nE):
                a.vmem("buffer_load_dwordx4 %s, v%d, s[%d:%d], 0 offen" % (
                    vr(V_R2 + e_ * 4, 4), V_EO + e_, SRD_R2, SRD_R2 + 3), 'R')
        if epi == 'x1':
            for e_ in range(nE):
                a.vmem("buffer_load_dwordx2 %s, v%d, s[%d:%d], 0 offen" % (
                    vr(V_RS + e_ * 2, 2), V_RS + e_ * 2, SRD_ST, SRD_ST + 3), 'R')

    a.e("v_lshrrev_b32 v%d, %d, v%d" % (T, lsh, V_LANE))
    a.e("v_and_b32 v%d, %d, v%d" % (T + 1, lpr - 1, V_LANE))
    a.e("v_add_u32 v%d, s%d, v%d" % (T, S_WR0, T))
    assert nA * rpi == WR
    a.e("s_mov_b32 s%d, %d" % (S_T1, pitchA))
    for i in range(nA):
        a.e("v_add_u32 v%d, %d, v%d" % (T + 2, i * rpi, T))
        if lpr == 16:
            a.e("v_and_b32 v%d, 15, v%d" % (T + 3, T + 2))
        elif lpr == 8:
            a.e("v_bfe_u32 v%d, v%d, 1, 3" % (T + 3, T + 2))
        else:
            a.e("v_bfe_u32 v%d, v%d, 3, 1" % (T + 3, T + 2))
            a.e("v_lshlrev_b32 v%d, 1, v%d" % (T + 3, T + 3))
        a.e("v_xor_b32 v%d, v%d, v%d" % (T + 3, T + 3, T + 1))
        a.e("v_add_u32 v%d, s%d, v%d" % (T + 2, S_ROW0, T + 2))
        a.e("v_mul_lo_u32 v%d, v%d, s%d" % (T + 2, T + 2, S_T1))
        a.e("v_lshl_add_u32 v%d, v%d, 4, v%d" % (V_ADMA + i, T + 3, T + 2))
    if packed:
        a.e("s_mul_i32 s%d, s%d, %d" % (S_T0, S_CB, K * Nt * 2))
        a.e("s_mul_i32 s%d, s%d, %d" % (S_T1, S_W, nB * 1024))
        a.e("s_add_u32 s%d, s%d, s%d" % (S_T0, S_T0, S_T1))
        a.e("v_lshl_add_u32 v%d, v%d, 4, s%d" % (V_BDMA, V_LANE, S_T0))
    else:
        a.e("s_mov_b32 s%d, %d" % (S_T1, magic))
        a.e("s_mul_i32 s%d, s%d, %d" % (S_T0, S_W, nB * 64))
        a.e("v_add_u32 v%d, s%d, v%d" % (T + 7, S_T0, V_LANE))
        a.e("s_lshl_b32 s%d, s%d, 1" % (S_T0, S_COL0))
        a.e("s_mov_b32 s%d, %d" % (S_KB, N * 2))
        for i in range(nB):
            a.e("v_add_u32 v%d, %d, v%d" % (T, i * 64, T + 7))
            emit_b_src(a, nt, N, gpr, T, T, V_BDMA + i, S_T1, S_KB)
            a.e("v_add_u32 v%d, s%d, v%d" % (V_BDMA + i, S_T0, V_BDMA + i))
    a.e("s_waitcnt lgkmcnt(0)")
    if packed:
        build_srd(a, SRD_W, S_WS, WS_PW[w_key], K * N * 2)
    else:
        a.e("s_and_b32 s%d, s%d, 0xffff" % (SRD_W + 1, SRD_W + 1))
        a.e("s_mov_b32 s%d, 0x%x" % (SRD_W + 2, K * N * 2))
        a.e("s_mov_b32 s%d, 0x00020000" % (SRD_W + 3))
    if a_src[0] == 'in':
        a.e("s_and_b32 s%d, s%d, 0xffff" % (SRD_A + 1, SRD_A + 1))
        a.e("s_mov_b32 s%d, 0x%x" % (SRD_A + 2, S * K * 2))
        a.e("s_mov_b32 s%d, 0x00020000" % (SRD_A + 3))
    else:
        build_srd(a, SRD_A, S_WS, a_src[1], S * K * 2)
    a.e("s_mul_i32 s%d, s%d, %d" % (S_LA, S_W, nA * 1024))
    a.e("s_mul_i32 s%d, s%d, %d" % (S_LB, S_W, nB * 1024))
    a.e("s_mov_b32 s%d, 0x7ff00000" % S_SEC)

    def dma_a(c):
        buf = c % nbuf
        a.e("s_mov_b32 s%d, 0x%x" % (S_KA, c * kc * 2))
        for i in range(nA):
            src = V_ADMA + i
            if shift:
                k0 = c * kc
                g0 = k0 // 160
                g1 = (k0 + kc - 1) // 160
                sh = [-1, 1, -2, 2]
                if g0 == g1:
                    a.e("v_add_u32 v%d, 0x%x, v%d" % (T + 4, (sh[g0] * pitchA) & 0xffffffff, src))
                else:
                    thr = (g1 * 160 - k0) // 8
                    a.e("v_bfe_u32 v%d, v%d, 4, %d" % (T + 5, src, lsh))
                    a.e("v_cmp_gt_u32 vcc, %d, v%d" % (thr, T + 5))
                    a.e("v_add_u32 v%d, 0x%x, v%d" % (T + 4, (sh[g0] * pitchA) & 0xffffffff, src))
                    a.e("v_add_u32 v%d, 0x%x, v%d" % (T + 5, (sh[g1] * pitchA) & 0xffffffff, src))
                    a.e("v_cndmask_b32 v%d, v%d, v%d, vcc" % (T + 4, T + 5, T + 4))
                src = T + 4
            a.e("s_add_u32 m0, s%d, 0x%x" % (S_LA, buf * CH + i * 1024))
            a.e("s_nop 0")
            a.vmem("buffer_load_dwordx4 v%d, s[%d:%d], s%d offen lds" % (src, SRD_A, SRD_A + 3, S_KA), ('A', c))

    def dma_b(c):
        buf = c % nbuf
        if not packed:
            a.e("s_mov_b32 s%d, 0x%x" % (S_KB, c * kc * N * 2))
        for i in range(nB):
            a.e("s_add_u32 m0, s%d, 0x%x" % (S_LB, buf * CH + ABYTES + i * 1024))
            if packed:
                if BBYTES != BREG:
                    a.e("s_cmp_lt_u32 s%d, %d" % (S_LB, BBYTES - i * 1024))
                    a.e("s_cselect_b32 s%d, 0x%x, s%d" % (S_KB, c * BBYTES + i * 1024, S_SEC))
                else:
                    a.e("s_mov_b32 s%d, 0x%x" % (S_KB, c * BBYTES + i * 1024))
            else:
                a.e("s_nop 0")
            a.vmem("buffer_load_dwordx4 v%d, s[%d:%d], s%d offen lds" % (V_BDMA + (0 if packed else i), SRD_W, SRD_W + 3, S_KB), ('B', c))

    for c in range(0, LA):
        dma_a(c)
        dma_b(c)
    out_srds()
    e_setup()
    for c in range(nch):
        a.wait_vm([('A', c), ('B', c)])
        a.e("s_barrier")
        nc = c + LA
        if nc < nch:
            assert nc - nbuf < c
            dma_a(nc)
            dma_b(nc)
        if c == max(0, nch - 2):
            res_loads()
    a.e("s_barrier")
    a.e("s_branch %s" % L_p2)
    prod_vm = list(a.vm)

    a.vm = []
    a.lg = []
    a.label(L_cons)
    a.e("s_waitcnt lgkmcnt(0)")
    out_srds()
    for j in range(nt):
        if ln:
            a.e("s_mul_i32 s%d, s%d, %d" % (S_TT + j, S_W, ROT))
            a.e("s_add_u32 s%d, s%d, %d" % (S_TT + j, S_TT + j, j))
            a.e("s_cmp_ge_u32 s%d, %d" % (S_TT + j, nt))
            a.e("s_cselect_b32 s%d, %d, 0" % (S_T0, nt))
            a.e("s_sub_u32 s%d, s%d, s%d" % (S_TT + j, S_TT + j, S_T0))
        else:
            a.e("s_mov_b32 s%d, %d" % (S_TT + j, j))
    a.e("v_lshrrev_b32 v%d, 2, v%d" % (T, V_L15))
    a.e("v_lshl_add_u32 v%d, v%d, 2, v%d" % (T + 1, V_G, T))
    a.e("v_mul_u32_u24 v%d, %d, v%d" % (T + 2, P, T + 1))
    a.e("v_and_b32 v%d, 3, v%d" % (T + 3, V_L15))
    a.e("v_lshl_add_u32 v%d, v%d, 3, v%d" % (T + 2, T + 3, T + 2))
    a.e("v_add_u32 v%d, %d, v%d" % (T + 2, ABYTES, T + 2))
    a.e("v_and_b32 v%d, 7, v%d" % (T + 1, T + 1))
    for j in range(nt):
        if nt == 5:
            a.e("s_lshl_b32 s%d, s%d, 5" % (S_T0, S_TT + j))
            a.e("v_add_u32 v%d, s%d, v%d" % (V_B + j, S_T0, T + 2))
        elif nt == 8:
            a.e("v_xor_b32 v%d, s%d, v%d" % (T + 3, S_TT + j, T + 1))
            a.e("v_lshl_add_u32 v%d, v%d, 5, v%d" % (V_B + j, T + 3, T + 2))
        else:
            a.e("v_lshrrev_b32 v%d, 2, v%d" % (T + 3, T + 1))
            a.e("v_add_u32 v%d, s%d, v%d" % (T + 3, S_TT + j, T + 3))
            a.e("v_subrev_u32 v%d, 6, v%d" % (T + 4, T + 3))
            a.e("v_min_u32 v%d, v%d, v%d" % (T + 3, T + 3, T + 4))
            a.e("v_lshl_add_u32 v%d, v%d, 5, v%d" % (V_B + j, T + 3, T + 2))
    a.e("v_add_u32 v%d, s%d, v%d" % (T, S_WR0, V_L15))
    a.e("v_mul_u32_u24 v%d, %d, v%d" % (T, PA, T))
    if lpr == 16:
        a.e("v_xor_b32 v%d, v%d, v%d" % (T + 1, V_L15, V_G))
    elif lpr == 8:
        a.e("v_lshrrev_b32 v%d, 1, v%d" % (T + 1, V_L15))
        a.e("v_xor_b32 v%d, v%d, v%d" % (T + 1, T + 1, V_G))
    else:
        a.e("v_bfe_u32 v%d, v%d, 3, 1" % (T + 1, V_L15))
        a.e("v_lshlrev_b32 v%d, 1, v%d" % (T + 1, T + 1))
        a.e("v_xor_b32 v%d, v%d, v%d" % (T + 1, T + 1, V_G))
    for ks in range(kpc):
        a.e("v_xor_b32 v%d, %d, v%d" % (T + 2, ks * 4, T + 1))
        a.e("v_lshl_add_u32 v%d, v%d, 4, v%d" % (V_AR + ks, T + 2, T))
    for s_ in range(1, nset):
        for j in range(nt):
            a.e("v_add_u32 v%d, 0x%x, v%d" % (V_B + s_ * nt + j, s_ * 65536, V_B + j))
        for ks in range(kpc):
            a.e("v_add_u32 v%d, 0x%x, v%d" % (V_AR + s_ * kpc + ks, s_ * 65536, V_AR + ks))
    for i in range(4):
        a.e("v_mov_b32 v%d, 0x3f803f80" % (V_ONES + i))
    for i in range(nagpr):
        a.e("v_accvgpr_write_b32 a%d, 0" % i)
    e_setup()

    def main_loop(swapped):
        frs = [(c, ks, t) for c in range(nch) for ks in range(kpc) for t in range(nt)]
        if 'nocomp' in ABL:
            frs = []
            for c in range(nch):
                a.e("s_barrier")
        PD = NF - 1
        fpc = kpc * nt

        def chunk_begin(c):
            if c == 0:
                a.stamp(1)
            a.e("s_barrier")
            if c < 5:
                a.stamp(2 + c)
            if c == max(0, nch - 2):
                res_loads()

        def rd(idx):
            c, ks, t = frs[idx]
            buf = c % nbuf
            gk = c * kpc + ks
            if t == 0:
                for mi in range(mt):
                    off = buf * CH + mi * 16 * PA
                    st = off // 65536
                    a.lds("ds_read_b128 %s, v%d offset:%d" % (
                        vr(V_AF + ((gk & 1) * mt + mi) * 4, 4), V_AR + st * kpc + ks, off % 65536), ('F', idx))
            reg = V_BF + (idx % NF) * 4
            for r_ in range(2):
                off = buf * CH + (ks * 32 + r_ * 16) * P
                st = off // 65536
                a.lds("ds_read_b64_tr_b16 %s, v%d offset:%d" % (vr(reg + r_ * 2, 2), V_B + st * nt + t, off % 65536),
                      ('F', idx))
        issued = 0

        def issue_upto(lim):
            nonlocal issued
            while issued < min(lim, len(frs)):
                c, ks, t = frs[issued]
                if ks == 0 and t == 0:
                    chunk_begin(c)
                rd(issued)
                issued += 1
        for idx, (c, ks, t) in enumerate(frs):
            if early:
                issue_upto(idx + PD + 1)
            else:
                issue_upto(min(idx + PD + 1, (c + 1) * fpc))
            if 'nowait' in ABL:
                a.lg = [x for x in a.lg if x != ('F', idx)]
            else:
                a.wait_lg([('F', idx)])
            reg = V_BF + (idx % NF) * 4
            gk = c * kpc + ks
            for mi in range(mt):
                av = vr(V_AF + ((gk & 1) * mt + mi) * 4, 4)
                acc = ar(A_ACC + (mi * nt + t) * 4, 4)
                if swapped:
                    a.e("v_mfma_f32_16x16x32_bf16 %s, %s, %s, %s" % (acc, vr(reg, 4), av, acc))
                else:
                    a.e("v_mfma_f32_16x16x32_bf16 %s, %s, %s, %s" % (acc, av, vr(reg, 4), acc))
            if ln and t == 2:
                for mi in range(mt):
                    av = vr(V_AF + ((gk & 1) * mt + mi) * 4, 4)
                    a.e("v_mfma_f32_16x16x32_bf16 %s, %s, %s, %s" % (ar(A_SM + mi * 4, 4), vr(V_ONES, 4), av, ar(A_SM + mi * 4, 4)))
            if ln and t == 3:
                for mi in range(mt):
                    av = vr(V_AF + ((gk & 1) * mt + mi) * 4, 4)
                    a.e("v_mfma_f32_16x16x32_bf16 %s, %s, %s, %s" % (ar(A_GR + mi * 4, 4), av, av, ar(A_GR + mi * 4, 4)))
            if ln and t < NCS and 'nocs' not in ABL:
                acc = ar(A_CS + t * 4, 4)
                if swapped:
                    a.e("v_mfma_f32_16x16x32_bf16 %s, %s, %s, %s" % (acc, vr(reg, 4), vr(V_ONES, 4), acc))
                else:
                    a.e("v_mfma_f32_16x16x32_bf16 %s, %s, %s, %s" % (acc, vr(V_ONES, 4), vr(reg, 4), acc))

    def stats_fin():
        T = V_T
        a.e("s_mov_b32 s%d, 0x%x" % (S_T0, f32bits(1.0 / K)))
        a.e("s_mov_b32 s%d, 0x%x" % (S_T1, f32bits(1e-5)))
        a.e("v_and_b32 v%d, 3, v%d" % (T + 9, V_L15))
        a.e("v_lshrrev_b32 v%d, 2, v%d" % (T + 8, V_L15))
        a.e("v_cmp_eq_u32 s[%d:%d], v%d, v%d" % (S_EX, S_EX + 1, T + 8, V_G))
        a.e("v_add_u32 v%d, s%d, v%d" % (T + 10, S_WR0, V_L15))
        a.e("v_lshlrev_b32 v%d, 2, v%d" % (T + 11, T + 10))
        a.e("v_add_u32 v%d, 0x%x, v%d" % (T + 11, ABL_, T + 11))
        for mi in range(mt):
            sm, sq = V_BF, V_BF + 1
            mb, r1 = V_BF + 2, V_BF + 3
            a.e("v_accvgpr_read_b32 v%d, a%d" % (sm, A_SM + mi * 4))
            a.e("v_accvgpr_read_b32 v%d, a%d" % (sq, A_GR + mi * 4))
            for r_ in range(1, 4):
                a.e("v_accvgpr_read_b32 v%d, a%d" % (T + 6, A_GR + mi * 4 + r_))
                a.e("v_cmp_eq_u32 vcc, %d, v%d" % (r_, T + 9))
                a.e("s_nop 1")
                a.e("v_cndmask_b32 v%d, v%d, v%d, vcc" % (sq, sq, T + 6))
            a.e("v_mul_f32 v%d, s%d, v%d" % (sm, S_T0, sm))
            a.e("v_mul_f32 v%d, s%d, v%d" % (sq, S_T0, sq))
            a.e("v_fma_f32 v%d, -v%d, v%d, v%d" % (sq, sm, sm, sq))
            a.e("v_max_f32 v%d, 0, v%d" % (sq, sq))
            round_bf16(a, mb, sm, T)
            round_bf16(a, T + 1, sq, T)
            a.e("v_add_f32 v%d, s%d, v%d" % (T + 1, S_T1, T + 1))
            round_bf16(a, T + 1, T + 1, T)
            a.e("v_sqrt_f32 v%d, v%d" % (T + 1, T + 1))
            a.e("s_nop 0")
            round_bf16(a, T + 1, T + 1, T)
            a.e("v_rcp_f32 v%d, v%d" % (r1, T + 1))
            a.e("s_nop 0")
            al, be = T + 4, T + 5
            if ln == 1:
                a.e("v_mov_b32 v%d, v%d" % (al, r1))
                a.e("v_mul_f32 v%d, v%d, v%d" % (be, mb, r1))
            else:
                a.e("v_sub_f32 v%d, v%d, v%d" % (T + 2, sm, mb))
                a.e("v_mul_f32 v%d, v%d, v%d" % (T + 2, T + 2, r1))
                round_bf16(a, T + 2, T + 2, T)
                a.e("v_mul_f32 v%d, v%d, v%d" % (T + 3, sq, r1))
                a.e("v_mul_f32 v%d, v%d, v%d" % (T + 3, T + 3, r1))
                round_bf16(a, T + 3, T + 3, T)
                a.e("v_add_f32 v%d, s%d, v%d" % (T + 3, S_T1, T + 3))
                round_bf16(a, T + 3, T + 3, T)
                a.e("v_sqrt_f32 v%d, v%d" % (T + 3, T + 3))
                a.e("s_nop 0")
                round_bf16(a, T + 3, T + 3, T)
                a.e("v_rcp_f32 v%d, v%d" % (T + 3, T + 3))
                a.e("s_nop 0")
                a.e("v_mul_f32 v%d, v%d, v%d" % (al, r1, T + 3))
                a.e("v_mul_f32 v%d, v%d, v%d" % (T + 2, T + 2, T + 3))
                a.e("v_fma_f32 v%d, v%d, v%d, v%d" % (be, mb, al, T + 2))
            a.e("s_mov_b64 s[90:91], exec")
            a.e("s_mov_b64 exec, s[%d:%d]" % (S_EX, S_EX + 1))
            a.e("ds_write_b32 v%d, v%d offset:%d" % (T + 11, al, mi * 64))
            a.e("ds_write_b32 v%d, v%d offset:%d" % (T + 11, be, mi * 64 + Mt * 4))
            if ln == 2:
                lab = a.newlabel("st")
                a.e("s_cmp_eq_u32 s%d, 0" % S_CB)
                a.e("s_cbranch_scc0 %s" % lab)
                a.e("v_add_u32 v%d, s%d, v%d" % (T + 6, S_ROW0, T + 10))
                a.e("v_lshlrev_b32 v%d, 3, v%d" % (T + 6, T + 6))
                a.e("buffer_store_dwordx2 %s, v%d, s[%d:%d], 0 offen offset:%d" % (vr(mb, 2), T + 6, SRD_ST, SRD_ST + 3, mi * 128))
                a.label(lab)
            a.e("s_mov_b64 exec, s[90:91]")

    def post_loop(swapped):
        a.stamp(7)
        a.e("s_nop 7")
        a.e("s_nop 1")
        T = V_E
        if ln:
            if swapped:
                a.e("v_lshlrev_b32 v%d, 4, v%d" % (T, V_G))
                a.e("v_cmp_eq_u32 vcc, 0, v%d" % V_L15)
            else:
                a.e("v_lshlrev_b32 v%d, 2, v%d" % (T, V_L15))
                a.e("v_cmp_eq_u32 vcc, 0, v%d" % V_G)
            a.e("v_add_u32 v%d, 0x%x, v%d" % (T, CSL, T))
            for j in range(nt):
                a.e("s_lshl_b32 s%d, s%d, 6" % (S_T0, S_TT + j))
                a.e("v_add_u32 v%d, s%d, v%d" % (V_CS + j * 4 + 3, S_T0, T))
            a.e("s_and_saveexec_b64 s[%d:%d], vcc" % (S_EX, S_EX + 1))
            for j in range(NCS):
                if swapped:
                    for r_ in range(4):
                        a.e("v_accvgpr_read_b32 v%d, a%d" % (T + 4 + r_, A_CS + j * 4 + r_))
                    a.e("ds_write_b128 v%d, %s" % (V_CS + j * 4 + 3, vr(T + 4, 4)))
                else:
                    a.e("v_accvgpr_read_b32 v%d, a%d" % (T + 4, A_CS + j * 4))
                    a.e("ds_write_b32 v%d, v%d" % (V_CS + j * 4 + 3, T + 4))
            a.e("s_mov_b64 exec, s[%d:%d]" % (S_EX, S_EX + 1))
            stats_fin()
        a.wait_lg0()
        a.e("s_barrier")
        if ln:
            for j in range(nt):
                if swapped:
                    a.lds("ds_read_b128 %s, v%d" % (vr(V_CS + j * 4, 4), V_CS + j * 4 + 3))
                else:
                    a.lds("ds_read_b32 v%d, v%d" % (V_CS + j * 4, V_CS + j * 4 + 3))
            if swapped:
                a.e("v_add_u32 v%d, s%d, v%d" % (T, S_WR0, V_L15))
                a.e("v_lshlrev_b32 v%d, 2, v%d" % (T, T))
                a.e("v_add_u32 v%d, 0x%x, v%d" % (T, ABL_, T))
                for mi in range(mt):
                    a.lds("ds_read_b32 v%d, v%d offset:%d" % (V_AL + mi * 4, T, mi * 64))
                    a.lds("ds_read_b32 v%d, v%d offset:%d" % (V_BE + mi * 4, T, mi * 64 + Mt * 4))
            else:
                a.e("v_lshl_add_u32 v%d, v%d, 2, s%d" % (T, V_G, S_WR0))
                a.e("v_lshlrev_b32 v%d, 2, v%d" % (T, T))
                a.e("v_add_u32 v%d, 0x%x, v%d" % (T, ABL_, T))
                for mi in range(mt):
                    a.lds("ds_read_b128 %s, v%d offset:%d" % (vr(V_AL + mi * 4, 4), T, mi * 64))
                    a.lds("ds_read_b128 %s, v%d offset:%d" % (vr(V_BE + mi * 4, 4), T, mi * 64 + Mt * 4))
            a.wait_lg0()
        a.stamp(8)

    def acc_read(mi, j, dst):
        for r_ in range(4):
            a.e("v_accvgpr_read_b32 v%d, a%d" % (dst + r_, A_ACC + (mi * nt + j) * 4 + r_))

    def unpack(dst, src, n):
        for i in range(n):
            a.e("v_lshlrev_b32 v%d, 16, v%d" % (dst + 2 * i, src + i))
            a.e("v_and_b32 v%d, 0xffff0000, v%d" % (dst + 2 * i + 1, src + i))

    def pack(dst, src, n):
        for i in range(n):
            a.e("v_cvt_pk_bf16_f32 v%d, v%d, v%d" % (dst + i, src + 2 * i, src + 2 * i + 1))

    E = V_E + 4
    PTV = Mt * 2 + 16

    def phase1(swapped):
        if swapped:
            a.e("v_add_u32 v%d, s%d, v%d" % (V_E, S_WR0, V_L15))
            a.e("v_mul_u32_u24 v%d, %d, v%d" % (V_E, PT, V_E))
            a.e("v_lshl_add_u32 v%d, v%d, 3, v%d" % (V_E, V_G, V_E))
        else:
            a.e("v_mul_u32_u24 v%d, %d, v%d" % (V_E, PTV, V_L15))
            a.e("v_lshl_add_u32 v%d, v%d, 3, v%d" % (V_E, V_G, V_E))
            a.e("v_lshl_add_u32 v%d, s%d, 1, v%d" % (V_E, S_WR0, V_E))
        for j in range(nt):
            a.e("s_mul_i32 s%d, s%d, %d" % (S_T0, S_TT + j, 32 if swapped else 16 * PTV))
            a.e("v_add_u32 v%d, s%d, v%d" % (V_E + 1, S_T0, V_E))
            for mi in range(mt):
                W_ = E + (mi & 1) * 8
                acc_read(mi, j, W_)
                if ln:
                    for r_ in range(4):
                        a.e("v_mul_f32 v%d, v%d, v%d" % (W_ + r_, W_ + r_, V_AL + mi * 4 + (0 if swapped else r_)))
                    for r_ in range(4):
                        if swapped:
                            a.e("v_fma_f32 v%d, -v%d, v%d, v%d" % (W_ + r_, V_BE + mi * 4, V_CS + j * 4 + r_, W_ + r_))
                        else:
                            a.e("v_fma_f32 v%d, -v%d, v%d, v%d" % (W_ + r_, V_BE + mi * 4 + r_, V_CS + j * 4, W_ + r_))
                pack(W_ + 4, W_, 2)
                a.lds("ds_write_b64 v%d, %s offset:%d" % (V_E + 1, vr(W_ + 4, 2), mi * 16 * PT if swapped else mi * 32))
        a.wait_lg0()

    if epi == 'qkv':
        L_v = name + "_vpath"
        a.e("s_cmp_ge_u32 s%d, 10" % S_CB)
        a.e("s_cbranch_scc1 %s" % L_v)
        saved = (list(a.vm), list(a.lg))
        main_loop(True)
        post_loop(True)
        phase1(True)
        a.e("s_branch %s" % L_p2)
        a.label(L_v)
        a.vm, a.lg = saved
        main_loop(False)
        post_loop(False)
        phase1(False)
    else:
        main_loop(True)
        post_loop(True)
        phase1(True)

    a.label(L_p2)
    a.e("s_barrier")
    a.vm = [None] * 70
    T = V_E
    if epi == 'qkv':
        L_v2 = name + "_v2"
        a.e("s_cmp_ge_u32 s%d, 10" % S_CB)
        a.e("s_cbranch_scc1 %s" % L_v2)
        a.e("s_cmp_ge_u32 s%d, 5" % S_CB)
        a.e("s_cselect_b32 s%d, 640, 0" % S_T0)
        a.e("s_cselect_b32 s%d, 0x%x, 0" % (S_SEC, WS_K - WS_Q))
        a.e("s_sub_u32 s%d, s%d, s%d" % (S_T0, S_COL0, S_T0))
        a.e("s_mov_b32 s%d, 3277" % S_T1)
        a.e("v_and_b32 v%d, 31, v%d" % (T, V_LANE))
        a.e("v_lshrrev_b32 v%d, 5, v%d" % (T + 1, V_LANE))
        a.e("v_lshl_add_u32 v%d, s%d, 4, v%d" % (T + 1, S_W8, T + 1))
        a.e("v_mul_u32_u24 v%d, %d, v%d" % (T + 2, PT, T + 1))
        a.e("v_lshl_add_u32 v%d, v%d, 3, v%d" % (T + 2, T, T + 2))
        a.e("v_lshl_add_u32 v%d, v%d, 2, s%d" % (T, T, S_T0))
        a.e("v_mul_lo_u32 v%d, v%d, s%d" % (T + 3, T, S_T1))
        a.e("v_lshrrev_b32 v%d, 16, v%d" % (T + 3, T + 3))
        a.e("v_mul_u32_u24 v%d, 20, v%d" % (E, T + 3))
        a.e("v_sub_u32 v%d, v%d, v%d" % (T, T, E))
        a.e("v_lshlrev_b32 v%d, 11, v%d" % (T + 3, T + 3))
        a.e("v_add3_u32 v%d, v%d, v%d, s%d" % (T + 3, T + 3, T + 1, S_ROW0))
        a.e("v_mul_u32_u24 v%d, 40, v%d" % (T + 3, T + 3))
        a.e("v_lshl_add_u32 v%d, v%d, 1, v%d" % (T + 3, T, T + 3))
        a.e("v_add_u32 v%d, s%d, v%d" % (T + 3, S_SEC, T + 3))
        for e_ in range(8):
            a.lds("ds_read_b64 %s, v%d offset:%d" % (vr(E + e_ * 2, 2), T + 2, e_ * 2 * PT), ('e', e_))
        for e_ in range(8):
            a.wait_lg([('e', e_)])
            a.e("buffer_store_dwordx2 %s, v%d, s[%d:%d], 0 offen offset:%d" % (
                vr(E + e_ * 2, 2), T + 3, SRD_O, SRD_O + 3, e_ * 80))
        a.stamp(9)
        a.stamp_out(10, V_E)
        a.e("s_endpgm")
        a.label(L_v2)
        a.e("v_lshrrev_b32 v%d, 4, v%d" % (T, V_LANE))
        a.e("v_lshl_add_u32 v%d, s%d, 4, v%d" % (T, S_W8, T))
        a.e("v_mul_u32_u24 v%d, %d, v%d" % (T + 1, PTV, T))
        a.e("v_lshl_add_u32 v%d, v%d, 4, v%d" % (T + 1, V_L15, T + 1))
        a.e("s_sub_u32 s%d, s%d, 1280" % (S_T0, S_COL0))
        a.e("v_add_u32 v%d, s%d, v%d" % (T, S_T0, T))
        a.e("v_lshlrev_b32 v%d, 12, v%d" % (T, T))
        a.e("v_lshl_add_u32 v%d, v%d, 4, v%d" % (T, V_L15, T))
        a.e("s_lshl_b32 s%d, s%d, 1" % (S_T0, S_ROW0))
        a.e("s_add_u32 s%d, s%d, 0x%x" % (S_T0, S_T0, WS_VT - WS_Q))
        a.e("v_add_u32 v%d, s%d, v%d" % (T, S_T0, T))
        for e_ in range(4):
            a.lds("ds_read_b128 %s, v%d offset:%d" % (vr(E + e_ * 4, 4), T + 1, e_ * 4 * PTV), ('e', e_))
        for e_ in range(4):
            a.wait_lg([('e', e_)])
            a.e("buffer_store_dwordx4 %s, v%d, s[%d:%d], 0 offen" % (vr(E + e_ * 4, 4), T, SRD_O, SRD_O + 3))
            a.e("v_add_u32 v%d, 0x4000, v%d" % (T, T))
    else:
        for e_ in range(nE):
            a.lds("ds_read_b128 %s, v%d" % (vr(V_CS + e_ * 4, 4), V_EL + e_), ('e', e_))
        assert nE * 4 <= nt * 4
        if epi == 'gelu':
            a.e("s_mov_b32 s%d, 0x%x" % (S_C2, f32bits(GELU_C2)))
            a.e("v_mov_b32 v%d, 0x%x" % (V_E, f32bits(GELU_C1)))
        else:
            a.e("s_waitcnt vmcnt(0)")
        for e_ in range(nE):
            a.wait_lg([('e', e_)])
            src = V_CS + e_ * 4
            unpack(E, src, 4)
            if epi == 'gelu':
                for r_ in range(8):
                    a.e("v_mul_f32 v%d, v%d, v%d" % (E + 8 + r_, E + r_, E + r_))
                for r_ in range(8):
                    a.e("v_fma_f32 v%d, v%d, s%d, v%d" % (E + 8 + r_, E + 8 + r_, S_C2, V_E))
                for r_ in range(8):
                    a.e("v_mul_f32 v%d, v%d, v%d" % (E + 8 + r_, E + 8 + r_, E + r_))
                for r_ in range(8):
                    a.e("v_exp_f32 v%d, v%d" % (E + 8 + r_, E + 8 + r_))
                for r_ in range(8):
                    a.e("v_add_f32 v%d, 1.0, v%d" % (E + 8 + r_, E + 8 + r_))
                for r_ in range(8):
                    a.e("v_rcp_f32 v%d, v%d" % (E + 8 + r_, E + 8 + r_))
                for r_ in range(8):
                    a.e("v_mul_f32 v%d, v%d, v%d" % (E + r_, E + r_, E + 8 + r_))
            else:
                unpack(E + 8, V_R1 + e_ * 4, 4)
                if epi == 'x1':
                    for r_ in range(8):
                        a.e("v_sub_f32 v%d, v%d, v%d" % (E + 8 + r_, E + 8 + r_, V_RS + e_ * 2))
                    pack(E + 16, E + 8, 4)
                    unpack(E + 8, E + 16, 4)
                    for r_ in range(8):
                        a.e("v_mul_f32 v%d, v%d, v%d" % (E + 8 + r_, E + 8 + r_, V_RS + e_ * 2 + 1))
                    pack(E + 16, E + 8, 4)
                    unpack(E + 8, E + 16, 4)
                for r_ in range(8):
                    a.e("v_add_f32 v%d, v%d, v%d" % (E + r_, E + r_, E + 8 + r_))
                if epi == 'out':
                    pack(E + 16, E, 4)
                    unpack(E, E + 16, 4)
                    unpack(E + 8, V_R2 + e_ * 4, 4)
                    for r_ in range(8):
                        a.e("v_add_f32 v%d, v%d, v%d" % (E + r_, E + r_, E + 8 + r_))
            pack(src, E, 4)
            a.e("buffer_store_dwordx4 %s, v%d, s[%d:%d], 0 offen" % (vr(src, 4), V_EO + e_, SRD_O, SRD_O + 3))
        a.stamp(9)
        a.stamp_out(10, V_E)
    a.label(L_end)
    a.e("s_endpgm")
    if packwg:
        a.label(name + "_pack")
        emit_pack_path(a, ntiles, packwg)
    return a.lines, kernel_desc(name, nv, nagpr), ntiles + packwg, lds_bytes, 512


def gen_attn(name):
    a = Asm()
    KL = 0
    VL = 384 * 64
    PV = 800
    lds_bytes = VL + 23 * PV
    lds_bytes = (lds_bytes + 1023) // 1024 * 1024 + 1024

    V_LANE, V_L15, V_G = 1, 2, 3
    V_T = 4
    V_KA = 12
    V_VA = 14
    V_A = 16
    V_X16, V_X32, V_BS = 17, 18, 19
    V_Q = 20
    V_O = 28
    V_KF = 44
    V_VF = 60
    V_M = 76
    V_S = 80
    V_PD = V_S + 144
    V_PA = V_PD + 20
    nv = V_PA + 5
    S_WS = 4
    SRD_Q, SRD_K, SRD_V, SRD_O = 8, 12, 16, 20
    S_W, S_H, S_Q0, S_T0, S_T1, S_KS, S_C, S_EX = 32, 33, 34, 35, 36, 37, 38, 40

    kernel_header(a, name)
    L_end = name + "_end"
    a.e("s_cmp_ge_u32 s2, 512")
    a.e("s_cbranch_scc1 %s" % L_end)
    a.stamp(0)
    a.e("s_load_dwordx2 s[%d:%d], s[0:1], %d" % (S_WS, S_WS + 1, KA['ws']))
    a.e("s_load_dwordx2 s[24:25], s[0:1], 16")
    a.e("s_load_dwordx8 s[84:91], s[0:1], 32")
    a.e("s_and_b32 s%d, s2, 7" % S_T0)
    a.e("s_lshr_b32 s%d, s2, 3" % S_T1)
    a.e("s_lshr_b32 s%d, s%d, 1" % (S_H, S_T1))
    a.e("s_and_b32 s%d, s%d, 1" % (S_Q0, S_T1))
    a.e("s_lshl_b32 s%d, s%d, 1" % (S_T0, S_T0))
    a.e("s_add_u32 s%d, s%d, s%d" % (S_Q0, S_Q0, S_T0))
    a.e("s_lshl_b32 s%d, s%d, 7" % (S_Q0, S_Q0))
    a.e("v_and_b32 v%d, 63, v0" % V_LANE)
    a.e("v_lshrrev_b32 v%d, 6, v0" % V_T)
    a.e("v_and_b32 v%d, 15, v0" % V_L15)
    a.e("v_bfe_u32 v%d, v0, 4, 2" % V_G)
    a.e("v_readfirstlane_b32 s%d, v%d" % (S_W, V_T))
    a.e("s_waitcnt lgkmcnt(0)")
    build_srd(a, SRD_Q, S_WS, WS_Q, 32 * 2048 * 40)
    build_srd(a, SRD_K, S_WS, WS_K, 32 * 2048 * 40)
    build_srd(a, SRD_V, S_WS, WS_VT, 640 * 2048 * 2)
    build_srd(a, SRD_O, S_WS, WS_O, S * D * 2)
    T = V_T
    a.e("s_lshl_b32 s%d, s%d, 11" % (S_T0, S_H))
    a.e("s_add_u32 s%d, s%d, s%d" % (S_T0, S_T0, S_Q0))
    a.e("s_sub_u32 s%d, s%d, 256" % (S_T0, S_T0))
    a.e("s_mul_i32 s%d, s%d, 96" % (S_T1, S_W))
    a.e("s_add_u32 s%d, s%d, s%d" % (S_T0, S_T0, S_T1))
    a.e("s_mul_i32 s%d, s%d, 40" % (S_KS, S_T0))
    a.e("v_lshrrev_b32 v%d, 2, v%d" % (T, V_LANE))
    a.e("v_mul_u32_u24 v%d, 40, v%d" % (T, T))
    a.e("v_add_u32 v%d, s%d, v%d" % (T, S_KS, T))
    a.e("v_and_b32 v%d, 3, v%d" % (T + 1, V_LANE))
    a.e("v_mov_b32 v%d, 0x7fffff00" % (T + 6))
    a.e("v_lshl_add_u32 v%d, v%d, 4, v%d" % (T + 2, T + 1, T))
    a.e("v_cmp_eq_u32 vcc, 3, v%d" % (T + 1))
    a.e("v_xor_b32 v%d, 2, v%d" % (T + 1, T + 1))
    a.e("v_lshl_add_u32 v%d, v%d, 4, v%d" % (T + 3, T + 1, T))
    a.e("v_cndmask_b32 v%d, v%d, v%d, vcc" % (T + 2, T + 2, T + 6))
    a.e("v_cmp_eq_u32 vcc, 3, v%d" % (T + 1))
    a.e("s_mul_i32 s%d, s%d, 6144" % (S_T1, S_W))
    a.e("s_nop 0")
    a.e("v_cndmask_b32 v%d, v%d, v%d, vcc" % (T + 3, T + 3, T + 6))
    for i in range(6):
        a.e("s_add_u32 m0, s%d, %d" % (S_T1, KL + i * 1024))
        a.e("v_add_u32 v%d, %d, v%d" % (T + 4 + (i & 1), i * 640, T + 2 + (i & 1)))
        a.vmem("buffer_load_dwordx4 v%d, s[%d:%d], 0 offen lds" % (T + 4 + (i & 1), SRD_K, SRD_K + 3))
    a.e("s_lshl_b32 s%d, s%d, 11" % (S_T0, S_H))
    a.e("s_add_u32 s%d, s%d, s%d" % (S_T0, S_T0, S_Q0))
    a.e("s_lshl_b32 s%d, s%d, 5" % (S_T1, S_W))
    a.e("s_add_u32 s%d, s%d, s%d" % (S_T0, S_T0, S_T1))
    a.e("v_add_u32 v%d, s%d, v%d" % (T, S_T0, V_L15))
    a.e("v_mul_u32_u24 v%d, 40, v%d" % (T, T))
    a.e("v_lshl_add_u32 v%d, v%d, 4, v%d" % (T, V_G, T))
    a.vmem("buffer_load_dwordx4 %s, v%d, s[%d:%d], 0 offen" % (vr(V_Q, 4), T, SRD_Q, SRD_Q + 3), 'Q')
    a.vmem("buffer_load_dwordx4 %s, v%d, s[%d:%d], 0 offen offset:640" % (vr(V_Q + 4, 4), T, SRD_Q, SRD_Q + 3), 'Q')
    a.e("s_mul_i32 s%d, s%d, 20" % (S_T0, S_H))
    a.e("s_lshl_b32 s%d, s%d, 12" % (S_T0, S_T0))
    a.e("s_lshl_b32 s%d, s%d, 1" % (S_T1, S_Q0))
    a.e("s_add_u32 s%d, s%d, s%d" % (S_T0, S_T0, S_T1))
    a.e("s_sub_u32 s%d, s%d, 512" % (S_T0, S_T0))
    a.e("s_lshl_b32 s%d, s%d, 8" % (S_T1, S_W))
    a.e("s_mov_b32 s%d, 1311" % S_C)
    for G in range(1024):
        assert (G * 1311) >> 16 == G // 50
    for i in range(4):
        a.e("v_add_u32 v%d, s%d, v%d" % (T, S_T1, V_LANE))
        if i:
            a.e("v_add_u32 v%d, %d, v%d" % (T, i * 64, T))
        a.e("v_mul_lo_u32 v%d, v%d, s%d" % (T + 1, T, S_C))
        a.e("v_lshrrev_b32 v%d, 16, v%d" % (T + 1, T + 1))
        a.e("v_mul_u32_u24 v%d, 50, v%d" % (T + 2, T + 1))
        a.e("v_sub_u32 v%d, v%d, v%d" % (T + 2, T, T + 2))
        a.e("v_lshlrev_b32 v%d, 12, v%d" % (T + 3, T + 1))
        a.e("v_lshl_add_u32 v%d, v%d, 4, v%d" % (T + 3, T + 2, T + 3))
        a.e("v_add_u32 v%d, s%d, v%d" % (T + 3, S_T0, T + 3))
        a.e("v_cmp_le_u32 vcc, 20, v%d" % (T + 1))
        a.e("v_cmp_le_u32 s[%d:%d], 48, v%d" % (S_EX, S_EX + 1, T + 2))
        a.e("s_or_b64 vcc, vcc, s[%d:%d]" % (S_EX, S_EX + 1))
        a.e("v_mov_b32 v%d, 0x7fffff00" % (T + 4))
        a.e("s_lshl_b32 m0, s%d, 12" % S_W)
        a.e("v_cndmask_b32 v%d, v%d, v%d, vcc" % (T + 3, T + 3, T + 4))
        a.e("s_add_u32 m0, m0, %d" % (VL + i * 1024))
        a.e("s_nop 0")
        a.vmem("buffer_load_dwordx4 v%d, s[%d:%d], 0 offen lds" % (T + 3, SRD_V, SRD_V + 3), 'VD')
    a.stamp(1)
    a.stamp(2)
    a.e("v_lshrrev_b32 v%d, 2, v%d" % (T, V_L15))
    a.e("v_and_b32 v%d, 3, v%d" % (T + 1, V_L15))
    a.e("v_lshl_add_u32 v%d, v%d, 3, v%d" % (T, T, T + 1))
    a.e("v_bfe_u32 v%d, v%d, 4, 1" % (T + 1, T))
    a.e("v_lshlrev_b32 v%d, 1, v%d" % (T + 1, T + 1))
    a.e("v_xor_b32 v%d, v%d, v%d" % (T + 1, T + 1, V_G))
    a.e("v_lshlrev_b32 v%d, 6, v%d" % (T, T))
    a.e("v_lshl_add_u32 v%d, v%d, 4, v%d" % (T, T + 1, T))
    a.e("s_lshl_b32 s%d, s%d, 11" % (S_T0, S_W))
    a.e("v_add_u32 v%d, s%d, v%d" % (V_KA, S_T0, T))
    a.e("v_add_u32 v%d, 256, v%d" % (V_KA + 1, V_KA))
    a.e("v_mul_u32_u24 v%d, %d, v%d" % (T, PV, V_L15))
    a.e("v_lshl_add_u32 v%d, v%d, 4, v%d" % (T, V_G, T))
    a.e("s_lshl_b32 s%d, s%d, 6" % (S_T0, S_W))
    a.e("s_add_u32 s%d, s%d, %d" % (S_T0, S_T0, VL))
    a.e("v_add_u32 v%d, s%d, v%d" % (V_VA, S_T0, T))
    a.e("v_add_u32 v%d, 16, v%d" % (T, V_L15))
    a.e("v_add_u32 v%d, 17, v%d" % (T + 1, V_L15))
    a.e("v_min_u32 v%d, 22, v%d" % (T + 1, T + 1))
    a.e("v_cmp_gt_u32 vcc, 4, v%d" % V_L15)
    a.e("s_nop 1")
    a.e("v_cndmask_b32 v%d, v%d, v%d, vcc" % (T, T + 1, T))
    a.e("v_mul_u32_u24 v%d, %d, v%d" % (T, PV, T))
    a.e("v_lshl_add_u32 v%d, v%d, 4, v%d" % (T, V_G, T))
    a.e("v_add_u32 v%d, s%d, v%d" % (V_VA + 1, S_T0, T))
    a.e("v_lshlrev_b32 v%d, 3, v%d" % (T, V_G))
    a.e("v_sub_u32 v%d, v%d, v%d" % (V_A, V_L15, T))
    a.e("v_xor_b32 v%d, 16, v%d" % (T, V_LANE))
    a.e("v_lshlrev_b32 v%d, 2, v%d" % (V_X16, T))
    a.e("v_xor_b32 v%d, 32, v%d" % (T, V_LANE))
    a.e("v_lshlrev_b32 v%d, 2, v%d" % (V_X32, T))
    a.e("v_add_u32 v%d, 16, v%d" % (T, V_L15))
    a.e("v_lshlrev_b32 v%d, 2, v%d" % (V_BS, T))
    for i in range(16):
        a.e("v_mov_b32 v%d, 0" % (V_O + i))
    a.e("v_cmp_gt_u32 vcc, 48, v%d" % V_LANE)
    a.e("s_and_saveexec_b64 s[%d:%d], vcc" % (S_EX, S_EX + 1))
    a.e("s_cmp_lt_u32 s%d, 2" % S_W)
    labz = a.newlabel("ones")
    a.e("s_cbranch_scc0 %s" % labz)
    a.e("s_cmp_eq_u32 s%d, 0" % S_W)
    a.e("s_cselect_b32 s%d, 0x3f803f80, 0" % S_T0)
    for i in range(4):
        a.e("v_mov_b32 v%d, s%d" % (T + 4 + i, S_T0))
    a.e("s_mul_i32 s%d, s%d, %d" % (S_T0, S_W, PV))
    a.e("s_add_u32 s%d, s%d, %d" % (S_T0, S_T0, VL + 21 * PV))
    a.e("v_lshlrev_b32 v%d, 4, v%d" % (T, V_LANE))
    a.e("v_add_u32 v%d, s%d, v%d" % (T, S_T0, T))
    a.e("ds_write_b128 v%d, %s" % (T, vr(T + 4, 4)))
    a.label(labz)
    a.e("s_mov_b64 exec, s[%d:%d]" % (S_EX, S_EX + 1))
    emit_pack_calc(a, S_W, V_LANE, T, V_PD, V_PA, 44)
    a.e("v_cmp_gt_u32 vcc, 2, v%d" % V_G)
    a.e("v_cmp_gt_u32 s[%d:%d], 3, v%d" % (S_EX, S_EX + 1, V_G))
    a.e("s_waitcnt lgkmcnt(0)")
    a.wait_vm(['Q'])
    a.e("s_barrier")
    a.stamp(3)
    emit_pack_issue(a, V_PD, 44)
    for qt in range(2):
        a.e("v_cndmask_b32 v%d, 0, v%d, s[%d:%d]" % (V_Q + qt * 4, V_Q + qt * 4, S_EX, S_EX + 1))
        a.e("v_cndmask_b32 v%d, 0, v%d, s[%d:%d]" % (V_Q + qt * 4 + 1, V_Q + qt * 4 + 1, S_EX, S_EX + 1))
        a.e("v_cndmask_b32 v%d, 0, v%d, vcc" % (V_Q + qt * 4 + 2, V_Q + qt * 4 + 2))
        a.e("v_cndmask_b32 v%d, 0, v%d, vcc" % (V_Q + qt * 4 + 3, V_Q + qt * 4 + 3))
    a.stamp(4)

    def sreg(b, qt):
        return V_S + (b * 2 + qt) * 8

    def kread(b):
        for Tt in range(2):
            a.lds("ds_read_b128 %s, v%d offset:%d" % (vr(V_KF + (b & 1) * 8 + Tt * 4, 4), V_KA + Tt, KL + b * 2048), ('K', b))
    kread(0)
    for b in range(9):
        if b + 1 < 9:
            kread(b + 1)
        a.wait_lg([('K', b)])
        for qt in range(2):
            for Tt in range(2):
                a.e("v_mfma_f32_16x16x32_bf16 %s, %s, %s, 0" % (
                    vr(sreg(b, qt) + Tt * 4, 4), vr(V_KF + (b & 1) * 8 + Tt * 4, 4), vr(V_Q + qt * 4, 4)))
    a.wait_lg0()
    def vread(b):
        for dt in range(2):
            a.lds("ds_read_b128 %s, v%d offset:%d" % (vr(V_VF + (b & 1) * 8 + dt * 4, 4), V_VA + dt, b * 64), ('V', b))
    a.e("s_nop 7")
    a.e("s_nop 3")
    a.stamp(5)
    a.e("v_mov_b32 v%d, 0xf149f2ca" % (V_M + 2))
    for qt in range(2):
        for Tt in range(2):
            for r_ in range(4):
                th = Tt * 4 + r_ - qt * 16
                a.e("v_cmp_gt_i32 vcc, %d, v%d" % (th, V_A))
                a.e("s_nop 1")
                r0 = sreg(0, qt) + Tt * 4 + r_
                r8 = sreg(8, qt) + Tt * 4 + r_
                a.e("v_cndmask_b32 v%d, v%d, v%d, vcc" % (r0, V_M + 2, r0))
                a.e("v_cndmask_b32 v%d, v%d, v%d, vcc" % (r8, r8, V_M + 2))
    a.e("s_lshl_b32 s%d, s%d, 5" % (S_T0, S_W))
    a.e("s_add_u32 s%d, s%d, s%d" % (S_T0, S_T0, S_Q0))
    for b in range(8):
        lab = a.newlabel("neg")
        a.e("s_cmp_lt_i32 s%d, %d" % (S_T0, 256 - b * 32))
        a.e("s_cbranch_scc0 %s" % lab)
        for i in range(16):
            a.e("v_mov_b32 v%d, v%d" % (sreg(b, 0) + i, V_M + 2))
        a.label(lab)
    for qt in range(2):
        regs = [sreg(b, qt) + i for b in range(9) for i in range(8)]
        a.e("v_max3_f32 v%d, v%d, v%d, v%d" % (V_M + qt, regs[0], regs[1], regs[2]))
        for i in range(3, 71, 2):
            a.e("v_max3_f32 v%d, v%d, v%d, v%d" % (V_M + qt, V_M + qt, regs[i], regs[i + 1]))
        a.e("v_max_f32 v%d, v%d, v%d" % (V_M + qt, V_M + qt, regs[71]))
    for xr in (V_X16, V_X32):
        for qt in range(2):
            a.lds("ds_bpermute_b32 v%d, v%d, v%d" % (V_M + 2 + qt, xr, V_M + qt), 'x')
        a.wait_lg(['x'])
        for qt in range(2):
            a.e("v_max_f32 v%d, v%d, v%d" % (V_M + qt, V_M + qt, V_M + 2 + qt))
    cs = (DH ** -0.5) * 1.4426950408889634
    a.e("s_mov_b32 s%d, 0x%x" % (S_C, f32bits(cs)))
    for qt in range(2):
        a.e("v_mul_f32 v%d, s%d, v%d" % (V_M + qt, S_C, V_M + qt))
    a.stamp(6)
    a.wait_vm(['VD'])
    a.e("s_barrier")
    vread(0)
    for b in range(9):
        for qt in range(2):
            r0 = sreg(b, qt)
            for i in range(8):
                a.e("v_fma_f32 v%d, v%d, s%d, -v%d" % (r0 + i, r0 + i, S_C, V_M + qt))
            for i in range(8):
                a.e("v_exp_f32 v%d, v%d" % (r0 + i, r0 + i))
            a.e("s_nop 0")
            for i in range(4):
                a.e("v_cvt_pk_bf16_f32 v%d, v%d, v%d" % (r0 + i, r0 + 2 * i, r0 + 2 * i + 1))
        if b + 1 < 9:
            vread(b + 1)
        if b == 3:
            emit_pack_stores(a, S_WS, V_PD, V_PA, 44)
        a.wait_lg([('V', b)])
        a.e("s_nop 1")
        for dt in range(2):
            for qt in range(2):
                o = vr(V_O + (dt * 2 + qt) * 4, 4)
                a.e("v_mfma_f32_16x16x32_bf16 %s, %s, %s, %s" % (
                    o, vr(V_VF + (b & 1) * 8 + dt * 4, 4), vr(sreg(b, qt), 4), o))
    a.e("s_nop 7")
    a.e("s_nop 3")
    a.stamp(7)
    a.stamp(8)
    for qt in range(2):
        a.lds("ds_bpermute_b32 v%d, v%d, v%d" % (V_M + qt, V_BS, V_O + (2 + qt) * 4), 'x')
    a.e("s_lshl_b32 s%d, s%d, 5" % (S_T0, S_W))
    a.e("s_add_u32 s%d, s%d, s%d" % (S_T0, S_T0, S_Q0))
    a.e("v_add_u32 v%d, s%d, v%d" % (T, S_T0, V_L15))
    a.e("s_movk_i32 s%d, 1280" % S_T1)
    a.e("v_mul_lo_u32 v%d, v%d, s%d" % (T, T, S_T1))
    a.e("v_lshl_add_u32 v%d, v%d, 3, v%d" % (T, V_G, T))
    a.e("s_mul_i32 s%d, s%d, 40" % (S_T0, S_H))
    a.e("v_add_u32 v%d, s%d, v%d" % (T, S_T0, T))
    a.e("v_add_u32 v%d, %d, v%d" % (T + 1, 16 * 1280, T))
    a.wait_lg(['x'])
    for qt in range(2):
        a.e("v_rcp_f32 v%d, v%d" % (V_M + qt, V_M + qt))
    a.e("s_nop 0")
    for qt in range(2):
        for dt in range(2):
            o = V_O + (dt * 2 + qt) * 4
            for r_ in range(4):
                a.e("v_mul_f32 v%d, v%d, v%d" % (o + r_, o + r_, V_M + qt))
            a.e("v_cvt_pk_bf16_f32 v%d, v%d, v%d" % (o, o, o + 1))
            a.e("v_cvt_pk_bf16_f32 v%d, v%d, v%d" % (o + 1, o + 2, o + 3))
    for qt in range(2):
        a.e("buffer_store_dwordx2 %s, v%d, s[%d:%d], 0 offen offset:%d" % (
            vr(V_O + qt * 4, 2), T + qt, SRD_O, SRD_O + 3, 0))
    a.e("v_cmp_eq_u32 vcc, 0, v%d" % V_G)
    a.e("s_and_saveexec_b64 s[%d:%d], vcc" % (S_EX, S_EX + 1))
    for qt in range(2):
        a.e("buffer_store_dwordx2 %s, v%d, s[%d:%d], 0 offen offset:%d" % (
            vr(V_O + (2 + qt) * 4, 2), T + qt, SRD_O, SRD_O + 3, 32))
    a.e("s_mov_b64 exec, s[%d:%d]" % (S_EX, S_EX + 1))
    a.stamp(9)
    a.stamp_out(10, V_T, wg=40)
    a.label(L_end)
    a.e("s_endpgm")
    return a.lines, kernel_desc(name, nv, 0), 512, lds_bytes, 256


def main():
    out = sys.argv[1] if len(sys.argv) > 1 else "sequential_preLN__sliding_block__mixer_s_mlp__prompt.s"
    ks = []
    ks.append(("k1_kernel",) + gen_gemm("k1_kernel", 640, 1920, 128, 128, ('in', 'x'), 'wqkv', 1, 'qkv', 64, early=True))
    ks.append(("k2_kernel",) + gen_attn("k2_kernel"))
    ks.append(("k3_kernel",) + gen_gemm("k3_kernel", 640, 640, 64, 80, ('ws', WS_O), 'wo', 0, 'res', 128, pf=('w1', 640 * 640 * 2)))
    ks.append(("k4_kernel",) + gen_gemm("k4_kernel", 640, 640, 64, 80, ('ws', WS_H), 'w1', 2, 'gelu', 128, pf=('w2', 640 * 640 * 2)))
    ks.append(("k5_kernel",) + gen_gemm("k5_kernel", 640, 640, 64, 80, ('ws', WS_HG), 'w2', 0, 'x1', 128, shift=True, pf=('w3', 640 * 1536 * 2)))
    ks.append(("k6_kernel",) + gen_gemm("k6_kernel", 640, 1536, 128, 96, ('ws', WS_X1), 'w3', 1, 'gelu', 64, early=True))
    ks.append(("k7_kernel",) + gen_gemm("k7_kernel", 1536, 640, 64, 80, ('ws', WS_G), 'w4', 0, 'out', 128))
    hdr = open("sequential_preLN__sliding_block__mixer_s_mlp__prompt.s.ref").read().split("\n")
    txt = []
    for l in hdr:
        if l.startswith("; @launch") or l.startswith("; Override") or l.startswith("; grid="):
            continue
        if not l.startswith(";"):
            break
        txt.append(l)
    for (nm, lines, desc, ntiles, lds, blk) in ks:
        txt.append("; @launch kernel=%s grid=(%d,1,1) block=(%d,1,1) lds=%d" % (nm, ntiles, blk, lds))
    txt.append('.amdgcn_target "amdgcn-amd-amdhsa--gfx950"')
    txt.append(".text")
    for (nm, lines, desc, ntiles, lds, blk) in ks:
        txt += lines
    txt.append('.section .rodata,"a"')
    for (nm, lines, desc, ntiles, lds, blk) in ks:
        txt.append(".p2align 6")
        txt.append(desc)
    open(out, "w").write("\n".join(txt) + "\n")
    print("wrote", out, "lines", len(txt))


if __name__ == "__main__":
    main()
```

```python
import sys, os
ABL = set(os.environ.get('ABL', '').split(','))

S = 2048
D = 640
F = 1536
H = 32
DH = 20

WS_Q = 0
WS_K = WS_Q + 32 * 2048 * 64
WS_VT = WS_K + 32 * 2048 * 64
WS_O = WS_VT + 640 * 2048 * 2
WS_H = WS_O + S * D * 2
WS_HG = WS_H + S * D * 2
WS_X1 = WS_HG + S * D * 2
WS_G = WS_X1 + S * D * 2
WS_ST = WS_G + S * F * 2
WS_PW = {}
_o = WS_ST + S * 8
for _k, _n in (('wo', 640 * 640 * 2), ('w1', 640 * 640 * 2), ('w2', 640 * 640 * 2), ('w3', 640 * 1536 * 2), ('w4', 640 * 1536 * 2)):
    WS_PW[_k] = _o
    _o += _n
WS_END = _o
PACK = dict(wo=(640, 640, 80, 128), w1=(640, 640, 80, 128), w2=(640, 640, 80, 128), w3=(640, 1536, 96, 64), w4=(1536, 640, 80, 128))

KA = dict(x=0, wqkv=8, wo=16, bx=24, w1=32, w2=40, w3=48, w4=56, out=64, dbg=72, ws=80)


class Asm:
    def __init__(self):
        self.lines = []
        self.vm = []
        self.lg = []
        Asm.uid = getattr(Asm, 'uid', 0)

    def e(self, s):
        self.lines.append("    " + s)

    def label(self, s):
        self.lines.append(s + ":")

    def c(self, s):
        self.lines.append("    ; " + s)

    def newlabel(self, p):
        Asm.uid += 1
        return "L_%s_%d" % (p, Asm.uid)

    def vmem(self, s, tag=None):
        self.e(s)
        self.vm.append(tag)

    def lds(self, s, tag=None):
        self.e(s)
        self.lg.append(tag)

    def _need(self, lst, tags):
        last = -1
        for i, t in enumerate(lst):
            if t in tags:
                last = i
        return last

    def wait_vm(self, tags):
        last = self._need(self.vm, tags)
        if last < 0:
            return
        n = len(self.vm) - 1 - last
        if n <= 63:
            self.e("s_waitcnt vmcnt(%d)" % n)
        self.vm = self.vm[last + 1:]

    def wait_lg(self, tags):
        last = self._need(self.lg, tags)
        if last < 0:
            return
        n = len(self.lg) - 1 - last
        assert n <= 15, n
        self.e("s_waitcnt lgkmcnt(%d)" % n)
        self.lg = self.lg[last + 1:]

    def stamp(self, i):
        if 'stamp' not in ABL:
            return
        self.e("s_memtime s[%d:%d]" % (60 + 2 * i, 61 + 2 * i))
        if i == 0:
            self.e("s_memrealtime s[92:93]")
        if i == 9:
            self.e("s_memrealtime s[94:95]")
        self.e("s_waitcnt lgkmcnt(0)")
        self.lg = []

    def stamp_out(self, n, vtmp, wg=0):
        if 'stamp' not in ABL:
            return
        Asm.kidx = getattr(Asm, 'kidx', 0) + 1
        self.e("s_load_dwordx2 s[56:57], s[0:1], 80")
        self.e("s_waitcnt lgkmcnt(0)")
        self.e("s_add_u32 s56, s56, 0x%x" % ((64 << 20) + self.kslot * 65536))
        self.e("s_addc_u32 s57, s57, 0")
        self.e("s_and_b32 s57, s57, 0xffff")
        self.e("s_mov_b32 s58, 65536")
        self.e("s_mov_b32 s59, 0x00020000")
        self.e("v_cmp_eq_u32 vcc, 0, v0")
        self.e("s_and_saveexec_b64 s[80:81], vcc")
        self.e("s_lshl_b32 s82, s2, 3")
        self.e("v_mov_b32 v%d, s82" % vtmp)
        self.e("v_mov_b32 v%d, s92" % (vtmp + 1))
        self.e("buffer_store_dword v%d, v%d, s[56:59], 0 offen" % (vtmp + 1, vtmp))
        self.e("v_mov_b32 v%d, s94" % (vtmp + 1))
        self.e("buffer_store_dword v%d, v%d, s[56:59], 0 offen offset:4" % (vtmp + 1, vtmp))
        self.e("s_mov_b64 exec, s[80:81]")
        lab = self.newlabel("stamp")
        self.e("s_cmp_eq_u32 s2, %d" % wg)
        self.e("s_cbranch_scc0 %s" % lab)
        self.e("s_load_dwordx2 s[56:57], s[0:1], 72")
        self.e("s_waitcnt lgkmcnt(0)")
        self.e("s_and_b32 s57, s57, 0xffff")
        self.e("s_mov_b32 s58, 256")
        self.e("s_mov_b32 s59, 0x00020000")
        self.e("v_lshrrev_b32 v%d, 6, v0" % vtmp)
        self.e("v_lshlrev_b32 v%d, 6, v%d" % (vtmp, vtmp))
        self.e("v_and_b32 v%d, 63, v0" % (vtmp + 1))
        self.e("v_cmp_eq_u32 vcc, 0, v%d" % (vtmp + 1))
        self.e("s_and_saveexec_b64 s[80:81], vcc")
        for i in range(n):
            self.e("s_sub_u32 s82, s%d, s60" % (60 + 2 * i))
            self.e("v_mov_b32 v%d, s82" % (vtmp + 1))
            self.e("buffer_store_dword v%d, v%d, s[56:59], 0 offen offset:%d" % (vtmp + 1, vtmp, i * 4))
        self.e("s_sub_u32 s82, s94, s92")
        self.e("v_mov_b32 v%d, s82" % (vtmp + 1))
        self.e("buffer_store_dword v%d, v%d, s[56:59], 0 offen offset:%d" % (vtmp + 1, vtmp, 40))
        self.e("v_mov_b32 v%d, s92" % (vtmp + 1))
        self.e("buffer_store_dword v%d, v%d, s[56:59], 0 offen offset:%d" % (vtmp + 1, vtmp, 44))
        self.e("v_mov_b32 v%d, s94" % (vtmp + 1))
        self.e("buffer_store_dword v%d, v%d, s[56:59], 0 offen offset:%d" % (vtmp + 1, vtmp, 48))
        self.e("s_mov_b64 exec, s[80:81]")
        self.label(lab)

    def wait_all(self):
        self.e("s_waitcnt vmcnt(0) lgkmcnt(0)")
        self.vm = []
        self.lg = []

    def wait_lg0(self):
        self.e("s_waitcnt lgkmcnt(0)")
        self.lg = []

    def wait_vm0(self):
        self.e("s_waitcnt vmcnt(0)")
        self.vm = []


def vr(b, n=1):
    return "v%d" % b if n == 1 else "v[%d:%d]" % (b, b + n - 1)


def ar(b, n=1):
    return "a%d" % b if n == 1 else "a[%d:%d]" % (b, b + n - 1)


def sr(b, n=1):
    return "s%d" % b if n == 1 else "s[%d:%d]" % (b, b + n - 1)


def build_srd(a, d, ptr, off, size):
    if off:
        a.e("s_add_u32 s%d, s%d, 0x%x" % (d, ptr, off))
        a.e("s_addc_u32 s%d, s%d, 0" % (d + 1, ptr + 1))
        a.e("s_and_b32 s%d, s%d, 0xffff" % (d + 1, d + 1))
    else:
        a.e("s_mov_b32 s%d, s%d" % (d, ptr))
        a.e("s_and_b32 s%d, s%d, 0xffff" % (d + 1, ptr + 1))
    a.e("s_mov_b32 s%d, 0x%x" % (d + 2, size))
    a.e("s_mov_b32 s%d, 0x00020000" % (d + 3))


def f32bits(x):
    import struct
    return struct.unpack("<I", struct.pack("<f", x))[0]


def sigma(nt, t, r):
    if nt == 5:
        return t
    if nt == 8:
        return t ^ r
    if nt == 6:
        return (t + (r >> 2)) % 6
    raise ValueError(nt)


def round_bf16(a, dst, src, tmp):
    a.e("v_cvt_pk_bf16_f32 %s, %s, %s" % (vr(tmp), vr(src), vr(src)))
    a.e("v_lshlrev_b32 %s, 16, %s" % (vr(dst), vr(tmp)))


def kernel_header(a, name):
    a.kslot = int(name[1])
    a.lines.append(".p2align 8")
    a.lines.append(".globl %s" % name)
    a.lines.append(".type %s,@function" % name)
    a.label(name)


def kernel_desc(name, nvgpr_arch, nagpr, nsgpr=96):
    acc = (nvgpr_arch + 3) // 4 * 4
    tot = acc + nagpr if nagpr else nvgpr_arch
    return """.amdhsa_kernel %s
  .amdhsa_next_free_vgpr %d
  .amdhsa_next_free_sgpr %d
  .amdhsa_accum_offset %d
  .amdhsa_group_segment_fixed_size 0
  .amdhsa_kernarg_size 88
  .amdhsa_user_sgpr_count 2
  .amdhsa_user_sgpr_kernarg_segment_ptr 1
  .amdhsa_system_sgpr_workgroup_id_x 1
.end_amdhsa_kernel
""" % (name, tot, nsgpr, acc)


def emit_prefetch(a, key, nbytes, nwg_per_xcd, s_srd, s_t0, s_w, v_lane, v_t, nwaves=4):
    if 'pf' not in ABL:
        return
    per_wg = (nbytes + nwg_per_xcd - 1) // nwg_per_xcd
    per_wave = (per_wg + nwaves - 1) // nwaves
    per_wave = (per_wave + 8191) // 8192 * 8192
    a.e("s_load_dwordx2 s[%d:%d], s[0:1], %d" % (s_srd, s_srd + 1, KA[key]))
    a.e("s_lshr_b32 s%d, s2, 3" % s_t0)
    a.e("s_mul_i32 s%d, s%d, %d" % (s_t0, s_t0, nwaves))
    a.e("s_add_u32 s%d, s%d, s%d" % (s_t0, s_t0, s_w))
    a.e("s_mul_i32 s%d, s%d, %d" % (s_t0, s_t0, per_wave))
    a.e("v_lshlrev_b32 v%d, 7, v%d" % (v_t, v_lane))
    a.e("v_add_u32 v%d, s%d, v%d" % (v_t, s_t0, v_t))
    a.e("s_waitcnt lgkmcnt(0)")
    a.lg = []
    a.e("s_and_b32 s%d, s%d, 0xffff" % (s_srd + 1, s_srd + 1))
    a.e("s_mov_b32 s%d, 0x%x" % (s_srd + 2, nbytes))
    a.e("s_mov_b32 s%d, 0x00020000" % (s_srd + 3))
    for i in range(per_wave // 8192):
        a.e("s_mov_b32 s%d, %d" % (s_t0, i * 8192))
        a.vmem("buffer_load_dword v%d, v%d, s[%d:%d], s%d offen" % (v_t + 1, v_t, s_srd, s_srd + 3, s_t0), 'PF')


def emit_b_src(a, nt, N, gpr, T, vG, dst, s_magic, s_n2):
    a.e("v_mul_lo_u32 v%d, v%d, s%d" % (T + 1, vG, s_magic))
    a.e("v_lshrrev_b32 v%d, 16, v%d" % (T + 1, T + 1))
    a.e("v_mul_u32_u24 v%d, %d, v%d" % (T + 2, gpr, T + 1))
    a.e("v_sub_u32 v%d, v%d, v%d" % (T + 2, vG, T + 2))
    a.e("v_lshrrev_b32 v%d, 1, v%d" % (T + 3, T + 2))
    a.e("v_and_b32 v%d, 1, v%d" % (T + 2, T + 2))
    a.e("v_and_b32 v%d, 7, v%d" % (T + 4, T + 1))
    if nt == 8:
        a.e("v_xor_b32 v%d, v%d, v%d" % (T + 3, T + 3, T + 4))
    elif nt == 6:
        a.e("v_lshrrev_b32 v%d, 2, v%d" % (T + 4, T + 4))
        a.e("v_sub_u32 v%d, v%d, v%d" % (T + 3, T + 3, T + 4))
        a.e("v_add_u32 v%d, 6, v%d" % (T + 4, T + 3))
        a.e("v_min_u32 v%d, v%d, v%d" % (T + 3, T + 3, T + 4))
    a.e("v_bfe_u32 v%d, v%d, 2, 2" % (T + 4, T + 1))
    a.e("v_bfe_u32 v%d, v%d, 4, 1" % (T + 5, T + 1))
    a.e("v_and_b32 v%d, 0x%x, v%d" % (T + 6, 0xffe3, T + 1))
    a.e("v_lshl_add_u32 v%d, v%d, 3, v%d" % (T + 6, T + 4, T + 6))
    a.e("v_lshl_add_u32 v%d, v%d, 2, v%d" % (T + 6, T + 5, T + 6))
    a.e("v_mul_lo_u32 v%d, v%d, s%d" % (T + 6, T + 6, s_n2))
    a.e("v_lshlrev_b32 v%d, 5, v%d" % (T + 3, T + 3))
    a.e("v_lshl_add_u32 v%d, v%d, 4, v%d" % (T + 3, T + 2, T + 3))
    a.e("v_add_u32 v%d, v%d, v%d" % (dst, T + 6, T + 3))


def emit_pack_path(a, first_wg, nwg):
    NW = 120
    NBAT = 16
    V_LANE, T, V_LS, V_L16, V_D = 1, 8, 16, 17, 20
    V_A = V_D + NBAT * 4
    S_WS, SRD_S, SRD_D = 4, 8, 12
    S_PW, S_U, S_CB, S_C, S_I, S_T0, S_T1, S_MG, S_N2 = 32, 33, 34, 35, 36, 37, 38, 39, 40
    L_done = a.newlabel("pkdone")
    a.e("s_load_dwordx2 s[%d:%d], s[0:1], %d" % (S_WS, S_WS + 1, KA['ws']))
    a.e("v_and_b32 v%d, 63, v0" % V_LANE)
    a.e("v_lshrrev_b32 v%d, 6, v0" % T)
    a.e("v_lshlrev_b32 v%d, 4, v%d" % (V_L16, V_LANE))
    a.e("v_readfirstlane_b32 s%d, v%d" % (S_PW, T))
    a.e("s_sub_u32 s%d, s2, %d" % (S_T0, first_wg))
    a.e("s_lshl_b32 s%d, s%d, 3" % (S_T0, S_T0))
    a.e("s_add_u32 s%d, s%d, s%d" % (S_PW, S_PW, S_T0))
    a.e("s_cmp_ge_u32 s%d, %d" % (S_PW, NW))
    a.e("s_cbranch_scc1 %s" % L_done)
    for key in ('wo', 'w1', 'w2', 'w3', 'w4'):
        K, N, Nt, kc = PACK[key]
        nt = Nt // 16
        gpr = Nt // 8
        U = K * N * 2 // 1024
        UC = K * Nt * 2 // 1024
        UB = kc * Nt * 2 // 1024
        NCH = K // kc
        assert NW % UB == 0 and UC % UB == 0
        magic = (65536 + gpr - 1) // gpr
        mUB = (1 << 32) // UB + 1
        mNC = (1 << 32) // NCH + 1
        nq = U // UB
        for u in range(U + NBAT * NW):
            assert (u * mUB) >> 32 == u // UB
        for q in range(nq + 200):
            assert (q * mNC) >> 32 == q // NCH
        a.e("s_load_dwordx2 s[%d:%d], s[0:1], %d" % (SRD_S, SRD_S + 1, KA[key]))
        a.e("s_mov_b32 s%d, %d" % (S_MG, magic))
        a.e("s_mov_b32 s%d, %d" % (S_N2, N * 2))
        a.e("s_mul_hi_u32 s%d, s%d, 0x%x" % (S_T0, S_PW, mUB))
        a.e("s_mul_i32 s%d, s%d, %d" % (S_T0, S_T0, UB))
        a.e("s_sub_u32 s%d, s%d, s%d" % (S_I, S_PW, S_T0))
        a.e("s_lshl_b32 s%d, s%d, 6" % (S_I, S_I))
        a.e("v_add_u32 v%d, s%d, v%d" % (T, S_I, V_LANE))
        emit_b_src(a, nt, N, gpr, T, T, V_LS, S_MG, S_N2)
        a.e("s_waitcnt lgkmcnt(0)")
        a.e("s_and_b32 s%d, s%d, 0xffff" % (SRD_S + 1, SRD_S + 1))
        a.e("s_mov_b32 s%d, 0x%x" % (SRD_S + 2, K * N * 2))
        a.e("s_mov_b32 s%d, 0x00020000" % (SRD_S + 3))
        build_srd(a, SRD_D, S_WS, WS_PW[key], K * N * 2)
        a.e("s_mov_b32 s%d, s%d" % (S_U, S_PW))
        nb = min(NBAT, (U + NW - 1) // NW)
        L = a.newlabel("pk")
        a.label(L)
        for b in range(nb):
            a.e("s_add_u32 s%d, s%d, %d" % (S_T1, S_U, b * NW))
            a.e("s_mul_hi_u32 s%d, s%d, 0x%x" % (S_C, S_T1, mUB))
            a.e("s_mul_hi_u32 s%d, s%d, 0x%x" % (S_CB, S_C, mNC))
            a.e("s_mul_i32 s%d, s%d, %d" % (S_T0, S_CB, NCH))
            a.e("s_sub_u32 s%d, s%d, s%d" % (S_C, S_C, S_T0))
            a.e("s_mul_i32 s%d, s%d, %d" % (S_C, S_C, kc * N * 2))
            a.e("s_mul_i32 s%d, s%d, %d" % (S_CB, S_CB, Nt * 2))
            a.e("s_add_u32 s%d, s%d, s%d" % (S_C, S_C, S_CB))
            a.e("s_lshl_b32 s%d, s%d, 10" % (S_T1, S_T1))
            a.e("v_add_u32 v%d, s%d, v%d" % (V_A + 2 * b, S_C, V_LS))
            a.e("v_add_u32 v%d, s%d, v%d" % (V_A + 2 * b + 1, S_T1, V_L16))
            a.e("buffer_load_dwordx4 %s, v%d, s[%d:%d], 0 offen" % (vr(V_D + b * 4, 4), V_A + 2 * b, SRD_S, SRD_S + 3))
        for b in range(nb):
            a.e("s_waitcnt vmcnt(%d)" % (nb - 1))
            a.e("buffer_store_dwordx4 %s, v%d, s[%d:%d], 0 offen" % (vr(V_D + b * 4, 4), V_A + 2 * b + 1, SRD_D, SRD_D + 3))
        a.e("s_add_u32 s%d, s%d, %d" % (S_U, S_U, nb * NW))
        a.e("s_cmp_lt_u32 s%d, %d" % (S_U, U))
        a.e("s_cbranch_scc1 %s" % L)
    a.label(L_done)
    a.e("s_endpgm")


def emit_pack_calc(a, s_w, v_lane, T, V_PD, V_PA, S0):
    S_PW, S_U, S_CB, S_C, S_I, S_T0, S_T1, S_MG, S_N2 = [S0 + i for i in range(9)]
    SRD_S = S0 + 12
    a.e("s_lshl_b32 s%d, s2, 2" % S_PW)
    a.e("s_add_u32 s%d, s%d, s%d" % (S_PW, S_PW, s_w))
    for idx, (key, wofs) in enumerate((('wo', 0), ('w1', 800), ('w2', 1240), ('w3', 0), ('w4', 0))):
        K, N, Nt, kc = PACK[key]
        nt = Nt // 16
        gpr = Nt // 8
        U = K * N * 2 // 1024
        UB = kc * Nt * 2 // 1024
        NCH = K // kc
        magic = (65536 + gpr - 1) // gpr
        mUB = (1 << 32) // UB + 1
        mNC = (1 << 32) // NCH + 1
        for u in range(2100):
            assert (u * mUB) >> 32 == u // UB
            assert (u * mNC) >> 32 == u // NCH
        a.e("s_mov_b32 s%d, %d" % (S_MG, magic))
        a.e("s_mov_b32 s%d, %d" % (S_N2, N * 2))
        a.e("s_sub_u32 s%d, s%d, %d" % (S_U, S_PW, wofs))
        a.e("s_cmp_lt_u32 s%d, %d" % (S_U, U))
        a.e("s_cselect_b32 s%d, s%d, 0x100000" % (S_U, S_U))
        a.e("s_mul_hi_u32 s%d, s%d, 0x%x" % (S_C, S_U, mUB))
        a.e("s_mul_i32 s%d, s%d, %d" % (S_T0, S_C, UB))
        a.e("s_sub_u32 s%d, s%d, s%d" % (S_I, S_U, S_T0))
        a.e("s_lshl_b32 s%d, s%d, 6" % (S_I, S_I))
        a.e("v_add_u32 v%d, s%d, v%d" % (T, S_I, v_lane))
        emit_b_src(a, nt, N, gpr, T, T, T + 7, S_MG, S_N2)
        a.e("s_mul_hi_u32 s%d, s%d, 0x%x" % (S_CB, S_C, mNC))
        a.e("s_mul_i32 s%d, s%d, %d" % (S_T0, S_CB, NCH))
        a.e("s_sub_u32 s%d, s%d, s%d" % (S_C, S_C, S_T0))
        a.e("s_mul_i32 s%d, s%d, %d" % (S_C, S_C, kc * N * 2))
        a.e("s_mul_i32 s%d, s%d, %d" % (S_CB, S_CB, Nt * 2))
        a.e("s_add_u32 s%d, s%d, s%d" % (S_C, S_C, S_CB))
        a.e("s_cmp_lt_u32 s%d, %d" % (S_U, U))
        a.e("s_cselect_b32 s%d, s%d, 0x7ff00000" % (S_C, S_C))
        a.e("v_add_u32 v%d, s%d, v%d" % (V_PD + idx * 4, S_C, T + 7))
        a.e("s_lshl_b32 s%d, s%d, 10" % (S_T1, S_U))
        a.e("s_add_u32 s%d, s%d, 0x%x" % (S_T1, S_T1, WS_PW[key] - WS_PW['wo']))
        a.e("v_lshl_add_u32 v%d, v%d, 4, s%d" % (V_PA + idx, v_lane, S_T1))


def emit_pack_issue(a, V_PD, S0):
    SRD_S = S0 + 12
    for idx, key in enumerate(('wo', 'w1', 'w2', 'w3', 'w4')):
        K, N, Nt, kc = PACK[key]
        sp = {'wo': 24, 'w1': 84, 'w2': 86, 'w3': 88, 'w4': 90}[key]
        a.e("s_mov_b32 s%d, s%d" % (SRD_S, sp))
        a.e("s_and_b32 s%d, s%d, 0xffff" % (SRD_S + 1, sp + 1))
        a.e("s_mov_b32 s%d, 0x%x" % (SRD_S + 2, K * N * 2))
        a.e("s_mov_b32 s%d, 0x00020000" % (SRD_S + 3))
        a.vmem("buffer_load_dwordx4 %s, v%d, s[%d:%d], 0 offen" % (vr(V_PD + idx * 4, 4), V_PD + idx * 4, SRD_S, SRD_S + 3), 'PK')


def emit_pack_stores(a, s_ws, V_PD, V_PA, S0):
    SRD_D = S0 + 12
    build_srd(a, SRD_D, s_ws, WS_PW['wo'], WS_END - WS_PW['wo'])
    a.wait_vm(['PK'])
    for idx in range(5):
        a.vmem("buffer_store_dwordx4 %s, v%d, s[%d:%d], 0 offen" % (vr(V_PD + idx * 4, 4), V_PA + idx, SRD_D, SRD_D + 3), 'PS')


GELU_C1 = -2.0 * 0.7978845608028654 * 1.4426950408889634
GELU_C2 = GELU_C1 * 0.044715


def gelu_inplace(a, x, t1, t2, s_c1, s_c2):
    a.e("v_mul_f32 %s, %s, %s" % (vr(t1), vr(x), vr(x)))
    a.e("v_mov_b32 %s, %s" % (vr(t2), sr(s_c1)))
    a.e("v_fma_f32 %s, %s, %s, %s" % (vr(t1), vr(t1), sr(s_c2), vr(t2)))
    a.e("v_mul_f32 %s, %s, %s" % (vr(t1), vr(t1), vr(x)))
    a.e("v_exp_f32 %s, %s" % (vr(t1), vr(t1)))
    a.e("s_nop 0")
    a.e("v_add_f32 %s, 1.0, %s" % (vr(t1), vr(t1)))
    a.e("v_rcp_f32 %s, %s" % (vr(t1), vr(t1)))
    a.e("s_nop 0")
    a.e("v_mul_f32 %s, %s, %s" % (vr(x), vr(x), vr(t1)))


def gen_gemm(name, K, N, Mt, Nt, a_src, w_key, ln, epi, kc, shift=False, nbuf=None, LA=None, pf=None, packwg=0, early=False, roll=False):
    a = Asm()
    packed = w_key in PACK
    if packed:
        assert PACK[w_key] == (K, N, Nt, kc)
    mt = Mt // 64
    nt = Nt // 16
    WR = Mt // 4
    P = Nt * 2
    PA = kc * 2
    ABYTES = Mt * PA
    BBYTES = kc * P
    BREG = (BBYTES + 4095) // 4096 * 4096
    CH = ABYTES + BREG
    nch = K // kc
    kpc = kc // 32
    RB = S // Mt
    CB = N // Nt
    ntiles = RB * CB
    if nbuf is None:
        nbuf = min(nch, (156 * 1024) // CH)
    if LA is None:
        LA = nbuf - 1 if nbuf < nch else nbuf
        if early and nbuf < nch and 'safe' in ABL:
            LA = nbuf - 2
    MISC = nbuf * CH
    CSL = MISC
    ABL_ = MISC + 1024
    lds_bytes = MISC + 1024 + Mt * 8
    pitchA = K * 2
    nA = ABYTES // 4096
    nB = BREG // 4096
    assert ABYTES % 4096 == 0 and (BBYTES % 4096 == 0 or packed)
    lpr = kc // 8
    rpi = 64 // lpr
    gpr = Nt // 8
    ROT = 1 if nt == 5 else 2
    NCS = 2
    nS = nA

    V_LANE, V_L15, V_G = 1, 2, 3
    nxt = 4
    nset = (MISC + 65535) // 65536
    if roll:
        nset = 2
    V_B = nxt; nxt += nt * nset
    V_AR = nxt; nxt += kpc * nset
    V_T = nxt; nxt += 12
    nxt = (nxt + 3) // 4 * 4
    V_ONES = nxt; nxt += 4
    NF = int(os.environ.get('NF', '6'))
    if roll:
        NF = {8: 8, 6: 6, 5: 5}[nt]
        assert (kpc * nt) % NF == 0 and kpc % 2 == 0
    V_BF = nxt; nxt += NF * 4
    V_AF = nxt; nxt += 2 * mt * 4
    V_CS = nxt; nxt += nt * 4
    V_E = nxt; nxt += 24
    V_AL = nxt; nxt += 4 * mt
    V_BE = nxt; nxt += 4 * mt
    V_ADMA = V_B
    V_BDMA = V_B + nA
    V_SA = V_BDMA + nB
    assert nA + nB + 1 <= nt * nset + kpc * nset
    V_SD = V_BF
    V_SS = V_CS
    assert nS * 4 <= NF * 4 + 2 * mt * 4 and 2 * nS <= nt * 4
    EG = Mt * gpr
    nE = (EG + 511) // 512
    if epi == 'qkv':
        nE = 0
    V_EO = nxt; nxt += nE
    V_EL = nxt; nxt += nE
    nxt = (nxt + 3) // 4 * 4
    V_R1 = nxt; nxt += 4 * nE if epi in ('res', 'x1', 'out') else 0
    V_R2 = nxt; nxt += 4 * nE if epi in ('out',) else 0
    V_RS = nxt; nxt += 2 * nE if epi == 'x1' else 0
    nv = nxt
    A_ACC = 0
    A_CS = mt * nt * 4
    A_SM = A_CS + NCS * 4
    A_GR = A_SM + mt * 4
    nagpr = A_GR + mt * 4 if ln else A_CS
    assert (nv + 3) // 4 * 4 + nagpr <= 256, (name, nv, nagpr)

    S_WS, S_P = 4, 6
    SRD_A, SRD_W, SRD_O, SRD_R1, SRD_R2, SRD_ST = 8, 12, 16, 20, 24, 28
    S_W, S_RB, S_CB, S_ROW0, S_COL0, S_T0, S_T1, S_LA, S_LB, S_KA, S_KB = 32, 33, 34, 35, 36, 37, 38, 39, 40, 41, 42
    S_W8 = 43
    S_EX = 44
    S_SEC = 46
    S_C2 = 47
    S_TT = 48
    S_WR0 = 56 if 'stamp' not in ABL else 84

    kernel_header(a, name)
    L_end = name + "_end"
    a.e("s_cmp_ge_u32 s2, %d" % (ntiles + packwg))
    a.e("s_cbranch_scc1 %s" % L_end)
    if packwg:
        a.e("s_cmp_ge_u32 s2, %d" % ntiles)
        a.e("s_cbranch_scc1 %s_pack" % name)
    a.stamp(0)
    a.e("s_load_dwordx2 s[%d:%d], s[0:1], %d" % (S_WS, S_WS + 1, KA['ws']))
    if not packed:
        a.e("s_load_dwordx2 s[%d:%d], s[0:1], %d" % (SRD_W, SRD_W + 1, KA[w_key]))
    if a_src[0] == 'in':
        a.e("s_load_dwordx2 s[%d:%d], s[0:1], %d" % (SRD_A, SRD_A + 1, KA[a_src[1]]))
    if epi == 'res':
        a.e("s_load_dwordx2 s[%d:%d], s[0:1], %d" % (SRD_R1, SRD_R1 + 1, KA['x']))
    if epi == 'out':
        a.e("s_load_dwordx2 s[%d:%d], s[0:1], %d" % (SRD_O, SRD_O + 1, KA['out']))
    a.e("s_and_b32 s%d, s2, 7" % S_T0)
    a.e("s_lshr_b32 s%d, s2, 3" % S_T1)
    rbx = RB // 8
    if CB in (8, 16):
        sh = 3 if CB == 8 else 4
        a.e("s_lshr_b32 s%d, s%d, %d" % (S_RB, S_T1, sh))
        a.e("s_and_b32 s%d, s%d, %d" % (S_CB, S_T1, CB - 1))
    else:
        assert rbx == 2
        a.e("s_cmp_ge_u32 s%d, %d" % (S_T1, CB))
        a.e("s_cselect_b32 s%d, 1, 0" % S_RB)
        a.e("s_mul_i32 s%d, s%d, %d" % (S_CB, S_RB, CB))
        a.e("s_sub_u32 s%d, s%d, s%d" % (S_CB, S_T1, S_CB))
    a.e("s_mul_i32 s%d, s%d, %d" % (S_T0, S_T0, rbx))
    a.e("s_add_u32 s%d, s%d, s%d" % (S_RB, S_RB, S_T0))
    a.e("s_mul_i32 s%d, s%d, %d" % (S_ROW0, S_RB, Mt))
    a.e("s_mul_i32 s%d, s%d, %d" % (S_COL0, S_CB, Nt))
    a.e("v_and_b32 v%d, 63, v0" % V_LANE)
    a.e("v_lshrrev_b32 v%d, 6, v0" % V_T)
    a.e("v_and_b32 v%d, 15, v0" % V_L15)
    a.e("v_bfe_u32 v%d, v0, 4, 2" % V_G)
    a.e("v_readfirstlane_b32 s%d, v%d" % (S_W8, V_T))
    T = V_T
    lsh = {16: 4, 8: 3, 4: 2}[lpr]
    magic = (65536 + gpr - 1) // gpr
    for G in range(max(kc * gpr, nE * 512)):
        assert (G * magic) >> 16 == G // gpr
    PT = P + 16
    opitch = N * 2
    L_cons = name + "_cons"
    L_p2 = name + "_phase2"
    a.e("s_and_b32 s%d, s%d, 3" % (S_W, S_W8))
    a.e("s_mul_i32 s%d, s%d, %d" % (S_WR0, S_W, WR))
    a.e("s_cmp_lt_u32 s%d, 4" % S_W8)
    a.e("s_cbranch_scc1 %s" % L_cons)

    def out_srds():
        if epi == 'qkv':
            build_srd(a, SRD_O, S_WS, WS_Q, WS_O - WS_Q)
        elif epi == 'res':
            build_srd(a, SRD_O, S_WS, WS_H, S * D * 2)
            a.e("s_and_b32 s%d, s%d, 0xffff" % (SRD_R1 + 1, SRD_R1 + 1))
            a.e("s_mov_b32 s%d, 0x%x" % (SRD_R1 + 2, S * D * 2))
            a.e("s_mov_b32 s%d, 0x00020000" % (SRD_R1 + 3))
        elif epi == 'gelu':
            build_srd(a, SRD_O, S_WS, WS_HG if N == D else WS_G, S * N * 2)
            if ln == 2:
                build_srd(a, SRD_ST, S_WS, WS_ST, S * 8)
        elif epi == 'x1':
            build_srd(a, SRD_O, S_WS, WS_X1, S * D * 2)
            build_srd(a, SRD_R1, S_WS, WS_H, S * D * 2)
            build_srd(a, SRD_ST, S_WS, WS_ST, S * 8)
        elif epi == 'out':
            a.e("s_and_b32 s%d, s%d, 0xffff" % (SRD_O + 1, SRD_O + 1))
            a.e("s_mov_b32 s%d, 0x%x" % (SRD_O + 2, S * D * 2))
            a.e("s_mov_b32 s%d, 0x00020000" % (SRD_O + 3))
            build_srd(a, SRD_R1, S_WS, WS_X1, S * D * 2)
            build_srd(a, SRD_R2, S_WS, WS_H, S * D * 2)

    def e_setup():
        a.e("s_mov_b32 s%d, %d" % (S_T1, magic))
        a.e("s_mul_i32 s%d, s%d, %d" % (S_T0, S_W8, nE * 64))
        for e_ in range(nE):
            a.e("v_add_u32 v%d, s%d, v%d" % (T, S_T0, V_LANE))
            if e_:
                a.e("v_add_u32 v%d, %d, v%d" % (T, e_ * 64, T))
            a.e("v_mul_lo_u32 v%d, v%d, s%d" % (T + 1, T, S_T1))
            a.e("v_lshrrev_b32 v%d, 16, v%d" % (T + 1, T + 1))
            a.e("v_mul_u32_u24 v%d, %d, v%d" % (T + 2, gpr, T + 1))
            a.e("v_sub_u32 v%d, v%d, v%d" % (T + 2, T, T + 2))
            a.e("v_mul_u32_u24 v%d, %d, v%d" % (T + 3, PT, T + 1))
            a.e("v_lshl_add_u32 v%d, v%d, 4, v%d" % (V_EL + e_, T + 2, T + 3))
            a.e("v_add_u32 v%d, s%d, v%d" % (T + 3, S_ROW0, T + 1))
            if epi == 'x1':
                a.e("v_lshlrev_b32 v%d, 3, v%d" % (V_RS + 2 * e_, T + 3))
            a.e("v_mul_u32_u24 v%d, %d, v%d" % (T + 3, opitch, T + 3))
            a.e("v_lshl_add_u32 v%d, v%d, 4, v%d" % (T + 3, T + 2, T + 3))
            a.e("v_lshl_add_u32 v%d, s%d, 1, v%d" % (V_EO + e_, S_COL0, T + 3))
            if nE * 512 > EG:
                a.e("v_cmp_le_u32 vcc, %d, v%d" % (EG, T))
                a.e("v_mov_b32 v%d, 0x7fffff00" % (T + 4))
                a.e("v_mov_b32 v%d, 0" % (T + 5))
                a.e("v_cndmask_b32 v%d, v%d, v%d, vcc" % (V_EO + e_, V_EO + e_, T + 4))
                if epi == 'x1':
                    a.e("v_cndmask_b32 v%d, v%d, v%d, vcc" % (V_RS + 2 * e_, V_RS + 2 * e_, T + 4))
                a.e("v_cndmask_b32 v%d, v%d, v%d, vcc" % (V_EL + e_, V_EL + e_, T + 5))

    def res_loads():
        if epi in ('res', 'x1', 'out'):
            for e_ in range(nE):
                a.vmem("buffer_load_dwordx4 %s, v%d, s[%d:%d], 0 offen" % (
                    vr(V_R1 + e_ * 4, 4), V_EO + e_, SRD_R1, SRD_R1 + 3), 'R')
        if epi == 'out':
            for e_ in range(nE):
                a.vmem("buffer_load_dwordx4 %s, v%d, s[%d:%d], 0 offen" % (
                    vr(V_R2 + e_ * 4, 4), V_EO + e_, SRD_R2, SRD_R2 + 3), 'R')
        if epi == 'x1':
            for e_ in range(nE):
                a.vmem("buffer_load_dwordx2 %s, v%d, s[%d:%d], 0 offen" % (
                    vr(V_RS + e_ * 2, 2), V_RS + e_ * 2, SRD_ST, SRD_ST + 3), 'R')

    a.e("v_lshrrev_b32 v%d, %d, v%d" % (T, lsh, V_LANE))
    a.e("v_and_b32 v%d, %d, v%d" % (T + 1, lpr - 1, V_LANE))
    a.e("v_add_u32 v%d, s%d, v%d" % (T, S_WR0, T))
    assert nA * rpi == WR
    a.e("s_mov_b32 s%d, %d" % (S_T1, pitchA))
    for i in range(nA):
        a.e("v_add_u32 v%d, %d, v%d" % (T + 2, i * rpi, T))
        if lpr == 16:
            a.e("v_and_b32 v%d, 15, v%d" % (T + 3, T + 2))
        elif lpr == 8:
            a.e("v_bfe_u32 v%d, v%d, 1, 3" % (T + 3, T + 2))
        else:
            a.e("v_bfe_u32 v%d, v%d, 3, 1" % (T + 3, T + 2))
            a.e("v_lshlrev_b32 v%d, 1, v%d" % (T + 3, T + 3))
        a.e("v_xor_b32 v%d, v%d, v%d" % (T + 3, T + 3, T + 1))
        a.e("v_add_u32 v%d, s%d, v%d" % (T + 2, S_ROW0, T + 2))
        a.e("v_mul_lo_u32 v%d, v%d, s%d" % (T + 2, T + 2, S_T1))
        a.e("v_lshl_add_u32 v%d, v%d, 4, v%d" % (V_ADMA + i, T + 3, T + 2))
    if packed:
        a.e("s_mul_i32 s%d, s%d, %d" % (S_T0, S_CB, K * Nt * 2))
        a.e("s_mul_i32 s%d, s%d, %d" % (S_T1, S_W, nB * 1024))
        a.e("s_add_u32 s%d, s%d, s%d" % (S_T0, S_T0, S_T1))
        a.e("v_lshl_add_u32 v%d, v%d, 4, s%d" % (V_BDMA, V_LANE, S_T0))
    else:
        a.e("s_mov_b32 s%d, %d" % (S_T1, magic))
        a.e("s_mul_i32 s%d, s%d, %d" % (S_T0, S_W, nB * 64))
        a.e("v_add_u32 v%d, s%d, v%d" % (T + 7, S_T0, V_LANE))
        a.e("s_lshl_b32 s%d, s%d, 1" % (S_T0, S_COL0))
        a.e("s_mov_b32 s%d, %d" % (S_KB, N * 2))
        for i in range(nB):
            a.e("v_add_u32 v%d, %d, v%d" % (T, i * 64, T + 7))
            emit_b_src(a, nt, N, gpr, T, T, V_BDMA + i, S_T1, S_KB)
            a.e("v_add_u32 v%d, s%d, v%d" % (V_BDMA + i, S_T0, V_BDMA + i))
    a.e("s_waitcnt lgkmcnt(0)")
    if packed:
        build_srd(a, SRD_W, S_WS, WS_PW[w_key], K * N * 2)
    else:
        a.e("s_and_b32 s%d, s%d, 0xffff" % (SRD_W + 1, SRD_W + 1))
        a.e("s_mov_b32 s%d, 0x%x" % (SRD_W + 2, K * N * 2))
        a.e("s_mov_b32 s%d, 0x00020000" % (SRD_W + 3))
    if a_src[0] == 'in':
        a.e("s_and_b32 s%d, s%d, 0xffff" % (SRD_A + 1, SRD_A + 1))
        a.e("s_mov_b32 s%d, 0x%x" % (SRD_A + 2, S * K * 2))
        a.e("s_mov_b32 s%d, 0x00020000" % (SRD_A + 3))
    else:
        build_srd(a, SRD_A, S_WS, a_src[1], S * K * 2)
    a.e("s_mul_i32 s%d, s%d, %d" % (S_LA, S_W, nA * 1024))
    a.e("s_mul_i32 s%d, s%d, %d" % (S_LB, S_W, nB * 1024))
    a.e("s_mov_b32 s%d, 0x7ff00000" % S_SEC)

    def dma_a(c):
        buf = c % nbuf
        a.e("s_mov_b32 s%d, 0x%x" % (S_KA, c * kc * 2))
        for i in range(nA):
            src = V_ADMA + i
            if shift:
                k0 = c * kc
                g0 = k0 // 160
                g1 = (k0 + kc - 1) // 160
                sh = [-1, 1, -2, 2]
                if g0 == g1:
                    a.e("v_add_u32 v%d, 0x%x, v%d" % (T + 4, (sh[g0] * pitchA) & 0xffffffff, src))
                else:
                    thr = (g1 * 160 - k0) // 8
                    a.e("v_bfe_u32 v%d, v%d, 4, %d" % (T + 5, src, lsh))
                    a.e("v_cmp_gt_u32 vcc, %d, v%d" % (thr, T + 5))
                    a.e("v_add_u32 v%d, 0x%x, v%d" % (T + 4, (sh[g0] * pitchA) & 0xffffffff, src))
                    a.e("v_add_u32 v%d, 0x%x, v%d" % (T + 5, (sh[g1] * pitchA) & 0xffffffff, src))
                    a.e("v_cndmask_b32 v%d, v%d, v%d, vcc" % (T + 4, T + 5, T + 4))
                src = T + 4
            a.e("s_add_u32 m0, s%d, 0x%x" % (S_LA, buf * CH + i * 1024))
            a.e("s_nop 0")
            a.vmem("buffer_load_dwordx4 v%d, s[%d:%d], s%d offen lds" % (src, SRD_A, SRD_A + 3, S_KA), ('A', c))

    def dma_b(c):
        buf = c % nbuf
        if not packed:
            a.e("s_mov_b32 s%d, 0x%x" % (S_KB, c * kc * N * 2))
        for i in range(nB):
            a.e("s_add_u32 m0, s%d, 0x%x" % (S_LB, buf * CH + ABYTES + i * 1024))
            if packed:
                if BBYTES != BREG:
                    a.e("s_cmp_lt_u32 s%d, %d" % (S_LB, BBYTES - i * 1024))
                    a.e("s_cselect_b32 s%d, 0x%x, s%d" % (S_KB, c * BBYTES + i * 1024, S_SEC))
                else:
                    a.e("s_mov_b32 s%d, 0x%x" % (S_KB, c * BBYTES + i * 1024))
            else:
                a.e("s_nop 0")
            a.vmem("buffer_load_dwordx4 v%d, s[%d:%d], s%d offen lds" % (V_BDMA + (0 if packed else i), SRD_W, SRD_W + 3, S_KB), ('B', c))

    for c in range(0, LA):
        dma_a(c)
        dma_b(c)
    out_srds()
    e_setup()
    if roll:
        assert not shift and LA == nbuf - 1
        S_PB, S_PI, S_PA2, S_PB2 = 57, 58, 59, 60 if 'stamp' not in ABL else 85
        a.e("s_mov_b32 s%d, %d" % (S_PB, (LA % nbuf) * CH))
        a.e("s_mov_b32 s%d, 0" % S_PI)
        a.e("s_mov_b32 s%d, %d" % (S_KA, LA * kc * 2))
        a.e("s_mov_b32 s%d, %d" % (S_PB2, LA * (BBYTES if packed else kc * N * 2)))
        L = a.newlabel("pl")
        a.label(L)
        a.e("s_waitcnt vmcnt(%d)" % ((LA - 1) * (nA + nB)))
        a.e("s_barrier")
        a.e("s_add_u32 s%d, s%d, s%d" % (S_PA2, S_LA, S_PB))
        for i in range(nA):
            a.e("s_add_u32 m0, s%d, %d" % (S_PA2, i * 1024))
            a.e("s_nop 0")
            a.e("buffer_load_dwordx4 v%d, s[%d:%d], s%d offen lds" % (V_ADMA + i, SRD_A, SRD_A + 3, S_KA))
        a.e("s_add_u32 s%d, s%d, s%d" % (S_PA2, S_LB, S_PB))
        for i in range(nB):
            a.e("s_add_u32 m0, s%d, %d" % (S_PA2, ABYTES + i * 1024))
            if packed:
                assert BBYTES == BREG
                a.e("s_add_u32 s%d, s%d, %d" % (S_KB, S_PB2, i * 1024))
                a.e("buffer_load_dwordx4 v%d, s[%d:%d], s%d offen lds" % (V_BDMA, SRD_W, SRD_W + 3, S_KB))
            else:
                a.e("s_nop 0")
                a.e("buffer_load_dwordx4 v%d, s[%d:%d], s%d offen lds" % (V_BDMA + i, SRD_W, SRD_W + 3, S_PB2))
        a.e("s_add_u32 s%d, s%d, %d" % (S_KA, S_KA, kc * 2))
        a.e("s_add_u32 s%d, s%d, %d" % (S_PB2, S_PB2, BBYTES if packed else kc * N * 2))
        a.e("s_add_u32 s%d, s%d, %d" % (S_PB, S_PB, CH))
        a.e("s_cmp_eq_u32 s%d, %d" % (S_PB, nbuf * CH))
        a.e("s_cselect_b32 s%d, 0, s%d" % (S_PB, S_PB))
        a.e("s_add_u32 s%d, s%d, 1" % (S_PI, S_PI))
        a.e("s_cmp_lt_u32 s%d, %d" % (S_PI, nch - LA))
        a.e("s_cbranch_scc1 %s" % L)
        for c in range(nch - LA, nch):
            a.e("s_waitcnt vmcnt(%d)" % ((nch - 1 - c) * (nA + nB)))
            a.e("s_barrier")
        a.vm = []
        res_loads()
    for c in range(nch if not roll else 0):
        a.wait_vm([('A', c), ('B', c)])
        a.e("s_barrier")
        nc = c + LA
        if nc < nch:
            assert nc - nbuf < c
            dma_a(nc)
            dma_b(nc)
        if c == max(0, nch - 2):
            res_loads()
    a.e("s_barrier")
    a.e("s_branch %s" % L_p2)
    prod_vm = list(a.vm)

    a.vm = []
    a.lg = []
    a.label(L_cons)
    a.e("s_waitcnt lgkmcnt(0)")
    out_srds()
    for j in range(nt):
        if ln:
            a.e("s_mul_i32 s%d, s%d, %d" % (S_TT + j, S_W, ROT))
            a.e("s_add_u32 s%d, s%d, %d" % (S_TT + j, S_TT + j, j))
            a.e("s_cmp_ge_u32 s%d, %d" % (S_TT + j, nt))
            a.e("s_cselect_b32 s%d, %d, 0" % (S_T0, nt))
            a.e("s_sub_u32 s%d, s%d, s%d" % (S_TT + j, S_TT + j, S_T0))
        else:
            a.e("s_mov_b32 s%d, %d" % (S_TT + j, j))
    a.e("v_lshrrev_b32 v%d, 2, v%d" % (T, V_L15))
    a.e("v_lshl_add_u32 v%d, v%d, 2, v%d" % (T + 1, V_G, T))
    a.e("v_mul_u32_u24 v%d, %d, v%d" % (T + 2, P, T + 1))
    a.e("v_and_b32 v%d, 3, v%d" % (T + 3, V_L15))
    a.e("v_lshl_add_u32 v%d, v%d, 3, v%d" % (T + 2, T + 3, T + 2))
    a.e("v_add_u32 v%d, %d, v%d" % (T + 2, ABYTES, T + 2))
    a.e("v_and_b32 v%d, 7, v%d" % (T + 1, T + 1))
    for j in range(nt):
        if nt == 5:
            a.e("s_lshl_b32 s%d, s%d, 5" % (S_T0, S_TT + j))
            a.e("v_add_u32 v%d, s%d, v%d" % (V_B + j, S_T0, T + 2))
        elif nt == 8:
            a.e("v_xor_b32 v%d, s%d, v%d" % (T + 3, S_TT + j, T + 1))
            a.e("v_lshl_add_u32 v%d, v%d, 5, v%d" % (V_B + j, T + 3, T + 2))
        else:
            a.e("v_lshrrev_b32 v%d, 2, v%d" % (T + 3, T + 1))
            a.e("v_add_u32 v%d, s%d, v%d" % (T + 3, S_TT + j, T + 3))
            a.e("v_subrev_u32 v%d, 6, v%d" % (T + 4, T + 3))
            a.e("v_min_u32 v%d, v%d, v%d" % (T + 3, T + 3, T + 4))
            a.e("v_lshl_add_u32 v%d, v%d, 5, v%d" % (V_B + j, T + 3, T + 2))
    a.e("v_add_u32 v%d, s%d, v%d" % (T, S_WR0, V_L15))
    a.e("v_mul_u32_u24 v%d, %d, v%d" % (T, PA, T))
    if lpr == 16:
        a.e("v_xor_b32 v%d, v%d, v%d" % (T + 1, V_L15, V_G))
    elif lpr == 8:
        a.e("v_lshrrev_b32 v%d, 1, v%d" % (T + 1, V_L15))
        a.e("v_xor_b32 v%d, v%d, v%d" % (T + 1, T + 1, V_G))
    else:
        a.e("v_bfe_u32 v%d, v%d, 3, 1" % (T + 1, V_L15))
        a.e("v_lshlrev_b32 v%d, 1, v%d" % (T + 1, T + 1))
        a.e("v_xor_b32 v%d, v%d, v%d" % (T + 1, T + 1, V_G))
    for ks in range(kpc):
        a.e("v_xor_b32 v%d, %d, v%d" % (T + 2, ks * 4, T + 1))
        a.e("v_lshl_add_u32 v%d, v%d, 4, v%d" % (V_AR + ks, T + 2, T))
    for s_ in range(1, nset if not roll else 1):
        for j in range(nt):
            a.e("v_add_u32 v%d, 0x%x, v%d" % (V_B + s_ * nt + j, s_ * 65536, V_B + j))
        for ks in range(kpc):
            a.e("v_add_u32 v%d, 0x%x, v%d" % (V_AR + s_ * kpc + ks, s_ * 65536, V_AR + ks))
    for i in range(4):
        a.e("v_mov_b32 v%d, 0x3f803f80" % (V_ONES + i))
    for i in range(nagpr):
        a.e("v_accvgpr_write_b32 a%d, 0" % i)
    e_setup()

    S_BUF, S_DL, S_IT = 57, 58, 59

    def main_loop_rolled(swapped):
        F = kpc * nt
        PD = min(NF - 1, 5)
        fr = [(ks, t) for ks in range(kpc) for t in range(nt)]

        def rd(i, nxt_):
            ks, t = fr[i]
            st = 1 if nxt_ else 0
            tag = ('F', i)
            if t == 0:
                for mi in range(mt):
                    a.lds("ds_read_b128 %s, v%d offset:%d" % (
                        vr(V_AF + ((ks & 1) * mt + mi) * 4, 4), V_AR + st * kpc + ks, mi * 16 * PA), tag)
            reg = V_BF + (i % NF) * 4
            for r_ in range(2):
                a.lds("ds_read_b64_tr_b16 %s, v%d offset:%d" % (vr(reg + r_ * 2, 2), V_B + st * nt + t, (ks * 32 + r_ * 16) * P), tag)

        def comp(i):
            ks, t = fr[i]
            a.wait_lg([('F', i)])
            reg = V_BF + (i % NF) * 4
            for mi in range(mt):
                av = vr(V_AF + ((ks & 1) * mt + mi) * 4, 4)
                acc = ar(A_ACC + (mi * nt + t) * 4, 4)
                if swapped:
                    a.e("v_mfma_f32_16x16x32_bf16 %s, %s, %s, %s" % (acc, vr(reg, 4), av, acc))
                else:
                    a.e("v_mfma_f32_16x16x32_bf16 %s, %s, %s, %s" % (acc, av, vr(reg, 4), acc))
            if ln and t == 2:
                for mi in range(mt):
                    av = vr(V_AF + ((ks & 1) * mt + mi) * 4, 4)
                    a.e("v_mfma_f32_16x16x32_bf16 %s, %s, %s, %s" % (ar(A_SM + mi * 4, 4), vr(V_ONES, 4), av, ar(A_SM + mi * 4, 4)))
            if ln and t == 3:
                for mi in range(mt):
                    av = vr(V_AF + ((ks & 1) * mt + mi) * 4, 4)
                    a.e("v_mfma_f32_16x16x32_bf16 %s, %s, %s, %s" % (ar(A_GR + mi * 4, 4), av, av, ar(A_GR + mi * 4, 4)))
            if ln and t < NCS:
                acc = ar(A_CS + t * 4, 4)
                if swapped:
                    a.e("v_mfma_f32_16x16x32_bf16 %s, %s, %s, %s" % (acc, vr(reg, 4), vr(V_ONES, 4), acc))
                else:
                    a.e("v_mfma_f32_16x16x32_bf16 %s, %s, %s, %s" % (acc, vr(V_ONES, 4), vr(reg, 4), acc))

        assert PD <= nt
        a.e("s_mov_b32 s%d, 1" % S_BUF)
        a.e("s_mov_b32 s%d, 0" % S_IT)
        a.stamp(1)
        a.e("s_barrier")
        a.stamp(2)
        for i in range(PD):
            rd(i, False)
        L = a.newlabel("ml")
        a.label(L)
        a.e("s_cmp_eq_u32 s%d, %d" % (S_BUF, nbuf))
        a.e("s_cselect_b32 s%d, 0x%x, %d" % (S_DL, (-(nbuf - 1) * CH) & 0xffffffff, CH) if False else
            "s_mov_b32 s%d, %d" % (S_DL, CH))
        a.e("s_cbranch_scc0 %s_nw" % L)
        a.e("s_mov_b32 s%d, 0x%x" % (S_DL, (-(nbuf - 1) * CH) & 0xffffffff))
        a.e("s_mov_b32 s%d, 0" % S_BUF)
        a.label(L + "_nw")
        a.e("s_add_u32 s%d, s%d, 1" % (S_BUF, S_BUF))
        for j in range(PD):
            a.e("v_add_u32 v%d, s%d, v%d" % (V_B + nt + j, S_DL, V_B + j))
        a.e("v_add_u32 v%d, s%d, v%d" % (V_AR + kpc, S_DL, V_AR))
        for i in range(F):
            if i + PD < F:
                rd(i + PD, False)
            else:
                if i + PD == F:
                    a.e("s_barrier")
                rd(i + PD - F, True)
            comp(i)
        for j in range(nt):
            a.e("v_add_u32 v%d, s%d, v%d" % (V_B + j, S_DL, V_B + j))
        for ks in range(kpc):
            a.e("v_add_u32 v%d, s%d, v%d" % (V_AR + ks, S_DL, V_AR + ks))
        a.e("s_add_u32 s%d, s%d, 1" % (S_IT, S_IT))
        a.e("s_cmp_lt_u32 s%d, %d" % (S_IT, nch - 1))
        a.e("s_cbranch_scc1 %s" % L)
        res_loads()
        for i in range(F):
            if i + PD < F:
                rd(i + PD, False)
            comp(i)

    def main_loop(swapped):
        if roll:
            return main_loop_rolled(swapped)
        frs = [(c, ks, t) for c in range(nch) for ks in range(kpc) for t in range(nt)]
        if 'nocomp' in ABL:
            frs = []
            for c in range(nch):
                a.e("s_barrier")
        PD = NF - 1
        fpc = kpc * nt

        def chunk_begin(c):
            if c == 0:
                a.stamp(1)
            a.e("s_barrier")
            if c < 5:
                a.stamp(2 + c)
            if c == max(0, nch - 2):
                res_loads()

        def rd(idx):
            c, ks, t = frs[idx]
            buf = c % nbuf
            gk = c * kpc + ks
            if t == 0:
                for mi in range(mt):
                    off = buf * CH + mi * 16 * PA
                    st = off // 65536
                    a.lds("ds_read_b128 %s, v%d offset:%d" % (
                        vr(V_AF + ((gk & 1) * mt + mi) * 4, 4), V_AR + st * kpc + ks, off % 65536), ('F', idx))
            reg = V_BF + (idx % NF) * 4
            for r_ in range(2):
                off = buf * CH + (ks * 32 + r_ * 16) * P
                st = off // 65536
                a.lds("ds_read_b64_tr_b16 %s, v%d offset:%d" % (vr(reg + r_ * 2, 2), V_B + st * nt + t, off % 65536),
                      ('F', idx))
        issued = 0

        def issue_upto(lim):
            nonlocal issued
            while issued < min(lim, len(frs)):
                c, ks, t = frs[issued]
                if ks == 0 and t == 0:
                    chunk_begin(c)
                rd(issued)
                issued += 1
        for idx, (c, ks, t) in enumerate(frs):
            if early:
                issue_upto(idx + PD + 1)
            else:
                issue_upto(min(idx + PD + 1, (c + 1) * fpc))
            if 'nowait' in ABL:
                a.lg = [x for x in a.lg if x != ('F', idx)]
            else:
                a.wait_lg([('F', idx)])
            reg = V_BF + (idx % NF) * 4
            gk = c * kpc + ks
            for mi in range(mt):
                av = vr(V_AF + ((gk & 1) * mt + mi) * 4, 4)
                acc = ar(A_ACC + (mi * nt + t) * 4, 4)
                if swapped:
                    a.e("v_mfma_f32_16x16x32_bf16 %s, %s, %s, %s" % (acc, vr(reg, 4), av, acc))
                else:
                    a.e("v_mfma_f32_16x16x32_bf16 %s, %s, %s, %s" % (acc, av, vr(reg, 4), acc))
            if ln and t == 2:
                for mi in range(mt):
                    av = vr(V_AF + ((gk & 1) * mt + mi) * 4, 4)
                    a.e("v_mfma_f32_16x16x32_bf16 %s, %s, %s, %s" % (ar(A_SM + mi * 4, 4), vr(V_ONES, 4), av, ar(A_SM + mi * 4, 4)))
            if ln and t == 3:
                for mi in range(mt):
                    av = vr(V_AF + ((gk & 1) * mt + mi) * 4, 4)
                    a.e("v_mfma_f32_16x16x32_bf16 %s, %s, %s, %s" % (ar(A_GR + mi * 4, 4), av, av, ar(A_GR + mi * 4, 4)))
            if ln and t < NCS and 'nocs' not in ABL:
                acc = ar(A_CS + t * 4, 4)
                if swapped:
                    a.e("v_mfma_f32_16x16x32_bf16 %s, %s, %s, %s" % (acc, vr(reg, 4), vr(V_ONES, 4), acc))
                else:
                    a.e("v_mfma_f32_16x16x32_bf16 %s, %s, %s, %s" % (acc, vr(V_ONES, 4), vr(reg, 4), acc))

    def stats_fin():
        T = V_T
        a.e("s_mov_b32 s%d, 0x%x" % (S_T0, f32bits(1.0 / K)))
        a.e("s_mov_b32 s%d, 0x%x" % (S_T1, f32bits(1e-5)))
        a.e("v_and_b32 v%d, 3, v%d" % (T + 9, V_L15))
        a.e("v_lshrrev_b32 v%d, 2, v%d" % (T + 8, V_L15))
        a.e("v_cmp_eq_u32 s[%d:%d], v%d, v%d" % (S_EX, S_EX + 1, T + 8, V_G))
        a.e("v_add_u32 v%d, s%d, v%d" % (T + 10, S_WR0, V_L15))
        a.e("v_lshlrev_b32 v%d, 2, v%d" % (T + 11, T + 10))
        a.e("v_add_u32 v%d, 0x%x, v%d" % (T + 11, ABL_, T + 11))
        for mi in range(mt):
            sm, sq = V_BF, V_BF + 1
            mb, r1 = V_BF + 2, V_BF + 3
            a.e("v_accvgpr_read_b32 v%d, a%d" % (sm, A_SM + mi * 4))
            a.e("v_accvgpr_read_b32 v%d, a%d" % (sq, A_GR + mi * 4))
            for r_ in range(1, 4):
                a.e("v_accvgpr_read_b32 v%d, a%d" % (T + 6, A_GR + mi * 4 + r_))
                a.e("v_cmp_eq_u32 vcc, %d, v%d" % (r_, T + 9))
                a.e("s_nop 1")
                a.e("v_cndmask_b32 v%d, v%d, v%d, vcc" % (sq, sq, T + 6))
            a.e("v_mul_f32 v%d, s%d, v%d" % (sm, S_T0, sm))
            a.e("v_mul_f32 v%d, s%d, v%d" % (sq, S_T0, sq))
            a.e("v_fma_f32 v%d, -v%d, v%d, v%d" % (sq, sm, sm, sq))
            a.e("v_max_f32 v%d, 0, v%d" % (sq, sq))
            round_bf16(a, mb, sm, T)
            round_bf16(a, T + 1, sq, T)
            a.e("v_add_f32 v%d, s%d, v%d" % (T + 1, S_T1, T + 1))
            round_bf16(a, T + 1, T + 1, T)
            a.e("v_sqrt_f32 v%d, v%d" % (T + 1, T + 1))
            a.e("s_nop 0")
            round_bf16(a, T + 1, T + 1, T)
            a.e("v_rcp_f32 v%d, v%d" % (r1, T + 1))
            a.e("s_nop 0")
            al, be = T + 4, T + 5
            if ln == 1:
                a.e("v_mov_b32 v%d, v%d" % (al, r1))
                a.e("v_mul_f32 v%d, v%d, v%d" % (be, mb, r1))
            else:
                a.e("v_sub_f32 v%d, v%d, v%d" % (T + 2, sm, mb))
                a.e("v_mul_f32 v%d, v%d, v%d" % (T + 2, T + 2, r1))
                round_bf16(a, T + 2, T + 2, T)
                a.e("v_mul_f32 v%d, v%d, v%d" % (T + 3, sq, r1))
                a.e("v_mul_f32 v%d, v%d, v%d" % (T + 3, T + 3, r1))
                round_bf16(a, T + 3, T + 3, T)
                a.e("v_add_f32 v%d, s%d, v%d" % (T + 3, S_T1, T + 3))
                round_bf16(a, T + 3, T + 3, T)
                a.e("v_sqrt_f32 v%d, v%d" % (T + 3, T + 3))
                a.e("s_nop 0")
                round_bf16(a, T + 3, T + 3, T)
                a.e("v_rcp_f32 v%d, v%d" % (T + 3, T + 3))
                a.e("s_nop 0")
                a.e("v_mul_f32 v%d, v%d, v%d" % (al, r1, T + 3))
                a.e("v_mul_f32 v%d, v%d, v%d" % (T + 2, T + 2, T + 3))
                a.e("v_fma_f32 v%d, v%d, v%d, v%d" % (be, mb, al, T + 2))
            a.e("s_mov_b64 s[90:91], exec")
            a.e("s_mov_b64 exec, s[%d:%d]" % (S_EX, S_EX + 1))
            a.e("ds_write_b32 v%d, v%d offset:%d" % (T + 11, al, mi * 64))
            a.e("ds_write_b32 v%d, v%d offset:%d" % (T + 11, be, mi * 64 + Mt * 4))
            if ln == 2:
                lab = a.newlabel("st")
                a.e("s_cmp_eq_u32 s%d, 0" % S_CB)
                a.e("s_cbranch_scc0 %s" % lab)
                a.e("v_add_u32 v%d, s%d, v%d" % (T + 6, S_ROW0, T + 10))
                a.e("v_lshlrev_b32 v%d, 3, v%d" % (T + 6, T + 6))
                a.e("buffer_store_dwordx2 %s, v%d, s[%d:%d], 0 offen offset:%d" % (vr(mb, 2), T + 6, SRD_ST, SRD_ST + 3, mi * 128))
                a.label(lab)
            a.e("s_mov_b64 exec, s[90:91]")

    def post_loop(swapped):
        a.stamp(7)
        a.e("s_nop 7")
        a.e("s_nop 1")
        T = V_E
        if ln:
            if swapped:
                a.e("v_lshlrev_b32 v%d, 4, v%d" % (T, V_G))
                a.e("v_cmp_eq_u32 vcc, 0, v%d" % V_L15)
            else:
                a.e("v_lshlrev_b32 v%d, 2, v%d" % (T, V_L15))
                a.e("v_cmp_eq_u32 vcc, 0, v%d" % V_G)
            a.e("v_add_u32 v%d, 0x%x, v%d" % (T, CSL, T))
            for j in range(nt):
                a.e("s_lshl_b32 s%d, s%d, 6" % (S_T0, S_TT + j))
                a.e("v_add_u32 v%d, s%d, v%d" % (V_CS + j * 4 + 3, S_T0, T))
            a.e("s_and_saveexec_b64 s[%d:%d], vcc" % (S_EX, S_EX + 1))
            for j in range(NCS):
                if swapped:
                    for r_ in range(4):
                        a.e("v_accvgpr_read_b32 v%d, a%d" % (T + 4 + r_, A_CS + j * 4 + r_))
                    a.e("ds_write_b128 v%d, %s" % (V_CS + j * 4 + 3, vr(T + 4, 4)))
                else:
                    a.e("v_accvgpr_read_b32 v%d, a%d" % (T + 4, A_CS + j * 4))
                    a.e("ds_write_b32 v%d, v%d" % (V_CS + j * 4 + 3, T + 4))
            a.e("s_mov_b64 exec, s[%d:%d]" % (S_EX, S_EX + 1))
            stats_fin()
        a.wait_lg0()
        a.e("s_barrier")
        if ln:
            for j in range(nt):
                if swapped:
                    a.lds("ds_read_b128 %s, v%d" % (vr(V_CS + j * 4, 4), V_CS + j * 4 + 3))
                else:
                    a.lds("ds_read_b32 v%d, v%d" % (V_CS + j * 4, V_CS + j * 4 + 3))
            if swapped:
                a.e("v_add_u32 v%d, s%d, v%d" % (T, S_WR0, V_L15))
                a.e("v_lshlrev_b32 v%d, 2, v%d" % (T, T))
                a.e("v_add_u32 v%d, 0x%x, v%d" % (T, ABL_, T))
                for mi in range(mt):
                    a.lds("ds_read_b32 v%d, v%d offset:%d" % (V_AL + mi * 4, T, mi * 64))
                    a.lds("ds_read_b32 v%d, v%d offset:%d" % (V_BE + mi * 4, T, mi * 64 + Mt * 4))
            else:
                a.e("v_lshl_add_u32 v%d, v%d, 2, s%d" % (T, V_G, S_WR0))
                a.e("v_lshlrev_b32 v%d, 2, v%d" % (T, T))
                a.e("v_add_u32 v%d, 0x%x, v%d" % (T, ABL_, T))
                for mi in range(mt):
                    a.lds("ds_read_b128 %s, v%d offset:%d" % (vr(V_AL + mi * 4, 4), T, mi * 64))
                    a.lds("ds_read_b128 %s, v%d offset:%d" % (vr(V_BE + mi * 4, 4), T, mi * 64 + Mt * 4))
            a.wait_lg0()
        a.stamp(8)

    def acc_read(mi, j, dst):
        for r_ in range(4):
            a.e("v_accvgpr_read_b32 v%d, a%d" % (dst + r_, A_ACC + (mi * nt + j) * 4 + r_))

    def unpack(dst, src, n):
        for i in range(n):
            a.e("v_lshlrev_b32 v%d, 16, v%d" % (dst + 2 * i, src + i))
            a.e("v_and_b32 v%d, 0xffff0000, v%d" % (dst + 2 * i + 1, src + i))

    def pack(dst, src, n):
        for i in range(n):
            a.e("v_cvt_pk_bf16_f32 v%d, v%d, v%d" % (dst + i, src + 2 * i, src + 2 * i + 1))

    E = V_E + 4
    PTV = Mt * 2 + 16

    def phase1(swapped):
        if swapped:
            a.e("v_add_u32 v%d, s%d, v%d" % (V_E, S_WR0, V_L15))
            a.e("v_mul_u32_u24 v%d, %d, v%d" % (V_E, PT, V_E))
            a.e("v_lshl_add_u32 v%d, v%d, 3, v%d" % (V_E, V_G, V_E))
        else:
            a.e("v_mul_u32_u24 v%d, %d, v%d" % (V_E, PTV, V_L15))
            a.e("v_lshl_add_u32 v%d, v%d, 3, v%d" % (V_E, V_G, V_E))
            a.e("v_lshl_add_u32 v%d, s%d, 1, v%d" % (V_E, S_WR0, V_E))
        for j in range(nt):
            a.e("s_mul_i32 s%d, s%d, %d" % (S_T0, S_TT + j, 32 if swapped else 16 * PTV))
            a.e("v_add_u32 v%d, s%d, v%d" % (V_E + 1, S_T0, V_E))
            for mi in range(mt):
                W_ = E + (mi & 1) * 8
                acc_read(mi, j, W_)
                if ln:
                    for r_ in range(4):
                        a.e("v_mul_f32 v%d, v%d, v%d" % (W_ + r_, W_ + r_, V_AL + mi * 4 + (0 if swapped else r_)))
                    for r_ in range(4):
                        if swapped:
                            a.e("v_fma_f32 v%d, -v%d, v%d, v%d" % (W_ + r_, V_BE + mi * 4, V_CS + j * 4 + r_, W_ + r_))
                        else:
                            a.e("v_fma_f32 v%d, -v%d, v%d, v%d" % (W_ + r_, V_BE + mi * 4 + r_, V_CS + j * 4, W_ + r_))
                pack(W_ + 4, W_, 2)
                a.lds("ds_write_b64 v%d, %s offset:%d" % (V_E + 1, vr(W_ + 4, 2), mi * 16 * PT if swapped else mi * 32))
        a.wait_lg0()

    if epi == 'qkv':
        L_v = name + "_vpath"
        a.e("s_cmp_ge_u32 s%d, 10" % S_CB)
        a.e("s_cbranch_scc1 %s" % L_v)
        saved = (list(a.vm), list(a.lg))
        main_loop(True)
        post_loop(True)
        phase1(True)
        a.e("s_branch %s" % L_p2)
        a.label(L_v)
        a.vm, a.lg = saved
        main_loop(False)
        post_loop(False)
        phase1(False)
    else:
        main_loop(True)
        post_loop(True)
        phase1(True)

    a.label(L_p2)
    a.e("s_barrier")
    a.vm = [None] * 70
    T = V_E
    if epi == 'qkv':
        L_v2 = name + "_v2"
        a.e("s_cmp_ge_u32 s%d, 10" % S_CB)
        a.e("s_cbranch_scc1 %s" % L_v2)
        a.e("s_cmp_ge_u32 s%d, 5" % S_CB)
        a.e("s_cselect_b32 s%d, 640, 0" % S_T0)
        a.e("s_cselect_b32 s%d, 0x%x, 0" % (S_SEC, WS_K - WS_Q))
        a.e("s_sub_u32 s%d, s%d, s%d" % (S_T0, S_COL0, S_T0))
        a.e("s_mov_b32 s%d, 3277" % S_T1)
        a.e("v_and_b32 v%d, 31, v%d" % (T, V_LANE))
        a.e("v_lshrrev_b32 v%d, 5, v%d" % (T + 1, V_LANE))
        a.e("v_lshl_add_u32 v%d, s%d, 4, v%d" % (T + 1, S_W8, T + 1))
        a.e("v_mul_u32_u24 v%d, %d, v%d" % (T + 2, PT, T + 1))
        a.e("v_lshl_add_u32 v%d, v%d, 3, v%d" % (T + 2, T, T + 2))
        a.e("v_lshl_add_u32 v%d, v%d, 2, s%d" % (T, T, S_T0))
        a.e("v_mul_lo_u32 v%d, v%d, s%d" % (T + 3, T, S_T1))
        a.e("v_lshrrev_b32 v%d, 16, v%d" % (T + 3, T + 3))
        a.e("v_mul_u32_u24 v%d, 20, v%d" % (E, T + 3))
        a.e("v_sub_u32 v%d, v%d, v%d" % (T, T, E))
        a.e("v_lshlrev_b32 v%d, 11, v%d" % (T + 3, T + 3))
        a.e("v_add3_u32 v%d, v%d, v%d, s%d" % (T + 3, T + 3, T + 1, S_ROW0))
        a.e("v_mul_u32_u24 v%d, 40, v%d" % (T + 3, T + 3))
        a.e("v_lshl_add_u32 v%d, v%d, 1, v%d" % (T + 3, T, T + 3))
        a.e("v_add_u32 v%d, s%d, v%d" % (T + 3, S_SEC, T + 3))
        for e_ in range(8):
            a.lds("ds_read_b64 %s, v%d offset:%d" % (vr(E + e_ * 2, 2), T + 2, e_ * 2 * PT), ('e', e_))
        for e_ in range(8):
            a.wait_lg([('e', e_)])
            a.e("buffer_store_dwordx2 %s, v%d, s[%d:%d], 0 offen offset:%d" % (
                vr(E + e_ * 2, 2), T + 3, SRD_O, SRD_O + 3, e_ * 80))
        a.stamp(9)
        a.stamp_out(10, V_E)
        a.e("s_endpgm")
        a.label(L_v2)
        a.e("v_lshrrev_b32 v%d, 4, v%d" % (T, V_LANE))
        a.e("v_lshl_add_u32 v%d, s%d, 4, v%d" % (T, S_W8, T))
        a.e("v_mul_u32_u24 v%d, %d, v%d" % (T + 1, PTV, T))
        a.e("v_lshl_add_u32 v%d, v%d, 4, v%d" % (T + 1, V_L15, T + 1))
        a.e("s_sub_u32 s%d, s%d, 1280" % (S_T0, S_COL0))
        a.e("v_add_u32 v%d, s%d, v%d" % (T, S_T0, T))
        a.e("v_lshlrev_b32 v%d, 12, v%d" % (T, T))
        a.e("v_lshl_add_u32 v%d, v%d, 4, v%d" % (T, V_L15, T))
        a.e("s_lshl_b32 s%d, s%d, 1" % (S_T0, S_ROW0))
        a.e("s_add_u32 s%d, s%d, 0x%x" % (S_T0, S_T0, WS_VT - WS_Q))
        a.e("v_add_u32 v%d, s%d, v%d" % (T, S_T0, T))
        for e_ in range(4):
            a.lds("ds_read_b128 %s, v%d offset:%d" % (vr(E + e_ * 4, 4), T + 1, e_ * 4 * PTV), ('e', e_))
        for e_ in range(4):
            a.wait_lg([('e', e_)])
            a.e("buffer_store_dwordx4 %s, v%d, s[%d:%d], 0 offen" % (vr(E + e_ * 4, 4), T, SRD_O, SRD_O + 3))
            a.e("v_add_u32 v%d, 0x4000, v%d" % (T, T))
    else:
        for e_ in range(nE):
            a.lds("ds_read_b128 %s, v%d" % (vr(V_CS + e_ * 4, 4), V_EL + e_), ('e', e_))
        assert nE * 4 <= nt * 4
        if epi == 'gelu':
            a.e("s_mov_b32 s%d, 0x%x" % (S_C2, f32bits(GELU_C2)))
            a.e("v_mov_b32 v%d, 0x%x" % (V_E, f32bits(GELU_C1)))
        else:
            a.e("s_waitcnt vmcnt(0)")
        for e_ in range(nE):
            a.wait_lg([('e', e_)])
            src = V_CS + e_ * 4
            unpack(E, src, 4)
            if epi == 'gelu':
                for r_ in range(8):
                    a.e("v_mul_f32 v%d, v%d, v%d" % (E + 8 + r_, E + r_, E + r_))
                for r_ in range(8):
                    a.e("v_fma_f32 v%d, v%d, s%d, v%d" % (E + 8 + r_, E + 8 + r_, S_C2, V_E))
                for r_ in range(8):
                    a.e("v_mul_f32 v%d, v%d, v%d" % (E + 8 + r_, E + 8 + r_, E + r_))
                for r_ in range(8):
                    a.e("v_exp_f32 v%d, v%d" % (E + 8 + r_, E + 8 + r_))
                for r_ in range(8):
                    a.e("v_add_f32 v%d, 1.0, v%d" % (E + 8 + r_, E + 8 + r_))
                for r_ in range(8):
                    a.e("v_rcp_f32 v%d, v%d" % (E + 8 + r_, E + 8 + r_))
                for r_ in range(8):
                    a.e("v_mul_f32 v%d, v%d, v%d" % (E + r_, E + r_, E + 8 + r_))
            else:
                unpack(E + 8, V_R1 + e_ * 4, 4)
                if epi == 'x1':
                    for r_ in range(8):
                        a.e("v_sub_f32 v%d, v%d, v%d" % (E + 8 + r_, E + 8 + r_, V_RS + e_ * 2))
                    pack(E + 16, E + 8, 4)
                    unpack(E + 8, E + 16, 4)
                    for r_ in range(8):
                        a.e("v_mul_f32 v%d, v%d, v%d" % (E + 8 + r_, E + 8 + r_, V_RS + e_ * 2 + 1))
                    pack(E + 16, E + 8, 4)
                    unpack(E + 8, E + 16, 4)
                for r_ in range(8):
                    a.e("v_add_f32 v%d, v%d, v%d" % (E + r_, E + r_, E + 8 + r_))
                if epi == 'out':
                    pack(E + 16, E, 4)
                    unpack(E, E + 16, 4)
                    unpack(E + 8, V_R2 + e_ * 4, 4)
                    for r_ in range(8):
                        a.e("v_add_f32 v%d, v%d, v%d" % (E + r_, E + r_, E + 8 + r_))
            pack(src, E, 4)
            a.e("buffer_store_dwordx4 %s, v%d, s[%d:%d], 0 offen" % (vr(src, 4), V_EO + e_, SRD_O, SRD_O + 3))
        a.stamp(9)
        a.stamp_out(10, V_E)
    a.label(L_end)
    a.e("s_endpgm")
    if packwg:
        a.label(name + "_pack")
        emit_pack_path(a, ntiles, packwg)
    return a.lines, kernel_desc(name, nv, nagpr), ntiles + packwg, lds_bytes, 512


def gen_attn(name):
    a = Asm()
    KL = 0
    VL = 384 * 64
    PV = 800
    lds_bytes = VL + 23 * PV
    lds_bytes = (lds_bytes + 1023) // 1024 * 1024 + 1024

    V_LANE, V_L15, V_G = 1, 2, 3
    V_T = 4
    V_KA = 12
    V_VA = 14
    V_A = 16
    V_X16, V_X32, V_BS = 17, 18, 19
    V_Q = 20
    V_O = 28
    V_KF = 44
    V_VF = 60
    V_M = 76
    V_S = 80
    V_PD = V_S + 144
    V_PA = V_PD + 20
    nv = V_PA + 5
    S_WS = 4
    SRD_Q, SRD_K, SRD_V, SRD_O = 8, 12, 16, 20
    S_W, S_H, S_Q0, S_T0, S_T1, S_KS, S_C, S_EX = 32, 33, 34, 35, 36, 37, 38, 40

    kernel_header(a, name)
    L_end = name + "_end"
    a.e("s_cmp_ge_u32 s2, 512")
    a.e("s_cbranch_scc1 %s" % L_end)
    a.stamp(0)
    a.e("s_load_dwordx2 s[%d:%d], s[0:1], %d" % (S_WS, S_WS + 1, KA['ws']))
    a.e("s_load_dwordx2 s[24:25], s[0:1], 16")
    a.e("s_load_dwordx8 s[84:91], s[0:1], 32")
    a.e("s_and_b32 s%d, s2, 7" % S_T0)
    a.e("s_lshr_b32 s%d, s2, 3" % S_T1)
    a.e("s_lshr_b32 s%d, s%d, 1" % (S_H, S_T1))
    a.e("s_and_b32 s%d, s%d, 1" % (S_Q0, S_T1))
    a.e("s_lshl_b32 s%d, s%d, 1" % (S_T0, S_T0))
    a.e("s_add_u32 s%d, s%d, s%d" % (S_Q0, S_Q0, S_T0))
    a.e("s_lshl_b32 s%d, s%d, 7" % (S_Q0, S_Q0))
    a.e("v_and_b32 v%d, 63, v0" % V_LANE)
    a.e("v_lshrrev_b32 v%d, 6, v0" % V_T)
    a.e("v_and_b32 v%d, 15, v0" % V_L15)
    a.e("v_bfe_u32 v%d, v0, 4, 2" % V_G)
    a.e("v_readfirstlane_b32 s%d, v%d" % (S_W, V_T))
    a.e("s_waitcnt lgkmcnt(0)")
    build_srd(a, SRD_Q, S_WS, WS_Q, 32 * 2048 * 40)
    build_srd(a, SRD_K, S_WS, WS_K, 32 * 2048 * 40)
    build_srd(a, SRD_V, S_WS, WS_VT, 640 * 2048 * 2)
    build_srd(a, SRD_O, S_WS, WS_O, S * D * 2)
    T = V_T
    a.e("s_lshl_b32 s%d, s%d, 11" % (S_T0, S_H))
    a.e("s_add_u32 s%d, s%d, s%d" % (S_T0, S_T0, S_Q0))
    a.e("s_sub_u32 s%d, s%d, 256" % (S_T0, S_T0))
    a.e("s_mul_i32 s%d, s%d, 96" % (S_T1, S_W))
    a.e("s_add_u32 s%d, s%d, s%d" % (S_T0, S_T0, S_T1))
    a.e("s_mul_i32 s%d, s%d, 40" % (S_KS, S_T0))
    a.e("v_lshrrev_b32 v%d, 2, v%d" % (T, V_LANE))
    a.e("v_mul_u32_u24 v%d, 40, v%d" % (T, T))
    a.e("v_add_u32 v%d, s%d, v%d" % (T, S_KS, T))
    a.e("v_and_b32 v%d, 3, v%d" % (T + 1, V_LANE))
    a.e("v_mov_b32 v%d, 0x7fffff00" % (T + 6))
    a.e("v_lshl_add_u32 v%d, v%d, 4, v%d" % (T + 2, T + 1, T))
    a.e("v_cmp_eq_u32 vcc, 3, v%d" % (T + 1))
    a.e("v_xor_b32 v%d, 2, v%d" % (T + 1, T + 1))
    a.e("v_lshl_add_u32 v%d, v%d, 4, v%d" % (T + 3, T + 1, T))
    a.e("v_cndmask_b32 v%d, v%d, v%d, vcc" % (T + 2, T + 2, T + 6))
    a.e("v_cmp_eq_u32 vcc, 3, v%d" % (T + 1))
    a.e("s_mul_i32 s%d, s%d, 6144" % (S_T1, S_W))
    a.e("s_nop 0")
    a.e("v_cndmask_b32 v%d, v%d, v%d, vcc" % (T + 3, T + 3, T + 6))
    for i in range(6):
        a.e("s_add_u32 m0, s%d, %d" % (S_T1, KL + i * 1024))
        a.e("v_add_u32 v%d, %d, v%d" % (T + 4 + (i & 1), i * 640, T + 2 + (i & 1)))
        a.vmem("buffer_load_dwordx4 v%d, s[%d:%d], 0 offen lds" % (T + 4 + (i & 1), SRD_K, SRD_K + 3))
    a.e("s_lshl_b32 s%d, s%d, 11" % (S_T0, S_H))
    a.e("s_add_u32 s%d, s%d, s%d" % (S_T0, S_T0, S_Q0))
    a.e("s_lshl_b32 s%d, s%d, 5" % (S_T1, S_W))
    a.e("s_add_u32 s%d, s%d, s%d" % (S_T0, S_T0, S_T1))
    a.e("v_add_u32 v%d, s%d, v%d" % (T, S_T0, V_L15))
    a.e("v_mul_u32_u24 v%d, 40, v%d" % (T, T))
    a.e("v_lshl_add_u32 v%d, v%d, 4, v%d" % (T, V_G, T))
    a.vmem("buffer_load_dwordx4 %s, v%d, s[%d:%d], 0 offen" % (vr(V_Q, 4), T, SRD_Q, SRD_Q + 3), 'Q')
    a.vmem("buffer_load_dwordx4 %s, v%d, s[%d:%d], 0 offen offset:640" % (vr(V_Q + 4, 4), T, SRD_Q, SRD_Q + 3), 'Q')
    a.e("s_mul_i32 s%d, s%d, 20" % (S_T0, S_H))
    a.e("s_lshl_b32 s%d, s%d, 12" % (S_T0, S_T0))
    a.e("s_lshl_b32 s%d, s%d, 1" % (S_T1, S_Q0))
    a.e("s_add_u32 s%d, s%d, s%d" % (S_T0, S_T0, S_T1))
    a.e("s_sub_u32 s%d, s%d, 512" % (S_T0, S_T0))
    a.e("s_lshl_b32 s%d, s%d, 8" % (S_T1, S_W))
    a.e("s_mov_b32 s%d, 1311" % S_C)
    for G in range(1024):
        assert (G * 1311) >> 16 == G // 50
    for i in range(4):
        a.e("v_add_u32 v%d, s%d, v%d" % (T, S_T1, V_LANE))
        if i:
            a.e("v_add_u32 v%d, %d, v%d" % (T, i * 64, T))
        a.e("v_mul_lo_u32 v%d, v%d, s%d" % (T + 1, T, S_C))
        a.e("v_lshrrev_b32 v%d, 16, v%d" % (T + 1, T + 1))
        a.e("v_mul_u32_u24 v%d, 50, v%d" % (T + 2, T + 1))
        a.e("v_sub_u32 v%d, v%d, v%d" % (T + 2, T, T + 2))
        a.e("v_lshlrev_b32 v%d, 12, v%d" % (T + 3, T + 1))
        a.e("v_lshl_add_u32 v%d, v%d, 4, v%d" % (T + 3, T + 2, T + 3))
        a.e("v_add_u32 v%d, s%d, v%d" % (T + 3, S_T0, T + 3))
        a.e("v_cmp_le_u32 vcc, 20, v%d" % (T + 1))
        a.e("v_cmp_le_u32 s[%d:%d], 48, v%d" % (S_EX, S_EX + 1, T + 2))
        a.e("s_or_b64 vcc, vcc, s[%d:%d]" % (S_EX, S_EX + 1))
        a.e("v_mov_b32 v%d, 0x7fffff00" % (T + 4))
        a.e("s_lshl_b32 m0, s%d, 12" % S_W)
        a.e("v_cndmask_b32 v%d, v%d, v%d, vcc" % (T + 3, T + 3, T + 4))
        a.e("s_add_u32 m0, m0, %d" % (VL + i * 1024))
        a.e("s_nop 0")
        a.vmem("buffer_load_dwordx4 v%d, s[%d:%d], 0 offen lds" % (T + 3, SRD_V, SRD_V + 3), 'VD')
    a.stamp(1)
    a.stamp(2)
    a.e("v_lshrrev_b32 v%d, 2, v%d" % (T, V_L15))
    a.e("v_and_b32 v%d, 3, v%d" % (T + 1, V_L15))
    a.e("v_lshl_add_u32 v%d, v%d, 3, v%d" % (T, T, T + 1))
    a.e("v_bfe_u32 v%d, v%d, 4, 1" % (T + 1, T))
    a.e("v_lshlrev_b32 v%d, 1, v%d" % (T + 1, T + 1))
    a.e("v_xor_b32 v%d, v%d, v%d" % (T + 1, T + 1, V_G))
    a.e("v_lshlrev_b32 v%d, 6, v%d" % (T, T))
    a.e("v_lshl_add_u32 v%d, v%d, 4, v%d" % (T, T + 1, T))
    a.e("s_lshl_b32 s%d, s%d, 11" % (S_T0, S_W))
    a.e("v_add_u32 v%d, s%d, v%d" % (V_KA, S_T0, T))
    a.e("v_add_u32 v%d, 256, v%d" % (V_KA + 1, V_KA))
    a.e("v_mul_u32_u24 v%d, %d, v%d" % (T, PV, V_L15))
    a.e("v_lshl_add_u32 v%d, v%d, 4, v%d" % (T, V_G, T))
    a.e("s_lshl_b32 s%d, s%d, 6" % (S_T0, S_W))
    a.e("s_add_u32 s%d, s%d, %d" % (S_T0, S_T0, VL))
    a.e("v_add_u32 v%d, s%d, v%d" % (V_VA, S_T0, T))
    a.e("v_add_u32 v%d, 16, v%d" % (T, V_L15))
    a.e("v_add_u32 v%d, 17, v%d" % (T + 1, V_L15))
    a.e("v_min_u32 v%d, 22, v%d" % (T + 1, T + 1))
    a.e("v_cmp_gt_u32 vcc, 4, v%d" % V_L15)
    a.e("s_nop 1")
    a.e("v_cndmask_b32 v%d, v%d, v%d, vcc" % (T, T + 1, T))
    a.e("v_mul_u32_u24 v%d, %d, v%d" % (T, PV, T))
    a.e("v_lshl_add_u32 v%d, v%d, 4, v%d" % (T, V_G, T))
    a.e("v_add_u32 v%d, s%d, v%d" % (V_VA + 1, S_T0, T))
    a.e("v_lshlrev_b32 v%d, 3, v%d" % (T, V_G))
    a.e("v_sub_u32 v%d, v%d, v%d" % (V_A, V_L15, T))
    a.e("v_xor_b32 v%d, 16, v%d" % (T, V_LANE))
    a.e("v_lshlrev_b32 v%d, 2, v%d" % (V_X16, T))
    a.e("v_xor_b32 v%d, 32, v%d" % (T, V_LANE))
    a.e("v_lshlrev_b32 v%d, 2, v%d" % (V_X32, T))
    a.e("v_add_u32 v%d, 16, v%d" % (T, V_L15))
    a.e("v_lshlrev_b32 v%d, 2, v%d" % (V_BS, T))
    for i in range(16):
        a.e("v_mov_b32 v%d, 0" % (V_O + i))
    a.e("v_cmp_gt_u32 vcc, 48, v%d" % V_LANE)
    a.e("s_and_saveexec_b64 s[%d:%d], vcc" % (S_EX, S_EX + 1))
    a.e("s_cmp_lt_u32 s%d, 2" % S_W)
    labz = a.newlabel("ones")
    a.e("s_cbranch_scc0 %s" % labz)
    a.e("s_cmp_eq_u32 s%d, 0" % S_W)
    a.e("s_cselect_b32 s%d, 0x3f803f80, 0" % S_T0)
    for i in range(4):
        a.e("v_mov_b32 v%d, s%d" % (T + 4 + i, S_T0))
    a.e("s_mul_i32 s%d, s%d, %d" % (S_T0, S_W, PV))
    a.e("s_add_u32 s%d, s%d, %d" % (S_T0, S_T0, VL + 21 * PV))
    a.e("v_lshlrev_b32 v%d, 4, v%d" % (T, V_LANE))
    a.e("v_add_u32 v%d, s%d, v%d" % (T, S_T0, T))
    a.e("ds_write_b128 v%d, %s" % (T, vr(T + 4, 4)))
    a.label(labz)
    a.e("s_mov_b64 exec, s[%d:%d]" % (S_EX, S_EX + 1))
    emit_pack_calc(a, S_W, V_LANE, T, V_PD, V_PA, 44)
    a.e("v_cmp_gt_u32 vcc, 2, v%d" % V_G)
    a.e("v_cmp_gt_u32 s[%d:%d], 3, v%d" % (S_EX, S_EX + 1, V_G))
    a.e("s_waitcnt lgkmcnt(0)")
    a.wait_vm(['Q'])
    a.e("s_barrier")
    a.stamp(3)
    emit_pack_issue(a, V_PD, 44)
    for qt in range(2):
        a.e("v_cndmask_b32 v%d, 0, v%d, s[%d:%d]" % (V_Q + qt * 4, V_Q + qt * 4, S_EX, S_EX + 1))
        a.e("v_cndmask_b32 v%d, 0, v%d, s[%d:%d]" % (V_Q + qt * 4 + 1, V_Q + qt * 4 + 1, S_EX, S_EX + 1))
        a.e("v_cndmask_b32 v%d, 0, v%d, vcc" % (V_Q + qt * 4 + 2, V_Q + qt * 4 + 2))
        a.e("v_cndmask_b32 v%d, 0, v%d, vcc" % (V_Q + qt * 4 + 3, V_Q + qt * 4 + 3))
    a.stamp(4)

    def sreg(b, qt):
        return V_S + (b * 2 + qt) * 8

    def kread(b):
        for Tt in range(2):
            a.lds("ds_read_b128 %s, v%d offset:%d" % (vr(V_KF + (b & 1) * 8 + Tt * 4, 4), V_KA + Tt, KL + b * 2048), ('K', b))
    kread(0)
    for b in range(9):
        if b + 1 < 9:
            kread(b + 1)
        a.wait_lg([('K', b)])
        for qt in range(2):
            for Tt in range(2):
                a.e("v_mfma_f32_16x16x32_bf16 %s, %s, %s, 0" % (
                    vr(sreg(b, qt) + Tt * 4, 4), vr(V_KF + (b & 1) * 8 + Tt * 4, 4), vr(V_Q + qt * 4, 4)))
    a.wait_lg0()
    def vread(b):
        for dt in range(2):
            a.lds("ds_read_b128 %s, v%d offset:%d" % (vr(V_VF + (b & 1) * 8 + dt * 4, 4), V_VA + dt, b * 64), ('V', b))
    a.e("s_nop 7")
    a.e("s_nop 3")
    a.stamp(5)
    a.e("v_mov_b32 v%d, 0xf149f2ca" % (V_M + 2))
    for qt in range(2):
        for Tt in range(2):
            for r_ in range(4):
                th = Tt * 4 + r_ - qt * 16
                a.e("v_cmp_gt_i32 vcc, %d, v%d" % (th, V_A))
                a.e("s_nop 1")
                r0 = sreg(0, qt) + Tt * 4 + r_
                r8 = sreg(8, qt) + Tt * 4 + r_
                a.e("v_cndmask_b32 v%d, v%d, v%d, vcc" % (r0, V_M + 2, r0))
                a.e("v_cndmask_b32 v%d, v%d, v%d, vcc" % (r8, r8, V_M + 2))
    a.e("s_lshl_b32 s%d, s%d, 5" % (S_T0, S_W))
    a.e("s_add_u32 s%d, s%d, s%d" % (S_T0, S_T0, S_Q0))
    for b in range(8):
        lab = a.newlabel("neg")
        a.e("s_cmp_lt_i32 s%d, %d" % (S_T0, 256 - b * 32))
        a.e("s_cbranch_scc0 %s" % lab)
        for i in range(16):
            a.e("v_mov_b32 v%d, v%d" % (sreg(b, 0) + i, V_M + 2))
        a.label(lab)
    for qt in range(2):
        regs = [sreg(b, qt) + i for b in range(9) for i in range(8)]
        a.e("v_max3_f32 v%d, v%d, v%d, v%d" % (V_M + qt, regs[0], regs[1], regs[2]))
        for i in range(3, 71, 2):
            a.e("v_max3_f32 v%d, v%d, v%d, v%d" % (V_M + qt, V_M + qt, regs[i], regs[i + 1]))
        a.e("v_max_f32 v%d, v%d, v%d" % (V_M + qt, V_M + qt, regs[71]))
    for xr in (V_X16, V_X32):
        for qt in range(2):
            a.lds("ds_bpermute_b32 v%d, v%d, v%d" % (V_M + 2 + qt, xr, V_M + qt), 'x')
        a.wait_lg(['x'])
        for qt in range(2):
            a.e("v_max_f32 v%d, v%d, v%d" % (V_M + qt, V_M + qt, V_M + 2 + qt))
    cs = (DH ** -0.5) * 1.4426950408889634
    a.e("s_mov_b32 s%d, 0x%x" % (S_C, f32bits(cs)))
    for qt in range(2):
        a.e("v_mul_f32 v%d, s%d, v%d" % (V_M + qt, S_C, V_M + qt))
    a.stamp(6)
    a.wait_vm(['VD'])
    a.e("s_barrier")
    vread(0)
    for b in range(9):
        for qt in range(2):
            r0 = sreg(b, qt)
            for i in range(8):
                a.e("v_fma_f32 v%d, v%d, s%d, -v%d" % (r0 + i, r0 + i, S_C, V_M + qt))
            for i in range(8):
                a.e("v_exp_f32 v%d, v%d" % (r0 + i, r0 + i))
            a.e("s_nop 0")
            for i in range(4):
                a.e("v_cvt_pk_bf16_f32 v%d, v%d, v%d" % (r0 + i, r0 + 2 * i, r0 + 2 * i + 1))
        if b + 1 < 9:
            vread(b + 1)
        if b == 3:
            emit_pack_stores(a, S_WS, V_PD, V_PA, 44)
        a.wait_lg([('V', b)])
        a.e("s_nop 1")
        for dt in range(2):
            for qt in range(2):
                o = vr(V_O + (dt * 2 + qt) * 4, 4)
                a.e("v_mfma_f32_16x16x32_bf16 %s, %s, %s, %s" % (
                    o, vr(V_VF + (b & 1) * 8 + dt * 4, 4), vr(sreg(b, qt), 4), o))
    a.e("s_nop 7")
    a.e("s_nop 3")
    a.stamp(7)
    a.stamp(8)
    for qt in range(2):
        a.lds("ds_bpermute_b32 v%d, v%d, v%d" % (V_M + qt, V_BS, V_O + (2 + qt) * 4), 'x')
    a.e("s_lshl_b32 s%d, s%d, 5" % (S_T0, S_W))
    a.e("s_add_u32 s%d, s%d, s%d" % (S_T0, S_T0, S_Q0))
    a.e("v_add_u32 v%d, s%d, v%d" % (T, S_T0, V_L15))
    a.e("s_movk_i32 s%d, 1280" % S_T1)
    a.e("v_mul_lo_u32 v%d, v%d, s%d" % (T, T, S_T1))
    a.e("v_lshl_add_u32 v%d, v%d, 3, v%d" % (T, V_G, T))
    a.e("s_mul_i32 s%d, s%d, 40" % (S_T0, S_H))
    a.e("v_add_u32 v%d, s%d, v%d" % (T, S_T0, T))
    a.e("v_add_u32 v%d, %d, v%d" % (T + 1, 16 * 1280, T))
    a.wait_lg(['x'])
    for qt in range(2):
        a.e("v_rcp_f32 v%d, v%d" % (V_M + qt, V_M + qt))
    a.e("s_nop 0")
    for qt in range(2):
        for dt in range(2):
            o = V_O + (dt * 2 + qt) * 4
            for r_ in range(4):
                a.e("v_mul_f32 v%d, v%d, v%d" % (o + r_, o + r_, V_M + qt))
            a.e("v_cvt_pk_bf16_f32 v%d, v%d, v%d" % (o, o, o + 1))
            a.e("v_cvt_pk_bf16_f32 v%d, v%d, v%d" % (o + 1, o + 2, o + 3))
    for qt in range(2):
        a.e("buffer_store_dwordx2 %s, v%d, s[%d:%d], 0 offen offset:%d" % (
            vr(V_O + qt * 4, 2), T + qt, SRD_O, SRD_O + 3, 0))
    a.e("v_cmp_eq_u32 vcc, 0, v%d" % V_G)
    a.e("s_and_saveexec_b64 s[%d:%d], vcc" % (S_EX, S_EX + 1))
    for qt in range(2):
        a.e("buffer_store_dwordx2 %s, v%d, s[%d:%d], 0 offen offset:%d" % (
            vr(V_O + (2 + qt) * 4, 2), T + qt, SRD_O, SRD_O + 3, 32))
    a.e("s_mov_b64 exec, s[%d:%d]" % (S_EX, S_EX + 1))
    a.stamp(9)
    a.stamp_out(10, V_T, wg=40)
    a.label(L_end)
    a.e("s_endpgm")
    return a.lines, kernel_desc(name, nv, 0), 512, lds_bytes, 256


def main():
    out = sys.argv[1] if len(sys.argv) > 1 else "sequential_preLN__sliding_block__mixer_s_mlp__prompt.s"
    ks = []
    ks.append(("k1_kernel",) + gen_gemm("k1_kernel", 640, 1920, 128, 128, ('in', 'x'), 'wqkv', 1, 'qkv', 64, early=True, roll=True))
    ks.append(("k2_kernel",) + gen_attn("k2_kernel"))
    ks.append(("k3_kernel",) + gen_gemm("k3_kernel", 640, 640, 64, 80, ('ws', WS_O), 'wo', 0, 'res', 128, early=True, roll=True))
    ks.append(("k4_kernel",) + gen_gemm("k4_kernel", 640, 640, 64, 80, ('ws', WS_H), 'w1', 2, 'gelu', 128, early=True, roll=True))
    ks.append(("k5_kernel",) + gen_gemm("k5_kernel", 640, 640, 64, 80, ('ws', WS_HG), 'w2', 0, 'x1', 128, shift=True, pf=('w3', 640 * 1536 * 2)))
    ks.append(("k6_kernel",) + gen_gemm("k6_kernel", 640, 1536, 128, 96, ('ws', WS_X1), 'w3', 1, 'gelu', 64, early=True, roll=True))
    ks.append(("k7_kernel",) + gen_gemm("k7_kernel", 1536, 640, 64, 80, ('ws', WS_G), 'w4', 0, 'out', 128, early=True, roll=True))
    hdr = open("sequential_preLN__sliding_block__mixer_s_mlp__prompt.s.ref").read().split("\n")
    txt = []
    for l in hdr:
        if l.startswith("; @launch") or l.startswith("; Override") or l.startswith("; grid="):
            continue
        if not l.startswith(";"):
            break
        txt.append(l)
    for (nm, lines, desc, ntiles, lds, blk) in ks:
        txt.append("; @launch kernel=%s grid=(%d,1,1) block=(%d,1,1) lds=%d" % (nm, ntiles, blk, lds))
    txt.append('.amdgcn_target "amdgcn-amd-amdhsa--gfx950"')
    txt.append(".text")
    for (nm, lines, desc, ntiles, lds, blk) in ks:
        txt += lines
    txt.append('.section .rodata,"a"')
    for (nm, lines, desc, ntiles, lds, blk) in ks:
        txt.append(".p2align 6")
        txt.append(desc)
    open(out, "w").write("\n".join(txt) + "\n")
    print("wrote", out, "lines", len(txt))


if __name__ == "__main__":
    main()
```

```python
import sys, os
ABL = set(os.environ.get('ABL', '').split(','))

S = 2048
D = 640
F = 1536
H = 32
DH = 20

WS_Q = 0
WS_K = WS_Q + 32 * 2048 * 64
WS_VT = WS_K + 32 * 2048 * 64
WS_O = WS_VT + 640 * 2048 * 2
WS_H = WS_O + S * D * 2
WS_HG = WS_H + S * D * 2
WS_X1 = WS_HG + S * D * 2
WS_G = WS_X1 + S * D * 2
WS_ST = WS_G + S * F * 2
WS_PW = {}
_o = WS_ST + S * 8
for _k, _n in (('wo', 640 * 640 * 2), ('w1', 640 * 640 * 2), ('w2', 640 * 640 * 2), ('w3', 640 * 1536 * 2), ('w4', 640 * 1536 * 2)):
    WS_PW[_k] = _o
    _o += _n
WS_END = _o
PACK = dict(wo=(640, 640, 80, 128), w1=(640, 640, 80, 128), w2=(640, 640, 80, 128), w3=(640, 1536, 96, 64), w4=(1536, 640, 80, 128))

KA = dict(x=0, wqkv=8, wo=16, bx=24, w1=32, w2=40, w3=48, w4=56, out=64, dbg=72, ws=80)


class Asm:
    def __init__(self):
        self.lines = []
        self.vm = []
        self.lg = []
        Asm.uid = getattr(Asm, 'uid', 0)

    def e(self, s):
        self.lines.append("    " + s)

    def label(self, s):
        self.lines.append(s + ":")

    def c(self, s):
        self.lines.append("    ; " + s)

    def newlabel(self, p):
        Asm.uid += 1
        return "L_%s_%d" % (p, Asm.uid)

    def vmem(self, s, tag=None):
        self.e(s)
        self.vm.append(tag)

    def lds(self, s, tag=None):
        self.e(s)
        self.lg.append(tag)

    def _need(self, lst, tags):
        last = -1
        for i, t in enumerate(lst):
            if t in tags:
                last = i
        return last

    def wait_vm(self, tags):
        last = self._need(self.vm, tags)
        if last < 0:
            return
        n = len(self.vm) - 1 - last
        if n <= 63:
            self.e("s_waitcnt vmcnt(%d)" % n)
        self.vm = self.vm[last + 1:]

    def wait_lg(self, tags):
        last = self._need(self.lg, tags)
        if last < 0:
            return
        n = len(self.lg) - 1 - last
        assert n <= 15, n
        self.e("s_waitcnt lgkmcnt(%d)" % n)
        self.lg = self.lg[last + 1:]

    def stamp(self, i):
        if 'stamp' not in ABL:
            return
        self.e("s_memtime s[%d:%d]" % (60 + 2 * i, 61 + 2 * i))
        if i == 0:
            self.e("s_memrealtime s[92:93]")
        if i == 9:
            self.e("s_memrealtime s[94:95]")
        self.e("s_waitcnt lgkmcnt(0)")
        self.lg = []

    def stamp_out(self, n, vtmp, wg=0):
        if 'stamp' not in ABL:
            return
        Asm.kidx = getattr(Asm, 'kidx', 0) + 1
        self.e("s_load_dwordx2 s[56:57], s[0:1], 80")
        self.e("s_waitcnt lgkmcnt(0)")
        self.e("s_add_u32 s56, s56, 0x%x" % ((64 << 20) + self.kslot * 65536))
        self.e("s_addc_u32 s57, s57, 0")
        self.e("s_and_b32 s57, s57, 0xffff")
        self.e("s_mov_b32 s58, 65536")
        self.e("s_mov_b32 s59, 0x00020000")
        self.e("v_cmp_eq_u32 vcc, 0, v0")
        self.e("s_and_saveexec_b64 s[80:81], vcc")
        self.e("s_lshl_b32 s82, s2, 3")
        self.e("v_mov_b32 v%d, s82" % vtmp)
        self.e("v_mov_b32 v%d, s92" % (vtmp + 1))
        self.e("buffer_store_dword v%d, v%d, s[56:59], 0 offen" % (vtmp + 1, vtmp))
        self.e("v_mov_b32 v%d, s94" % (vtmp + 1))
        self.e("buffer_store_dword v%d, v%d, s[56:59], 0 offen offset:4" % (vtmp + 1, vtmp))
        self.e("s_mov_b64 exec, s[80:81]")
        lab = self.newlabel("stamp")
        self.e("s_cmp_eq_u32 s2, %d" % wg)
        self.e("s_cbranch_scc0 %s" % lab)
        self.e("s_load_dwordx2 s[56:57], s[0:1], 72")
        self.e("s_waitcnt lgkmcnt(0)")
        self.e("s_and_b32 s57, s57, 0xffff")
        self.e("s_mov_b32 s58, 256")
        self.e("s_mov_b32 s59, 0x00020000")
        self.e("v_lshrrev_b32 v%d, 6, v0" % vtmp)
        self.e("v_lshlrev_b32 v%d, 6, v%d" % (vtmp, vtmp))
        self.e("v_and_b32 v%d, 63, v0" % (vtmp + 1))
        self.e("v_cmp_eq_u32 vcc, 0, v%d" % (vtmp + 1))
        self.e("s_and_saveexec_b64 s[80:81], vcc")
        for i in range(n):
            self.e("s_sub_u32 s82, s%d, s60" % (60 + 2 * i))
            self.e("v_mov_b32 v%d, s82" % (vtmp + 1))
            self.e("buffer_store_dword v%d, v%d, s[56:59], 0 offen offset:%d" % (vtmp + 1, vtmp, i * 4))
        self.e("s_sub_u32 s82, s94, s92")
        self.e("v_mov_b32 v%d, s82" % (vtmp + 1))
        self.e("buffer_store_dword v%d, v%d, s[56:59], 0 offen offset:%d" % (vtmp + 1, vtmp, 40))
        self.e("v_mov_b32 v%d, s92" % (vtmp + 1))
        self.e("buffer_store_dword v%d, v%d, s[56:59], 0 offen offset:%d" % (vtmp + 1, vtmp, 44))
        self.e("v_mov_b32 v%d, s94" % (vtmp + 1))
        self.e("buffer_store_dword v%d, v%d, s[56:59], 0 offen offset:%d" % (vtmp + 1, vtmp, 48))
        self.e("s_mov_b64 exec, s[80:81]")
        self.label(lab)

    def wait_all(self):
        self.e("s_waitcnt vmcnt(0) lgkmcnt(0)")
        self.vm = []
        self.lg = []

    def wait_lg0(self):
        self.e("s_waitcnt lgkmcnt(0)")
        self.lg = []

    def wait_vm0(self):
        self.e("s_waitcnt vmcnt(0)")
        self.vm = []


def vr(b, n=1):
    return "v%d" % b if n == 1 else "v[%d:%d]" % (b, b + n - 1)


def ar(b, n=1):
    return "a%d" % b if n == 1 else "a[%d:%d]" % (b, b + n - 1)


def sr(b, n=1):
    return "s%d" % b if n == 1 else "s[%d:%d]" % (b, b + n - 1)


def build_srd(a, d, ptr, off, size):
    if off:
        a.e("s_add_u32 s%d, s%d, 0x%x" % (d, ptr, off))
        a.e("s_addc_u32 s%d, s%d, 0" % (d + 1, ptr + 1))
        a.e("s_and_b32 s%d, s%d, 0xffff" % (d + 1, d + 1))
    else:
        a.e("s_mov_b32 s%d, s%d" % (d, ptr))
        a.e("s_and_b32 s%d, s%d, 0xffff" % (d + 1, ptr + 1))
    a.e("s_mov_b32 s%d, 0x%x" % (d + 2, size))
    a.e("s_mov_b32 s%d, 0x00020000" % (d + 3))


def f32bits(x):
    import struct
    return struct.unpack("<I", struct.pack("<f", x))[0]


def sigma(nt, t, r):
    if nt == 5:
        return t
    if nt == 8:
        return t ^ r
    if nt == 6:
        return (t + (r >> 2)) % 6
    raise ValueError(nt)


def round_bf16(a, dst, src, tmp):
    a.e("v_cvt_pk_bf16_f32 %s, %s, %s" % (vr(tmp), vr(src), vr(src)))
    a.e("v_lshlrev_b32 %s, 16, %s" % (vr(dst), vr(tmp)))


def kernel_header(a, name):
    a.kslot = int(name[1])
    a.lines.append(".p2align 8")
    a.lines.append(".globl %s" % name)
    a.lines.append(".type %s,@function" % name)
    a.label(name)


def kernel_desc(name, nvgpr_arch, nagpr, nsgpr=96):
    acc = (nvgpr_arch + 3) // 4 * 4
    tot = acc + nagpr if nagpr else nvgpr_arch
    return """.amdhsa_kernel %s
  .amdhsa_next_free_vgpr %d
  .amdhsa_next_free_sgpr %d
  .amdhsa_accum_offset %d
  .amdhsa_group_segment_fixed_size 0
  .amdhsa_kernarg_size 88
  .amdhsa_user_sgpr_count 2
  .amdhsa_user_sgpr_kernarg_segment_ptr 1
  .amdhsa_system_sgpr_workgroup_id_x 1
.end_amdhsa_kernel
""" % (name, tot, nsgpr, acc)


def emit_prefetch(a, key, nbytes, nwg_per_xcd, s_srd, s_t0, s_w, v_lane, v_t, nwaves=4):
    if 'pf' not in ABL:
        return
    per_wg = (nbytes + nwg_per_xcd - 1) // nwg_per_xcd
    per_wave = (per_wg + nwaves - 1) // nwaves
    per_wave = (per_wave + 8191) // 8192 * 8192
    a.e("s_load_dwordx2 s[%d:%d], s[0:1], %d" % (s_srd, s_srd + 1, KA[key]))
    a.e("s_lshr_b32 s%d, s2, 3" % s_t0)
    a.e("s_mul_i32 s%d, s%d, %d" % (s_t0, s_t0, nwaves))
    a.e("s_add_u32 s%d, s%d, s%d" % (s_t0, s_t0, s_w))
    a.e("s_mul_i32 s%d, s%d, %d" % (s_t0, s_t0, per_wave))
    a.e("v_lshlrev_b32 v%d, 7, v%d" % (v_t, v_lane))
    a.e("v_add_u32 v%d, s%d, v%d" % (v_t, s_t0, v_t))
    a.e("s_waitcnt lgkmcnt(0)")
    a.lg = []
    a.e("s_and_b32 s%d, s%d, 0xffff" % (s_srd + 1, s_srd + 1))
    a.e("s_mov_b32 s%d, 0x%x" % (s_srd + 2, nbytes))
    a.e("s_mov_b32 s%d, 0x00020000" % (s_srd + 3))
    for i in range(per_wave // 8192):
        a.e("s_mov_b32 s%d, %d" % (s_t0, i * 8192))
        a.vmem("buffer_load_dword v%d, v%d, s[%d:%d], s%d offen" % (v_t + 1, v_t, s_srd, s_srd + 3, s_t0), 'PF')


def emit_b_src(a, nt, N, gpr, T, vG, dst, s_magic, s_n2):
    a.e("v_mul_lo_u32 v%d, v%d, s%d" % (T + 1, vG, s_magic))
    a.e("v_lshrrev_b32 v%d, 16, v%d" % (T + 1, T + 1))
    a.e("v_mul_u32_u24 v%d, %d, v%d" % (T + 2, gpr, T + 1))
    a.e("v_sub_u32 v%d, v%d, v%d" % (T + 2, vG, T + 2))
    a.e("v_lshrrev_b32 v%d, 1, v%d" % (T + 3, T + 2))
    a.e("v_and_b32 v%d, 1, v%d" % (T + 2, T + 2))
    a.e("v_and_b32 v%d, 7, v%d" % (T + 4, T + 1))
    if nt == 8:
        a.e("v_xor_b32 v%d, v%d, v%d" % (T + 3, T + 3, T + 4))
    elif nt == 6:
        a.e("v_lshrrev_b32 v%d, 2, v%d" % (T + 4, T + 4))
        a.e("v_sub_u32 v%d, v%d, v%d" % (T + 3, T + 3, T + 4))
        a.e("v_add_u32 v%d, 6, v%d" % (T + 4, T + 3))
        a.e("v_min_u32 v%d, v%d, v%d" % (T + 3, T + 3, T + 4))
    a.e("v_bfe_u32 v%d, v%d, 2, 2" % (T + 4, T + 1))
    a.e("v_bfe_u32 v%d, v%d, 4, 1" % (T + 5, T + 1))
    a.e("v_and_b32 v%d, 0x%x, v%d" % (T + 6, 0xffe3, T + 1))
    a.e("v_lshl_add_u32 v%d, v%d, 3, v%d" % (T + 6, T + 4, T + 6))
    a.e("v_lshl_add_u32 v%d, v%d, 2, v%d" % (T + 6, T + 5, T + 6))
    a.e("v_mul_lo_u32 v%d, v%d, s%d" % (T + 6, T + 6, s_n2))
    a.e("v_lshlrev_b32 v%d, 5, v%d" % (T + 3, T + 3))
    a.e("v_lshl_add_u32 v%d, v%d, 4, v%d" % (T + 3, T + 2, T + 3))
    a.e("v_add_u32 v%d, v%d, v%d" % (dst, T + 6, T + 3))


def emit_pack_path(a, first_wg, nwg):
    NW = 120
    NBAT = 16
    V_LANE, T, V_LS, V_L16, V_D = 1, 8, 16, 17, 20
    V_A = V_D + NBAT * 4
    S_WS, SRD_S, SRD_D = 4, 8, 12
    S_PW, S_U, S_CB, S_C, S_I, S_T0, S_T1, S_MG, S_N2 = 32, 33, 34, 35, 36, 37, 38, 39, 40
    L_done = a.newlabel("pkdone")
    a.e("s_load_dwordx2 s[%d:%d], s[0:1], %d" % (S_WS, S_WS + 1, KA['ws']))
    a.e("v_and_b32 v%d, 63, v0" % V_LANE)
    a.e("v_lshrrev_b32 v%d, 6, v0" % T)
    a.e("v_lshlrev_b32 v%d, 4, v%d" % (V_L16, V_LANE))
    a.e("v_readfirstlane_b32 s%d, v%d" % (S_PW, T))
    a.e("s_sub_u32 s%d, s2, %d" % (S_T0, first_wg))
    a.e("s_lshl_b32 s%d, s%d, 3" % (S_T0, S_T0))
    a.e("s_add_u32 s%d, s%d, s%d" % (S_PW, S_PW, S_T0))
    a.e("s_cmp_ge_u32 s%d, %d" % (S_PW, NW))
    a.e("s_cbranch_scc1 %s" % L_done)
    for key in ('wo', 'w1', 'w2', 'w3', 'w4'):
        K, N, Nt, kc = PACK[key]
        nt = Nt // 16
        gpr = Nt // 8
        U = K * N * 2 // 1024
        UC = K * Nt * 2 // 1024
        UB = kc * Nt * 2 // 1024
        NCH = K // kc
        assert NW % UB == 0 and UC % UB == 0
        magic = (65536 + gpr - 1) // gpr
        mUB = (1 << 32) // UB + 1
        mNC = (1 << 32) // NCH + 1
        nq = U // UB
        for u in range(U + NBAT * NW):
            assert (u * mUB) >> 32 == u // UB
        for q in range(nq + 200):
            assert (q * mNC) >> 32 == q // NCH
        a.e("s_load_dwordx2 s[%d:%d], s[0:1], %d" % (SRD_S, SRD_S + 1, KA[key]))
        a.e("s_mov_b32 s%d, %d" % (S_MG, magic))
        a.e("s_mov_b32 s%d, %d" % (S_N2, N * 2))
        a.e("s_mul_hi_u32 s%d, s%d, 0x%x" % (S_T0, S_PW, mUB))
        a.e("s_mul_i32 s%d, s%d, %d" % (S_T0, S_T0, UB))
        a.e("s_sub_u32 s%d, s%d, s%d" % (S_I, S_PW, S_T0))
        a.e("s_lshl_b32 s%d, s%d, 6" % (S_I, S_I))
        a.e("v_add_u32 v%d, s%d, v%d" % (T, S_I, V_LANE))
        emit_b_src(a, nt, N, gpr, T, T, V_LS, S_MG, S_N2)
        a.e("s_waitcnt lgkmcnt(0)")
        a.e("s_and_b32 s%d, s%d, 0xffff" % (SRD_S + 1, SRD_S + 1))
        a.e("s_mov_b32 s%d, 0x%x" % (SRD_S + 2, K * N * 2))
        a.e("s_mov_b32 s%d, 0x00020000" % (SRD_S + 3))
        build_srd(a, SRD_D, S_WS, WS_PW[key], K * N * 2)
        a.e("s_mov_b32 s%d, s%d" % (S_U, S_PW))
        nb = min(NBAT, (U + NW - 1) // NW)
        L = a.newlabel("pk")
        a.label(L)
        for b in range(nb):
            a.e("s_add_u32 s%d, s%d, %d" % (S_T1, S_U, b * NW))
            a.e("s_mul_hi_u32 s%d, s%d, 0x%x" % (S_C, S_T1, mUB))
            a.e("s_mul_hi_u32 s%d, s%d, 0x%x" % (S_CB, S_C, mNC))
            a.e("s_mul_i32 s%d, s%d, %d" % (S_T0, S_CB, NCH))
            a.e("s_sub_u32 s%d, s%d, s%d" % (S_C, S_C, S_T0))
            a.e("s_mul_i32 s%d, s%d, %d" % (S_C, S_C, kc * N * 2))
            a.e("s_mul_i32 s%d, s%d, %d" % (S_CB, S_CB, Nt * 2))
            a.e("s_add_u32 s%d, s%d, s%d" % (S_C, S_C, S_CB))
            a.e("s_lshl_b32 s%d, s%d, 10" % (S_T1, S_T1))
            a.e("v_add_u32 v%d, s%d, v%d" % (V_A + 2 * b, S_C, V_LS))
            a.e("v_add_u32 v%d, s%d, v%d" % (V_A + 2 * b + 1, S_T1, V_L16))
            a.e("buffer_load_dwordx4 %s, v%d, s[%d:%d], 0 offen" % (vr(V_D + b * 4, 4), V_A + 2 * b, SRD_S, SRD_S + 3))
        for b in range(nb):
            a.e("s_waitcnt vmcnt(%d)" % (nb - 1))
            a.e("buffer_store_dwordx4 %s, v%d, s[%d:%d], 0 offen" % (vr(V_D + b * 4, 4), V_A + 2 * b + 1, SRD_D, SRD_D + 3))
        a.e("s_add_u32 s%d, s%d, %d" % (S_U, S_U, nb * NW))
        a.e("s_cmp_lt_u32 s%d, %d" % (S_U, U))
        a.e("s_cbranch_scc1 %s" % L)
    a.label(L_done)
    a.e("s_endpgm")


def emit_pack_calc(a, s_w, v_lane, T, V_PD, V_PA, S0):
    S_PW, S_U, S_CB, S_C, S_I, S_T0, S_T1, S_MG, S_N2 = [S0 + i for i in range(9)]
    SRD_S = S0 + 12
    a.e("s_lshl_b32 s%d, s2, 2" % S_PW)
    a.e("s_add_u32 s%d, s%d, s%d" % (S_PW, S_PW, s_w))
    for idx, (key, wofs) in enumerate((('wo', 0), ('w1', 800), ('w2', 1240), ('w3', 0), ('w4', 0))):
        K, N, Nt, kc = PACK[key]
        nt = Nt // 16
        gpr = Nt // 8
        U = K * N * 2 // 1024
        UB = kc * Nt * 2 // 1024
        NCH = K // kc
        magic = (65536 + gpr - 1) // gpr
        mUB = (1 << 32) // UB + 1
        mNC = (1 << 32) // NCH + 1
        for u in range(2100):
            assert (u * mUB) >> 32 == u // UB
            assert (u * mNC) >> 32 == u // NCH
        a.e("s_mov_b32 s%d, %d" % (S_MG, magic))
        a.e("s_mov_b32 s%d, %d" % (S_N2, N * 2))
        a.e("s_sub_u32 s%d, s%d, %d" % (S_U, S_PW, wofs))
        a.e("s_cmp_lt_u32 s%d, %d" % (S_U, U))
        a.e("s_cselect_b32 s%d, s%d, 0x100000" % (S_U, S_U))
        a.e("s_mul_hi_u32 s%d, s%d, 0x%x" % (S_C, S_U, mUB))
        a.e("s_mul_i32 s%d, s%d, %d" % (S_T0, S_C, UB))
        a.e("s_sub_u32 s%d, s%d, s%d" % (S_I, S_U, S_T0))
        a.e("s_lshl_b32 s%d, s%d, 6" % (S_I, S_I))
        a.e("v_add_u32 v%d, s%d, v%d" % (T, S_I, v_lane))
        emit_b_src(a, nt, N, gpr, T, T, T + 7, S_MG, S_N2)
        a.e("s_mul_hi_u32 s%d, s%d, 0x%x" % (S_CB, S_C, mNC))
        a.e("s_mul_i32 s%d, s%d, %d" % (S_T0, S_CB, NCH))
        a.e("s_sub_u32 s%d, s%d, s%d" % (S_C, S_C, S_T0))
        a.e("s_mul_i32 s%d, s%d, %d" % (S_C, S_C, kc * N * 2))
        a.e("s_mul_i32 s%d, s%d, %d" % (S_CB, S_CB, Nt * 2))
        a.e("s_add_u32 s%d, s%d, s%d" % (S_C, S_C, S_CB))
        a.e("s_cmp_lt_u32 s%d, %d" % (S_U, U))
        a.e("s_cselect_b32 s%d, s%d, 0x7ff00000" % (S_C, S_C))
        a.e("v_add_u32 v%d, s%d, v%d" % (V_PD + idx * 4, S_C, T + 7))
        a.e("s_lshl_b32 s%d, s%d, 10" % (S_T1, S_U))
        a.e("s_add_u32 s%d, s%d, 0x%x" % (S_T1, S_T1, WS_PW[key] - WS_PW['wo']))
        a.e("v_lshl_add_u32 v%d, v%d, 4, s%d" % (V_PA + idx, v_lane, S_T1))


def emit_pack_issue(a, V_PD, S0):
    SRD_S = S0 + 12
    for idx, key in enumerate(('wo', 'w1', 'w2', 'w3', 'w4')):
        K, N, Nt, kc = PACK[key]
        sp = {'wo': 24, 'w1': 84, 'w2': 86, 'w3': 88, 'w4': 90}[key]
        a.e("s_mov_b32 s%d, s%d" % (SRD_S, sp))
        a.e("s_and_b32 s%d, s%d, 0xffff" % (SRD_S + 1, sp + 1))
        a.e("s_mov_b32 s%d, 0x%x" % (SRD_S + 2, K * N * 2))
        a.e("s_mov_b32 s%d, 0x00020000" % (SRD_S + 3))
        a.vmem("buffer_load_dwordx4 %s, v%d, s[%d:%d], 0 offen" % (vr(V_PD + idx * 4, 4), V_PD + idx * 4, SRD_S, SRD_S + 3), 'PK')


def emit_pack_stores(a, s_ws, V_PD, V_PA, S0):
    SRD_D = S0 + 12
    build_srd(a, SRD_D, s_ws, WS_PW['wo'], WS_END - WS_PW['wo'])
    a.wait_vm(['PK'])
    for idx in range(5):
        a.vmem("buffer_store_dwordx4 %s, v%d, s[%d:%d], 0 offen" % (vr(V_PD + idx * 4, 4), V_PA + idx, SRD_D, SRD_D + 3), 'PS')


GELU_C1 = -2.0 * 0.7978845608028654 * 1.4426950408889634
GELU_C2 = GELU_C1 * 0.044715


def gelu_inplace(a, x, t1, t2, s_c1, s_c2):
    a.e("v_mul_f32 %s, %s, %s" % (vr(t1), vr(x), vr(x)))
    a.e("v_mov_b32 %s, %s" % (vr(t2), sr(s_c1)))
    a.e("v_fma_f32 %s, %s, %s, %s" % (vr(t1), vr(t1), sr(s_c2), vr(t2)))
    a.e("v_mul_f32 %s, %s, %s" % (vr(t1), vr(t1), vr(x)))
    a.e("v_exp_f32 %s, %s" % (vr(t1), vr(t1)))
    a.e("s_nop 0")
    a.e("v_add_f32 %s, 1.0, %s" % (vr(t1), vr(t1)))
    a.e("v_rcp_f32 %s, %s" % (vr(t1), vr(t1)))
    a.e("s_nop 0")
    a.e("v_mul_f32 %s, %s, %s" % (vr(x), vr(x), vr(t1)))


def gen_gemm(name, K, N, Mt, Nt, a_src, w_key, ln, epi, kc, shift=False, nbuf=None, LA=None, pf=None, packwg=0, early=False, roll=False):
    a = Asm()
    if 'noroll' in ABL:
        roll = False
        if kc == 128:
            early = False
    packed = w_key in PACK
    if packed:
        assert PACK[w_key] == (K, N, Nt, kc)
    mt = Mt // 64
    nt = Nt // 16
    WR = Mt // 4
    P = Nt * 2
    PA = kc * 2
    ABYTES = Mt * PA
    BBYTES = kc * P
    BREG = (BBYTES + 4095) // 4096 * 4096
    CH = ABYTES + BREG
    nch = K // kc
    kpc = kc // 32
    RB = S // Mt
    CB = N // Nt
    ntiles = RB * CB
    if nbuf is None:
        nbuf = min(nch, (156 * 1024) // CH)
    if LA is None:
        LA = nbuf - 1 if nbuf < nch else nbuf
        if early and nbuf < nch and 'safe' in ABL:
            LA = nbuf - 2
    MISC = nbuf * CH
    CSL = MISC
    ABL_ = MISC + 1024
    lds_bytes = MISC + 1024 + Mt * 8
    pitchA = K * 2
    nA = ABYTES // 4096
    nB = BREG // 4096
    assert ABYTES % 4096 == 0 and (BBYTES % 4096 == 0 or packed)
    lpr = kc // 8
    rpi = 64 // lpr
    gpr = Nt // 8
    ROT = 1 if nt == 5 else 2
    NCS = 2
    nS = nA

    V_LANE, V_L15, V_G = 1, 2, 3
    nxt = 4
    nset = (MISC + 65535) // 65536
    if roll:
        nset = 2
    V_B = nxt; nxt += nt * nset
    V_AR = nxt; nxt += kpc * nset
    V_T = nxt; nxt += 12
    nxt = (nxt + 3) // 4 * 4
    V_ONES = nxt; nxt += 4
    NF = int(os.environ.get('NF', '6'))
    if roll:
        NF = {8: 8, 6: 6, 5: 5}[nt]
        assert (kpc * nt) % NF == 0 and kpc % 2 == 0
    V_BF = nxt; nxt += NF * 4
    V_AF = nxt; nxt += 2 * mt * 4
    V_CS = nxt; nxt += nt * 4
    V_E = nxt; nxt += 24
    V_AL = nxt; nxt += 4 * mt
    V_BE = nxt; nxt += 4 * mt
    V_ADMA = V_B
    V_BDMA = V_B + nA
    V_SA = V_BDMA + nB
    assert nA + nB + 1 <= nt * nset + kpc * nset
    V_SD = V_BF
    V_SS = V_CS
    assert nS * 4 <= NF * 4 + 2 * mt * 4 and 2 * nS <= nt * 4
    EG = Mt * gpr
    nE = (EG + 511) // 512
    if epi == 'qkv':
        nE = 0
    V_EO = nxt; nxt += nE
    V_EL = nxt; nxt += nE
    nxt = (nxt + 3) // 4 * 4
    V_R1 = nxt; nxt += 4 * nE if epi in ('res', 'x1', 'out') else 0
    V_R2 = nxt; nxt += 4 * nE if epi in ('out',) else 0
    V_RS = nxt; nxt += 2 * nE if epi == 'x1' else 0
    nv = nxt
    A_ACC = 0
    A_CS = mt * nt * 4
    A_SM = A_CS + NCS * 4
    A_GR = A_SM + mt * 4
    nagpr = A_GR + mt * 4 if ln else A_CS
    assert (nv + 3) // 4 * 4 + nagpr <= 256, (name, nv, nagpr)

    S_WS, S_P = 4, 6
    SRD_A, SRD_W, SRD_O, SRD_R1, SRD_R2, SRD_ST = 8, 12, 16, 20, 24, 28
    S_W, S_RB, S_CB, S_ROW0, S_COL0, S_T0, S_T1, S_LA, S_LB, S_KA, S_KB = 32, 33, 34, 35, 36, 37, 38, 39, 40, 41, 42
    S_W8 = 43
    S_EX = 44
    S_SEC = 46
    S_C2 = 47
    S_TT = 48
    S_WR0 = 56 if 'stamp' not in ABL else 84

    kernel_header(a, name)
    L_end = name + "_end"
    a.e("s_cmp_ge_u32 s2, %d" % (ntiles + packwg))
    a.e("s_cbranch_scc1 %s" % L_end)
    if packwg:
        a.e("s_cmp_ge_u32 s2, %d" % ntiles)
        a.e("s_cbranch_scc1 %s_pack" % name)
    a.stamp(0)
    a.e("s_load_dwordx2 s[%d:%d], s[0:1], %d" % (S_WS, S_WS + 1, KA['ws']))
    if not packed:
        a.e("s_load_dwordx2 s[%d:%d], s[0:1], %d" % (SRD_W, SRD_W + 1, KA[w_key]))
    if a_src[0] == 'in':
        a.e("s_load_dwordx2 s[%d:%d], s[0:1], %d" % (SRD_A, SRD_A + 1, KA[a_src[1]]))
    if epi == 'res':
        a.e("s_load_dwordx2 s[%d:%d], s[0:1], %d" % (SRD_R1, SRD_R1 + 1, KA['x']))
    if epi == 'out':
        a.e("s_load_dwordx2 s[%d:%d], s[0:1], %d" % (SRD_O, SRD_O + 1, KA['out']))
    a.e("s_and_b32 s%d, s2, 7" % S_T0)
    a.e("s_lshr_b32 s%d, s2, 3" % S_T1)
    rbx = RB // 8
    if CB in (8, 16):
        sh = 3 if CB == 8 else 4
        a.e("s_lshr_b32 s%d, s%d, %d" % (S_RB, S_T1, sh))
        a.e("s_and_b32 s%d, s%d, %d" % (S_CB, S_T1, CB - 1))
    else:
        assert rbx == 2
        a.e("s_cmp_ge_u32 s%d, %d" % (S_T1, CB))
        a.e("s_cselect_b32 s%d, 1, 0" % S_RB)
        a.e("s_mul_i32 s%d, s%d, %d" % (S_CB, S_RB, CB))
        a.e("s_sub_u32 s%d, s%d, s%d" % (S_CB, S_T1, S_CB))
    a.e("s_mul_i32 s%d, s%d, %d" % (S_T0, S_T0, rbx))
    a.e("s_add_u32 s%d, s%d, s%d" % (S_RB, S_RB, S_T0))
    a.e("s_mul_i32 s%d, s%d, %d" % (S_ROW0, S_RB, Mt))
    a.e("s_mul_i32 s%d, s%d, %d" % (S_COL0, S_CB, Nt))
    a.e("v_and_b32 v%d, 63, v0" % V_LANE)
    a.e("v_lshrrev_b32 v%d, 6, v0" % V_T)
    a.e("v_and_b32 v%d, 15, v0" % V_L15)
    a.e("v_bfe_u32 v%d, v0, 4, 2" % V_G)
    a.e("v_readfirstlane_b32 s%d, v%d" % (S_W8, V_T))
    T = V_T
    lsh = {16: 4, 8: 3, 4: 2}[lpr]
    magic = (65536 + gpr - 1) // gpr
    for G in range(max(kc * gpr, nE * 512)):
        assert (G * magic) >> 16 == G // gpr
    PT = P + 16
    opitch = N * 2
    L_cons = name + "_cons"
    L_p2 = name + "_phase2"
    a.e("s_and_b32 s%d, s%d, 3" % (S_W, S_W8))
    a.e("s_mul_i32 s%d, s%d, %d" % (S_WR0, S_W, WR))
    a.e("s_cmp_lt_u32 s%d, 4" % S_W8)
    a.e("s_cbranch_scc1 %s" % L_cons)

    def out_srds():
        if epi == 'qkv':
            build_srd(a, SRD_O, S_WS, WS_Q, WS_O - WS_Q)
        elif epi == 'res':
            build_srd(a, SRD_O, S_WS, WS_H, S * D * 2)
            a.e("s_and_b32 s%d, s%d, 0xffff" % (SRD_R1 + 1, SRD_R1 + 1))
            a.e("s_mov_b32 s%d, 0x%x" % (SRD_R1 + 2, S * D * 2))
            a.e("s_mov_b32 s%d, 0x00020000" % (SRD_R1 + 3))
        elif epi == 'gelu':
            build_srd(a, SRD_O, S_WS, WS_HG if N == D else WS_G, S * N * 2)
            if ln == 2:
                build_srd(a, SRD_ST, S_WS, WS_ST, S * 8)
        elif epi == 'x1':
            build_srd(a, SRD_O, S_WS, WS_X1, S * D * 2)
            build_srd(a, SRD_R1, S_WS, WS_H, S * D * 2)
            build_srd(a, SRD_ST, S_WS, WS_ST, S * 8)
        elif epi == 'out':
            a.e("s_and_b32 s%d, s%d, 0xffff" % (SRD_O + 1, SRD_O + 1))
            a.e("s_mov_b32 s%d, 0x%x" % (SRD_O + 2, S * D * 2))
            a.e("s_mov_b32 s%d, 0x00020000" % (SRD_O + 3))
            build_srd(a, SRD_R1, S_WS, WS_X1, S * D * 2)
            build_srd(a, SRD_R2, S_WS, WS_H, S * D * 2)

    def e_setup():
        a.e("s_mov_b32 s%d, %d" % (S_T1, magic))
        a.e("s_mul_i32 s%d, s%d, %d" % (S_T0, S_W8, nE * 64))
        for e_ in range(nE):
            a.e("v_add_u32 v%d, s%d, v%d" % (T, S_T0, V_LANE))
            if e_:
                a.e("v_add_u32 v%d, %d, v%d" % (T, e_ * 64, T))
            a.e("v_mul_lo_u32 v%d, v%d, s%d" % (T + 1, T, S_T1))
            a.e("v_lshrrev_b32 v%d, 16, v%d" % (T + 1, T + 1))
            a.e("v_mul_u32_u24 v%d, %d, v%d" % (T + 2, gpr, T + 1))
            a.e("v_sub_u32 v%d, v%d, v%d" % (T + 2, T, T + 2))
            a.e("v_mul_u32_u24 v%d, %d, v%d" % (T + 3, PT, T + 1))
            a.e("v_lshl_add_u32 v%d, v%d, 4, v%d" % (V_EL + e_, T + 2, T + 3))
            a.e("v_add_u32 v%d, s%d, v%d" % (T + 3, S_ROW0, T + 1))
            if epi == 'x1':
                a.e("v_lshlrev_b32 v%d, 3, v%d" % (V_RS + 2 * e_, T + 3))
            a.e("v_mul_u32_u24 v%d, %d, v%d" % (T + 3, opitch, T + 3))
            a.e("v_lshl_add_u32 v%d, v%d, 4, v%d" % (T + 3, T + 2, T + 3))
            a.e("v_lshl_add_u32 v%d, s%d, 1, v%d" % (V_EO + e_, S_COL0, T + 3))
            if nE * 512 > EG:
                a.e("v_cmp_le_u32 vcc, %d, v%d" % (EG, T))
                a.e("v_mov_b32 v%d, 0x7fffff00" % (T + 4))
                a.e("v_mov_b32 v%d, 0" % (T + 5))
                a.e("v_cndmask_b32 v%d, v%d, v%d, vcc" % (V_EO + e_, V_EO + e_, T + 4))
                if epi == 'x1':
                    a.e("v_cndmask_b32 v%d, v%d, v%d, vcc" % (V_RS + 2 * e_, V_RS + 2 * e_, T + 4))
                a.e("v_cndmask_b32 v%d, v%d, v%d, vcc" % (V_EL + e_, V_EL + e_, T + 5))

    def res_loads():
        if epi in ('res', 'x1', 'out'):
            for e_ in range(nE):
                a.vmem("buffer_load_dwordx4 %s, v%d, s[%d:%d], 0 offen" % (
                    vr(V_R1 + e_ * 4, 4), V_EO + e_, SRD_R1, SRD_R1 + 3), 'R')
        if epi == 'out':
            for e_ in range(nE):
                a.vmem("buffer_load_dwordx4 %s, v%d, s[%d:%d], 0 offen" % (
                    vr(V_R2 + e_ * 4, 4), V_EO + e_, SRD_R2, SRD_R2 + 3), 'R')
        if epi == 'x1':
            for e_ in range(nE):
                a.vmem("buffer_load_dwordx2 %s, v%d, s[%d:%d], 0 offen" % (
                    vr(V_RS + e_ * 2, 2), V_RS + e_ * 2, SRD_ST, SRD_ST + 3), 'R')

    a.e("v_lshrrev_b32 v%d, %d, v%d" % (T, lsh, V_LANE))
    a.e("v_and_b32 v%d, %d, v%d" % (T + 1, lpr - 1, V_LANE))
    a.e("v_add_u32 v%d, s%d, v%d" % (T, S_WR0, T))
    assert nA * rpi == WR
    a.e("s_mov_b32 s%d, %d" % (S_T1, pitchA))
    for i in range(nA):
        a.e("v_add_u32 v%d, %d, v%d" % (T + 2, i * rpi, T))
        if lpr == 16:
            a.e("v_and_b32 v%d, 15, v%d" % (T + 3, T + 2))
        elif lpr == 8:
            a.e("v_bfe_u32 v%d, v%d, 1, 3" % (T + 3, T + 2))
        else:
            a.e("v_bfe_u32 v%d, v%d, 3, 1" % (T + 3, T + 2))
            a.e("v_lshlrev_b32 v%d, 1, v%d" % (T + 3, T + 3))
        a.e("v_xor_b32 v%d, v%d, v%d" % (T + 3, T + 3, T + 1))
        a.e("v_add_u32 v%d, s%d, v%d" % (T + 2, S_ROW0, T + 2))
        a.e("v_mul_lo_u32 v%d, v%d, s%d" % (T + 2, T + 2, S_T1))
        a.e("v_lshl_add_u32 v%d, v%d, 4, v%d" % (V_ADMA + i, T + 3, T + 2))
    if packed:
        a.e("s_mul_i32 s%d, s%d, %d" % (S_T0, S_CB, K * Nt * 2))
        a.e("s_mul_i32 s%d, s%d, %d" % (S_T1, S_W, nB * 1024))
        a.e("s_add_u32 s%d, s%d, s%d" % (S_T0, S_T0, S_T1))
        a.e("v_lshl_add_u32 v%d, v%d, 4, s%d" % (V_BDMA, V_LANE, S_T0))
    else:
        a.e("s_mov_b32 s%d, %d" % (S_T1, magic))
        a.e("s_mul_i32 s%d, s%d, %d" % (S_T0, S_W, nB * 64))
        a.e("v_add_u32 v%d, s%d, v%d" % (T + 7, S_T0, V_LANE))
        a.e("s_lshl_b32 s%d, s%d, 1" % (S_T0, S_COL0))
        a.e("s_mov_b32 s%d, %d" % (S_KB, N * 2))
        for i in range(nB):
            a.e("v_add_u32 v%d, %d, v%d" % (T, i * 64, T + 7))
            emit_b_src(a, nt, N, gpr, T, T, V_BDMA + i, S_T1, S_KB)
            a.e("v_add_u32 v%d, s%d, v%d" % (V_BDMA + i, S_T0, V_BDMA + i))
    a.e("s_waitcnt lgkmcnt(0)")
    if packed:
        build_srd(a, SRD_W, S_WS, WS_PW[w_key], K * N * 2)
    else:
        a.e("s_and_b32 s%d, s%d, 0xffff" % (SRD_W + 1, SRD_W + 1))
        a.e("s_mov_b32 s%d, 0x%x" % (SRD_W + 2, K * N * 2))
        a.e("s_mov_b32 s%d, 0x00020000" % (SRD_W + 3))
    if a_src[0] == 'in':
        a.e("s_and_b32 s%d, s%d, 0xffff" % (SRD_A + 1, SRD_A + 1))
        a.e("s_mov_b32 s%d, 0x%x" % (SRD_A + 2, S * K * 2))
        a.e("s_mov_b32 s%d, 0x00020000" % (SRD_A + 3))
    else:
        build_srd(a, SRD_A, S_WS, a_src[1], S * K * 2)
    a.e("s_mul_i32 s%d, s%d, %d" % (S_LA, S_W, nA * 1024))
    a.e("s_mul_i32 s%d, s%d, %d" % (S_LB, S_W, nB * 1024))
    a.e("s_mov_b32 s%d, 0x7ff00000" % S_SEC)

    def dma_a(c):
        buf = c % nbuf
        a.e("s_mov_b32 s%d, 0x%x" % (S_KA, c * kc * 2))
        for i in range(nA):
            src = V_ADMA + i
            if shift:
                k0 = c * kc
                g0 = k0 // 160
                g1 = (k0 + kc - 1) // 160
                sh = [-1, 1, -2, 2]
                if g0 == g1:
                    a.e("v_add_u32 v%d, 0x%x, v%d" % (T + 4, (sh[g0] * pitchA) & 0xffffffff, src))
                else:
                    thr = (g1 * 160 - k0) // 8
                    a.e("v_bfe_u32 v%d, v%d, 4, %d" % (T + 5, src, lsh))
                    a.e("v_cmp_gt_u32 vcc, %d, v%d" % (thr, T + 5))
                    a.e("v_add_u32 v%d, 0x%x, v%d" % (T + 4, (sh[g0] * pitchA) & 0xffffffff, src))
                    a.e("v_add_u32 v%d, 0x%x, v%d" % (T + 5, (sh[g1] * pitchA) & 0xffffffff, src))
                    a.e("v_cndmask_b32 v%d, v%d, v%d, vcc" % (T + 4, T + 5, T + 4))
                src = T + 4
            a.e("s_add_u32 m0, s%d, 0x%x" % (S_LA, buf * CH + i * 1024))
            a.e("s_nop 0")
            a.vmem("buffer_load_dwordx4 v%d, s[%d:%d], s%d offen lds" % (src, SRD_A, SRD_A + 3, S_KA), ('A', c))

    def dma_b(c):
        buf = c % nbuf
        if not packed:
            a.e("s_mov_b32 s%d, 0x%x" % (S_KB, c * kc * N * 2))
        for i in range(nB):
            a.e("s_add_u32 m0, s%d, 0x%x" % (S_LB, buf * CH + ABYTES + i * 1024))
            if packed:
                if BBYTES != BREG:
                    a.e("s_cmp_lt_u32 s%d, %d" % (S_LB, BBYTES - i * 1024))
                    a.e("s_cselect_b32 s%d, 0x%x, s%d" % (S_KB, c * BBYTES + i * 1024, S_SEC))
                else:
                    a.e("s_mov_b32 s%d, 0x%x" % (S_KB, c * BBYTES + i * 1024))
            else:
                a.e("s_nop 0")
            a.vmem("buffer_load_dwordx4 v%d, s[%d:%d], s%d offen lds" % (V_BDMA + (0 if packed else i), SRD_W, SRD_W + 3, S_KB), ('B', c))

    for c in range(0, LA):
        dma_a(c)
        dma_b(c)
    out_srds()
    e_setup()
    if roll:
        assert not shift and LA == nbuf - 1
        S_PB, S_PI, S_PA2, S_PB2 = 57, 58, 59, 60 if 'stamp' not in ABL else 85
        a.e("s_mov_b32 s%d, %d" % (S_PB, (LA % nbuf) * CH))
        a.e("s_mov_b32 s%d, 0" % S_PI)
        a.e("s_mov_b32 s%d, %d" % (S_KA, LA * kc * 2))
        a.e("s_mov_b32 s%d, %d" % (S_PB2, LA * (BBYTES if packed else kc * N * 2)))
        L = a.newlabel("pl")
        a.label(L)
        a.e("s_waitcnt vmcnt(%d)" % ((LA - 1) * (nA + nB)))
        a.e("s_barrier")
        a.e("s_add_u32 s%d, s%d, s%d" % (S_PA2, S_LA, S_PB))
        for i in range(nA):
            a.e("s_add_u32 m0, s%d, %d" % (S_PA2, i * 1024))
            a.e("s_nop 0")
            a.e("buffer_load_dwordx4 v%d, s[%d:%d], s%d offen lds" % (V_ADMA + i, SRD_A, SRD_A + 3, S_KA))
        a.e("s_add_u32 s%d, s%d, s%d" % (S_PA2, S_LB, S_PB))
        for i in range(nB):
            a.e("s_add_u32 m0, s%d, %d" % (S_PA2, ABYTES + i * 1024))
            if packed:
                assert BBYTES == BREG
                a.e("s_add_u32 s%d, s%d, %d" % (S_KB, S_PB2, i * 1024))
                a.e("buffer_load_dwordx4 v%d, s[%d:%d], s%d offen lds" % (V_BDMA, SRD_W, SRD_W + 3, S_KB))
            else:
                a.e("s_nop 0")
                a.e("buffer_load_dwordx4 v%d, s[%d:%d], s%d offen lds" % (V_BDMA + i, SRD_W, SRD_W + 3, S_PB2))
        a.e("s_add_u32 s%d, s%d, %d" % (S_KA, S_KA, kc * 2))
        a.e("s_add_u32 s%d, s%d, %d" % (S_PB2, S_PB2, BBYTES if packed else kc * N * 2))
        a.e("s_add_u32 s%d, s%d, %d" % (S_PB, S_PB, CH))
        a.e("s_cmp_eq_u32 s%d, %d" % (S_PB, nbuf * CH))
        a.e("s_cselect_b32 s%d, 0, s%d" % (S_PB, S_PB))
        a.e("s_add_u32 s%d, s%d, 1" % (S_PI, S_PI))
        a.e("s_cmp_lt_u32 s%d, %d" % (S_PI, nch - LA))
        a.e("s_cbranch_scc1 %s" % L)
        for c in range(nch - LA, nch):
            a.e("s_waitcnt vmcnt(%d)" % ((nch - 1 - c) * (nA + nB)))
            a.e("s_barrier")
        a.vm = []
        res_loads()
    for c in range(nch if not roll else 0):
        a.wait_vm([('A', c), ('B', c)])
        a.e("s_barrier")
        nc = c + LA
        if nc < nch:
            assert nc - nbuf < c
            dma_a(nc)
            dma_b(nc)
        if c == max(0, nch - 2):
            res_loads()
    a.e("s_barrier")
    a.e("s_branch %s" % L_p2)
    prod_vm = list(a.vm)

    a.vm = []
    a.lg = []
    a.label(L_cons)
    a.e("s_waitcnt lgkmcnt(0)")
    out_srds()
    for j in range(nt):
        if ln:
            a.e("s_mul_i32 s%d, s%d, %d" % (S_TT + j, S_W, ROT))
            a.e("s_add_u32 s%d, s%d, %d" % (S_TT + j, S_TT + j, j))
            a.e("s_cmp_ge_u32 s%d, %d" % (S_TT + j, nt))
            a.e("s_cselect_b32 s%d, %d, 0" % (S_T0, nt))
            a.e("s_sub_u32 s%d, s%d, s%d" % (S_TT + j, S_TT + j, S_T0))
        else:
            a.e("s_mov_b32 s%d, %d" % (S_TT + j, j))
    a.e("v_lshrrev_b32 v%d, 2, v%d" % (T, V_L15))
    a.e("v_lshl_add_u32 v%d, v%d, 2, v%d" % (T + 1, V_G, T))
    a.e("v_mul_u32_u24 v%d, %d, v%d" % (T + 2, P, T + 1))
    a.e("v_and_b32 v%d, 3, v%d" % (T + 3, V_L15))
    a.e("v_lshl_add_u32 v%d, v%d, 3, v%d" % (T + 2, T + 3, T + 2))
    a.e("v_add_u32 v%d, %d, v%d" % (T + 2, ABYTES, T + 2))
    a.e("v_and_b32 v%d, 7, v%d" % (T + 1, T + 1))
    for j in range(nt):
        if nt == 5:
            a.e("s_lshl_b32 s%d, s%d, 5" % (S_T0, S_TT + j))
            a.e("v_add_u32 v%d, s%d, v%d" % (V_B + j, S_T0, T + 2))
        elif nt == 8:
            a.e("v_xor_b32 v%d, s%d, v%d" % (T + 3, S_TT + j, T + 1))
            a.e("v_lshl_add_u32 v%d, v%d, 5, v%d" % (V_B + j, T + 3, T + 2))
        else:
            a.e("v_lshrrev_b32 v%d, 2, v%d" % (T + 3, T + 1))
            a.e("v_add_u32 v%d, s%d, v%d" % (T + 3, S_TT + j, T + 3))
            a.e("v_subrev_u32 v%d, 6, v%d" % (T + 4, T + 3))
            a.e("v_min_u32 v%d, v%d, v%d" % (T + 3, T + 3, T + 4))
            a.e("v_lshl_add_u32 v%d, v%d, 5, v%d" % (V_B + j, T + 3, T + 2))
    a.e("v_add_u32 v%d, s%d, v%d" % (T, S_WR0, V_L15))
    a.e("v_mul_u32_u24 v%d, %d, v%d" % (T, PA, T))
    if lpr == 16:
        a.e("v_xor_b32 v%d, v%d, v%d" % (T + 1, V_L15, V_G))
    elif lpr == 8:
        a.e("v_lshrrev_b32 v%d, 1, v%d" % (T + 1, V_L15))
        a.e("v_xor_b32 v%d, v%d, v%d" % (T + 1, T + 1, V_G))
    else:
        a.e("v_bfe_u32 v%d, v%d, 3, 1" % (T + 1, V_L15))
        a.e("v_lshlrev_b32 v%d, 1, v%d" % (T + 1, T + 1))
        a.e("v_xor_b32 v%d, v%d, v%d" % (T + 1, T + 1, V_G))
    for ks in range(kpc):
        a.e("v_xor_b32 v%d, %d, v%d" % (T + 2, ks * 4, T + 1))
        a.e("v_lshl_add_u32 v%d, v%d, 4, v%d" % (V_AR + ks, T + 2, T))
    for s_ in range(1, nset if not roll else 1):
        for j in range(nt):
            a.e("v_add_u32 v%d, 0x%x, v%d" % (V_B + s_ * nt + j, s_ * 65536, V_B + j))
        for ks in range(kpc):
            a.e("v_add_u32 v%d, 0x%x, v%d" % (V_AR + s_ * kpc + ks, s_ * 65536, V_AR + ks))
    for i in range(4):
        a.e("v_mov_b32 v%d, 0x3f803f80" % (V_ONES + i))
    for i in range(nagpr):
        a.e("v_accvgpr_write_b32 a%d, 0" % i)
    e_setup()

    S_BUF, S_DL, S_IT = 57, 58, 59

    def main_loop_rolled(swapped):
        F = kpc * nt
        PD = min(NF - 1, 5)
        fr = [(ks, t) for ks in range(kpc) for t in range(nt)]

        def rd(i, nxt_):
            ks, t = fr[i]
            st = 1 if nxt_ else 0
            tag = ('F', i)
            if t == 0:
                for mi in range(mt):
                    a.lds("ds_read_b128 %s, v%d offset:%d" % (
                        vr(V_AF + ((ks & 1) * mt + mi) * 4, 4), V_AR + st * kpc + ks, mi * 16 * PA), tag)
            reg = V_BF + (i % NF) * 4
            for r_ in range(2):
                a.lds("ds_read_b64_tr_b16 %s, v%d offset:%d" % (vr(reg + r_ * 2, 2), V_B + st * nt + t, (ks * 32 + r_ * 16) * P), tag)

        def comp(i):
            ks, t = fr[i]
            a.wait_lg([('F', i)])
            reg = V_BF + (i % NF) * 4
            for mi in range(mt):
                av = vr(V_AF + ((ks & 1) * mt + mi) * 4, 4)
                acc = ar(A_ACC + (mi * nt + t) * 4, 4)
                if swapped:
                    a.e("v_mfma_f32_16x16x32_bf16 %s, %s, %s, %s" % (acc, vr(reg, 4), av, acc))
                else:
                    a.e("v_mfma_f32_16x16x32_bf16 %s, %s, %s, %s" % (acc, av, vr(reg, 4), acc))
            if ln and t == 2:
                for mi in range(mt):
                    av = vr(V_AF + ((ks & 1) * mt + mi) * 4, 4)
                    a.e("v_mfma_f32_16x16x32_bf16 %s, %s, %s, %s" % (ar(A_SM + mi * 4, 4), vr(V_ONES, 4), av, ar(A_SM + mi * 4, 4)))
            if ln and t == 3:
                for mi in range(mt):
                    av = vr(V_AF + ((ks & 1) * mt + mi) * 4, 4)
                    a.e("v_mfma_f32_16x16x32_bf16 %s, %s, %s, %s" % (ar(A_GR + mi * 4, 4), av, av, ar(A_GR + mi * 4, 4)))
            if ln and t < NCS:
                acc = ar(A_CS + t * 4, 4)
                if swapped:
                    a.e("v_mfma_f32_16x16x32_bf16 %s, %s, %s, %s" % (acc, vr(reg, 4), vr(V_ONES, 4), acc))
                else:
                    a.e("v_mfma_f32_16x16x32_bf16 %s, %s, %s, %s" % (acc, vr(V_ONES, 4), vr(reg, 4), acc))

        assert PD <= nt
        a.e("s_mov_b32 s%d, 1" % S_BUF)
        a.e("s_mov_b32 s%d, 0" % S_IT)
        a.stamp(1)
        a.e("s_barrier")
        a.stamp(2)
        for i in range(PD):
            rd(i, False)
        L = a.newlabel("ml")
        a.label(L)
        a.e("s_cmp_eq_u32 s%d, %d" % (S_BUF, nbuf))
        a.e("s_cselect_b32 s%d, 0x%x, %d" % (S_DL, (-(nbuf - 1) * CH) & 0xffffffff, CH) if False else
            "s_mov_b32 s%d, %d" % (S_DL, CH))
        a.e("s_cbranch_scc0 %s_nw" % L)
        a.e("s_mov_b32 s%d, 0x%x" % (S_DL, (-(nbuf - 1) * CH) & 0xffffffff))
        a.e("s_mov_b32 s%d, 0" % S_BUF)
        a.label(L + "_nw")
        a.e("s_add_u32 s%d, s%d, 1" % (S_BUF, S_BUF))
        for j in range(PD):
            a.e("v_add_u32 v%d, s%d, v%d" % (V_B + nt + j, S_DL, V_B + j))
        a.e("v_add_u32 v%d, s%d, v%d" % (V_AR + kpc, S_DL, V_AR))
        for i in range(F):
            if i + PD < F:
                rd(i + PD, False)
            else:
                if i + PD == F:
                    a.e("s_barrier")
                rd(i + PD - F, True)
            comp(i)
        for j in range(nt):
            a.e("v_add_u32 v%d, s%d, v%d" % (V_B + j, S_DL, V_B + j))
        for ks in range(kpc):
            a.e("v_add_u32 v%d, s%d, v%d" % (V_AR + ks, S_DL, V_AR + ks))
        a.e("s_add_u32 s%d, s%d, 1" % (S_IT, S_IT))
        a.e("s_cmp_lt_u32 s%d, %d" % (S_IT, nch - 1))
        a.e("s_cbranch_scc1 %s" % L)
        res_loads()
        for i in range(F):
            if i + PD < F:
                rd(i + PD, False)
            comp(i)

    def main_loop(swapped):
        if roll:
            return main_loop_rolled(swapped)
        frs = [(c, ks, t) for c in range(nch) for ks in range(kpc) for t in range(nt)]
        if 'nocomp' in ABL:
            frs = []
            for c in range(nch):
                a.e("s_barrier")
        PD = NF - 1
        fpc = kpc * nt

        def chunk_begin(c):
            if c == 0:
                a.stamp(1)
            a.e("s_barrier")
            if c < 5:
                a.stamp(2 + c)
            if c == max(0, nch - 2):
                res_loads()

        def rd(idx):
            c, ks, t = frs[idx]
            buf = c % nbuf
            gk = c * kpc + ks
            if t == 0:
                for mi in range(mt):
                    off = buf * CH + mi * 16 * PA
                    st = off // 65536
                    a.lds("ds_read_b128 %s, v%d offset:%d" % (
                        vr(V_AF + ((gk & 1) * mt + mi) * 4, 4), V_AR + st * kpc + ks, off % 65536), ('F', idx))
            reg = V_BF + (idx % NF) * 4
            for r_ in range(2):
                off = buf * CH + (ks * 32 + r_ * 16) * P
                st = off // 65536
                a.lds("ds_read_b64_tr_b16 %s, v%d offset:%d" % (vr(reg + r_ * 2, 2), V_B + st * nt + t, off % 65536),
                      ('F', idx))
        issued = 0

        def issue_upto(lim):
            nonlocal issued
            while issued < min(lim, len(frs)):
                c, ks, t = frs[issued]
                if ks == 0 and t == 0:
                    chunk_begin(c)
                rd(issued)
                issued += 1
        for idx, (c, ks, t) in enumerate(frs):
            if early:
                issue_upto(idx + PD + 1)
            else:
                issue_upto(min(idx + PD + 1, (c + 1) * fpc))
            if 'nowait' in ABL:
                a.lg = [x for x in a.lg if x != ('F', idx)]
            else:
                a.wait_lg([('F', idx)])
            reg = V_BF + (idx % NF) * 4
            gk = c * kpc + ks
            for mi in range(mt):
                av = vr(V_AF + ((gk & 1) * mt + mi) * 4, 4)
                acc = ar(A_ACC + (mi * nt + t) * 4, 4)
                if swapped:
                    a.e("v_mfma_f32_16x16x32_bf16 %s, %s, %s, %s" % (acc, vr(reg, 4), av, acc))
                else:
                    a.e("v_mfma_f32_16x16x32_bf16 %s, %s, %s, %s" % (acc, av, vr(reg, 4), acc))
            if ln and t == 2:
                for mi in range(mt):
                    av = vr(V_AF + ((gk & 1) * mt + mi) * 4, 4)
                    a.e("v_mfma_f32_16x16x32_bf16 %s, %s, %s, %s" % (ar(A_SM + mi * 4, 4), vr(V_ONES, 4), av, ar(A_SM + mi * 4, 4)))
            if ln and t == 3:
                for mi in range(mt):
                    av = vr(V_AF + ((gk & 1) * mt + mi) * 4, 4)
                    a.e("v_mfma_f32_16x16x32_bf16 %s, %s, %s, %s" % (ar(A_GR + mi * 4, 4), av, av, ar(A_GR + mi * 4, 4)))
            if ln and t < NCS and 'nocs' not in ABL:
                acc = ar(A_CS + t * 4, 4)
                if swapped:
                    a.e("v_mfma_f32_16x16x32_bf16 %s, %s, %s, %s" % (acc, vr(reg, 4), vr(V_ONES, 4), acc))
                else:
                    a.e("v_mfma_f32_16x16x32_bf16 %s, %s, %s, %s" % (acc, vr(V_ONES, 4), vr(reg, 4), acc))

    def stats_fin():
        T = V_T
        a.e("s_mov_b32 s%d, 0x%x" % (S_T0, f32bits(1.0 / K)))
        a.e("s_mov_b32 s%d, 0x%x" % (S_T1, f32bits(1e-5)))
        a.e("v_and_b32 v%d, 3, v%d" % (T + 9, V_L15))
        a.e("v_lshrrev_b32 v%d, 2, v%d" % (T + 8, V_L15))
        a.e("v_cmp_eq_u32 s[%d:%d], v%d, v%d" % (S_EX, S_EX + 1, T + 8, V_G))
        a.e("v_add_u32 v%d, s%d, v%d" % (T + 10, S_WR0, V_L15))
        a.e("v_lshlrev_b32 v%d, 2, v%d" % (T + 11, T + 10))
        a.e("v_add_u32 v%d, 0x%x, v%d" % (T + 11, ABL_, T + 11))
        for mi in range(mt):
            sm, sq = V_BF, V_BF + 1
            mb, r1 = V_BF + 2, V_BF + 3
            a.e("v_accvgpr_read_b32 v%d, a%d" % (sm, A_SM + mi * 4))
            a.e("v_accvgpr_read_b32 v%d, a%d" % (sq, A_GR + mi * 4))
            for r_ in range(1, 4):
                a.e("v_accvgpr_read_b32 v%d, a%d" % (T + 6, A_GR + mi * 4 + r_))
                a.e("v_cmp_eq_u32 vcc, %d, v%d" % (r_, T + 9))
                a.e("s_nop 1")
                a.e("v_cndmask_b32 v%d, v%d, v%d, vcc" % (sq, sq, T + 6))
            a.e("v_mul_f32 v%d, s%d, v%d" % (sm, S_T0, sm))
            a.e("v_mul_f32 v%d, s%d, v%d" % (sq, S_T0, sq))
            a.e("v_fma_f32 v%d, -v%d, v%d, v%d" % (sq, sm, sm, sq))
            a.e("v_max_f32 v%d, 0, v%d" % (sq, sq))
            round_bf16(a, mb, sm, T)
            round_bf16(a, T + 1, sq, T)
            a.e("v_add_f32 v%d, s%d, v%d" % (T + 1, S_T1, T + 1))
            round_bf16(a, T + 1, T + 1, T)
            a.e("v_sqrt_f32 v%d, v%d" % (T + 1, T + 1))
            a.e("s_nop 0")
            round_bf16(a, T + 1, T + 1, T)
            a.e("v_rcp_f32 v%d, v%d" % (r1, T + 1))
            a.e("s_nop 0")
            al, be = T + 4, T + 5
            if ln == 1:
                a.e("v_mov_b32 v%d, v%d" % (al, r1))
                a.e("v_mul_f32 v%d, v%d, v%d" % (be, mb, r1))
            else:
                a.e("v_sub_f32 v%d, v%d, v%d" % (T + 2, sm, mb))
                a.e("v_mul_f32 v%d, v%d, v%d" % (T + 2, T + 2, r1))
                round_bf16(a, T + 2, T + 2, T)
                a.e("v_mul_f32 v%d, v%d, v%d" % (T + 3, sq, r1))
                a.e("v_mul_f32 v%d, v%d, v%d" % (T + 3, T + 3, r1))
                round_bf16(a, T + 3, T + 3, T)
                a.e("v_add_f32 v%d, s%d, v%d" % (T + 3, S_T1, T + 3))
                round_bf16(a, T + 3, T + 3, T)
                a.e("v_sqrt_f32 v%d, v%d" % (T + 3, T + 3))
                a.e("s_nop 0")
                round_bf16(a, T + 3, T + 3, T)
                a.e("v_rcp_f32 v%d, v%d" % (T + 3, T + 3))
                a.e("s_nop 0")
                a.e("v_mul_f32 v%d, v%d, v%d" % (al, r1, T + 3))
                a.e("v_mul_f32 v%d, v%d, v%d" % (T + 2, T + 2, T + 3))
                a.e("v_fma_f32 v%d, v%d, v%d, v%d" % (be, mb, al, T + 2))
            a.e("s_mov_b64 s[90:91], exec")
            a.e("s_mov_b64 exec, s[%d:%d]" % (S_EX, S_EX + 1))
            a.e("ds_write_b32 v%d, v%d offset:%d" % (T + 11, al, mi * 64))
            a.e("ds_write_b32 v%d, v%d offset:%d" % (T + 11, be, mi * 64 + Mt * 4))
            if ln == 2:
                lab = a.newlabel("st")
                a.e("s_cmp_eq_u32 s%d, 0" % S_CB)
                a.e("s_cbranch_scc0 %s" % lab)
                a.e("v_add_u32 v%d, s%d, v%d" % (T + 6, S_ROW0, T + 10))
                a.e("v_lshlrev_b32 v%d, 3, v%d" % (T + 6, T + 6))
                a.e("buffer_store_dwordx2 %s, v%d, s[%d:%d], 0 offen offset:%d" % (vr(mb, 2), T + 6, SRD_ST, SRD_ST + 3, mi * 128))
                a.label(lab)
            a.e("s_mov_b64 exec, s[90:91]")

    def post_loop(swapped):
        a.stamp(7)
        a.e("s_nop 7")
        a.e("s_nop 1")
        T = V_E
        if ln:
            if swapped:
                a.e("v_lshlrev_b32 v%d, 4, v%d" % (T, V_G))
                a.e("v_cmp_eq_u32 vcc, 0, v%d" % V_L15)
            else:
                a.e("v_lshlrev_b32 v%d, 2, v%d" % (T, V_L15))
                a.e("v_cmp_eq_u32 vcc, 0, v%d" % V_G)
            a.e("v_add_u32 v%d, 0x%x, v%d" % (T, CSL, T))
            for j in range(nt):
                a.e("s_lshl_b32 s%d, s%d, 6" % (S_T0, S_TT + j))
                a.e("v_add_u32 v%d, s%d, v%d" % (V_CS + j * 4 + 3, S_T0, T))
            a.e("s_and_saveexec_b64 s[%d:%d], vcc" % (S_EX, S_EX + 1))
            for j in range(NCS):
                if swapped:
                    for r_ in range(4):
                        a.e("v_accvgpr_read_b32 v%d, a%d" % (T + 4 + r_, A_CS + j * 4 + r_))
                    a.e("ds_write_b128 v%d, %s" % (V_CS + j * 4 + 3, vr(T + 4, 4)))
                else:
                    a.e("v_accvgpr_read_b32 v%d, a%d" % (T + 4, A_CS + j * 4))
                    a.e("ds_write_b32 v%d, v%d" % (V_CS + j * 4 + 3, T + 4))
            a.e("s_mov_b64 exec, s[%d:%d]" % (S_EX, S_EX + 1))
            stats_fin()
        a.wait_lg0()
        a.e("s_barrier")
        if ln:
            for j in range(nt):
                if swapped:
                    a.lds("ds_read_b128 %s, v%d" % (vr(V_CS + j * 4, 4), V_CS + j * 4 + 3))
                else:
                    a.lds("ds_read_b32 v%d, v%d" % (V_CS + j * 4, V_CS + j * 4 + 3))
            if swapped:
                a.e("v_add_u32 v%d, s%d, v%d" % (T, S_WR0, V_L15))
                a.e("v_lshlrev_b32 v%d, 2, v%d" % (T, T))
                a.e("v_add_u32 v%d, 0x%x, v%d" % (T, ABL_, T))
                for mi in range(mt):
                    a.lds("ds_read_b32 v%d, v%d offset:%d" % (V_AL + mi * 4, T, mi * 64))
                    a.lds("ds_read_b32 v%d, v%d offset:%d" % (V_BE + mi * 4, T, mi * 64 + Mt * 4))
            else:
                a.e("v_lshl_add_u32 v%d, v%d, 2, s%d" % (T, V_G, S_WR0))
                a.e("v_lshlrev_b32 v%d, 2, v%d" % (T, T))
                a.e("v_add_u32 v%d, 0x%x, v%d" % (T, ABL_, T))
                for mi in range(mt):
                    a.lds("ds_read_b128 %s, v%d offset:%d" % (vr(V_AL + mi * 4, 4), T, mi * 64))
                    a.lds("ds_read_b128 %s, v%d offset:%d" % (vr(V_BE + mi * 4, 4), T, mi * 64 + Mt * 4))
            a.wait_lg0()
        a.stamp(8)

    def acc_read(mi, j, dst):
        for r_ in range(4):
            a.e("v_accvgpr_read_b32 v%d, a%d" % (dst + r_, A_ACC + (mi * nt + j) * 4 + r_))

    def unpack(dst, src, n):
        for i in range(n):
            a.e("v_lshlrev_b32 v%d, 16, v%d" % (dst + 2 * i, src + i))
            a.e("v_and_b32 v%d, 0xffff0000, v%d" % (dst + 2 * i + 1, src + i))

    def pack(dst, src, n):
        for i in range(n):
            a.e("v_cvt_pk_bf16_f32 v%d, v%d, v%d" % (dst + i, src + 2 * i, src + 2 * i + 1))

    E = V_E + 4
    PTV = Mt * 2 + 16

    def phase1(swapped):
        if swapped:
            a.e("v_add_u32 v%d, s%d, v%d" % (V_E, S_WR0, V_L15))
            a.e("v_mul_u32_u24 v%d, %d, v%d" % (V_E, PT, V_E))
            a.e("v_lshl_add_u32 v%d, v%d, 3, v%d" % (V_E, V_G, V_E))
        else:
            a.e("v_mul_u32_u24 v%d, %d, v%d" % (V_E, PTV, V_L15))
            a.e("v_lshl_add_u32 v%d, v%d, 3, v%d" % (V_E, V_G, V_E))
            a.e("v_lshl_add_u32 v%d, s%d, 1, v%d" % (V_E, S_WR0, V_E))
        for j in range(nt):
            a.e("s_mul_i32 s%d, s%d, %d" % (S_T0, S_TT + j, 32 if swapped else 16 * PTV))
            a.e("v_add_u32 v%d, s%d, v%d" % (V_E + 1, S_T0, V_E))
            for mi in range(mt):
                W_ = E + (mi & 1) * 8
                acc_read(mi, j, W_)
                if ln:
                    for r_ in range(4):
                        a.e("v_mul_f32 v%d, v%d, v%d" % (W_ + r_, W_ + r_, V_AL + mi * 4 + (0 if swapped else r_)))
                    for r_ in range(4):
                        if swapped:
                            a.e("v_fma_f32 v%d, -v%d, v%d, v%d" % (W_ + r_, V_BE + mi * 4, V_CS + j * 4 + r_, W_ + r_))
                        else:
                            a.e("v_fma_f32 v%d, -v%d, v%d, v%d" % (W_ + r_, V_BE + mi * 4 + r_, V_CS + j * 4, W_ + r_))
                pack(W_ + 4, W_, 2)
                a.lds("ds_write_b64 v%d, %s offset:%d" % (V_E + 1, vr(W_ + 4, 2), mi * 16 * PT if swapped else mi * 32))
        a.wait_lg0()

    if epi == 'qkv':
        L_v = name + "_vpath"
        a.e("s_cmp_ge_u32 s%d, 10" % S_CB)
        a.e("s_cbranch_scc1 %s" % L_v)
        saved = (list(a.vm), list(a.lg))
        main_loop(True)
        post_loop(True)
        phase1(True)
        a.e("s_branch %s" % L_p2)
        a.label(L_v)
        a.vm, a.lg = saved
        main_loop(False)
        post_loop(False)
        phase1(False)
    else:
        main_loop(True)
        post_loop(True)
        phase1(True)

    a.label(L_p2)
    a.e("s_barrier")
    a.vm = [None] * 70
    T = V_E
    if epi == 'qkv':
        L_v2 = name + "_v2"
        a.e("s_cmp_ge_u32 s%d, 10" % S_CB)
        a.e("s_cbranch_scc1 %s" % L_v2)
        a.e("s_cmp_ge_u32 s%d, 5" % S_CB)
        a.e("s_cselect_b32 s%d, 640, 0" % S_T0)
        a.e("s_cselect_b32 s%d, 0x%x, 0" % (S_SEC, WS_K - WS_Q))
        a.e("s_sub_u32 s%d, s%d, s%d" % (S_T0, S_COL0, S_T0))
        a.e("s_mov_b32 s%d, 3277" % S_T1)
        a.e("v_and_b32 v%d, 31, v%d" % (T, V_LANE))
        a.e("v_lshrrev_b32 v%d, 5, v%d" % (T + 1, V_LANE))
        a.e("v_lshl_add_u32 v%d, s%d, 4, v%d" % (T + 1, S_W8, T + 1))
        a.e("v_mul_u32_u24 v%d, %d, v%d" % (T + 2, PT, T + 1))
        a.e("v_lshl_add_u32 v%d, v%d, 3, v%d" % (T + 2, T, T + 2))
        a.e("v_lshl_add_u32 v%d, v%d, 2, s%d" % (T, T, S_T0))
        a.e("v_mul_lo_u32 v%d, v%d, s%d" % (T + 3, T, S_T1))
        a.e("v_lshrrev_b32 v%d, 16, v%d" % (T + 3, T + 3))
        a.e("v_mul_u32_u24 v%d, 20, v%d" % (E, T + 3))
        a.e("v_sub_u32 v%d, v%d, v%d" % (T, T, E))
        a.e("v_lshlrev_b32 v%d, 11, v%d" % (T + 3, T + 3))
        a.e("v_add3_u32 v%d, v%d, v%d, s%d" % (T + 3, T + 3, T + 1, S_ROW0))
        a.e("v_mul_u32_u24 v%d, 40, v%d" % (T + 3, T + 3))
        a.e("v_lshl_add_u32 v%d, v%d, 1, v%d" % (T + 3, T, T + 3))
        a.e("v_add_u32 v%d, s%d, v%d" % (T + 3, S_SEC, T + 3))
        for e_ in range(8):
            a.lds("ds_read_b64 %s, v%d offset:%d" % (vr(E + e_ * 2, 2), T + 2, e_ * 2 * PT), ('e', e_))
        for e_ in range(8):
            a.wait_lg([('e', e_)])
            a.e("buffer_store_dwordx2 %s, v%d, s[%d:%d], 0 offen offset:%d" % (
                vr(E + e_ * 2, 2), T + 3, SRD_O, SRD_O + 3, e_ * 80))
        a.stamp(9)
        a.stamp_out(10, V_E)
        a.e("s_endpgm")
        a.label(L_v2)
        a.e("v_lshrrev_b32 v%d, 4, v%d" % (T, V_LANE))
        a.e("v_lshl_add_u32 v%d, s%d, 4, v%d" % (T, S_W8, T))
        a.e("v_mul_u32_u24 v%d, %d, v%d" % (T + 1, PTV, T))
        a.e("v_lshl_add_u32 v%d, v%d, 4, v%d" % (T + 1, V_L15, T + 1))
        a.e("s_sub_u32 s%d, s%d, 1280" % (S_T0, S_COL0))
        a.e("v_add_u32 v%d, s%d, v%d" % (T, S_T0, T))
        a.e("v_lshlrev_b32 v%d, 12, v%d" % (T, T))
        a.e("v_lshl_add_u32 v%d, v%d, 4, v%d" % (T, V_L15, T))
        a.e("s_lshl_b32 s%d, s%d, 1" % (S_T0, S_ROW0))
        a.e("s_add_u32 s%d, s%d, 0x%x" % (S_T0, S_T0, WS_VT - WS_Q))
        a.e("v_add_u32 v%d, s%d, v%d" % (T, S_T0, T))
        for e_ in range(4):
            a.lds("ds_read_b128 %s, v%d offset:%d" % (vr(E + e_ * 4, 4), T + 1, e_ * 4 * PTV), ('e', e_))
        for e_ in range(4):
            a.wait_lg([('e', e_)])
            a.e("buffer_store_dwordx4 %s, v%d, s[%d:%d], 0 offen" % (vr(E + e_ * 4, 4), T, SRD_O, SRD_O + 3))
            a.e("v_add_u32 v%d, 0x4000, v%d" % (T, T))
    else:
        for e_ in range(nE):
            a.lds("ds_read_b128 %s, v%d" % (vr(V_CS + e_ * 4, 4), V_EL + e_), ('e', e_))
        assert nE * 4 <= nt * 4
        if epi == 'gelu':
            a.e("s_mov_b32 s%d, 0x%x" % (S_C2, f32bits(GELU_C2)))
            a.e("v_mov_b32 v%d, 0x%x" % (V_E, f32bits(GELU_C1)))
        else:
            a.e("s_waitcnt vmcnt(0)")
        for e_ in range(nE):
            a.wait_lg([('e', e_)])
            src = V_CS + e_ * 4
            unpack(E, src, 4)
            if epi == 'gelu':
                for r_ in range(8):
                    a.e("v_mul_f32 v%d, v%d, v%d" % (E + 8 + r_, E + r_, E + r_))
                for r_ in range(8):
                    a.e("v_fma_f32 v%d, v%d, s%d, v%d" % (E + 8 + r_, E + 8 + r_, S_C2, V_E))
                for r_ in range(8):
                    a.e("v_mul_f32 v%d, v%d, v%d" % (E + 8 + r_, E + 8 + r_, E + r_))
                for r_ in range(8):
                    a.e("v_exp_f32 v%d, v%d" % (E + 8 + r_, E + 8 + r_))
                for r_ in range(8):
                    a.e("v_add_f32 v%d, 1.0, v%d" % (E + 8 + r_, E + 8 + r_))
                for r_ in range(8):
                    a.e("v_rcp_f32 v%d, v%d" % (E + 8 + r_, E + 8 + r_))
                for r_ in range(8):
                    a.e("v_mul_f32 v%d, v%d, v%d" % (E + r_, E + r_, E + 8 + r_))
            else:
                unpack(E + 8, V_R1 + e_ * 4, 4)
                if epi == 'x1':
                    for r_ in range(8):
                        a.e("v_sub_f32 v%d, v%d, v%d" % (E + 8 + r_, E + 8 + r_, V_RS + e_ * 2))
                    pack(E + 16, E + 8, 4)
                    unpack(E + 8, E + 16, 4)
                    for r_ in range(8):
                        a.e("v_mul_f32 v%d, v%d, v%d" % (E + 8 + r_, E + 8 + r_, V_RS + e_ * 2 + 1))
                    pack(E + 16, E + 8, 4)
                    unpack(E + 8, E + 16, 4)
                for r_ in range(8):
                    a.e("v_add_f32 v%d, v%d, v%d" % (E + r_, E + r_, E + 8 + r_))
                if epi == 'out':
                    pack(E + 16, E, 4)
                    unpack(E, E + 16, 4)
                    unpack(E + 8, V_R2 + e_ * 4, 4)
                    for r_ in range(8):
                        a.e("v_add_f32 v%d, v%d, v%d" % (E + r_, E + r_, E + 8 + r_))
            pack(src, E, 4)
            a.e("buffer_store_dwordx4 %s, v%d, s[%d:%d], 0 offen" % (vr(src, 4), V_EO + e_, SRD_O, SRD_O + 3))
        a.stamp(9)
        a.stamp_out(10, V_E)
    a.label(L_end)
    a.e("s_endpgm")
    if packwg:
        a.label(name + "_pack")
        emit_pack_path(a, ntiles, packwg)
    return a.lines, kernel_desc(name, nv, nagpr), ntiles + packwg, lds_bytes, 512


def gen_attn(name):
    a = Asm()
    KL = 0
    VL = 384 * 64
    PV = 800
    lds_bytes = VL + 23 * PV
    lds_bytes = (lds_bytes + 1023) // 1024 * 1024 + 1024

    V_LANE, V_L15, V_G = 1, 2, 3
    V_T = 4
    V_KA = 12
    V_VA = 14
    V_A = 16
    V_X16, V_X32, V_BS = 17, 18, 19
    V_Q = 20
    V_O = 28
    V_KF = 44
    V_VF = 60
    V_M = 76
    V_S = 80
    V_PD = V_S + 144
    V_PA = V_PD + 20
    nv = V_PA + 5
    S_WS = 4
    SRD_Q, SRD_K, SRD_V, SRD_O = 8, 12, 16, 20
    S_W, S_H, S_Q0, S_T0, S_T1, S_KS, S_C, S_EX = 32, 33, 34, 35, 36, 37, 38, 40

    kernel_header(a, name)
    L_end = name + "_end"
    a.e("s_cmp_ge_u32 s2, 512")
    a.e("s_cbranch_scc1 %s" % L_end)
    a.stamp(0)
    a.e("s_load_dwordx2 s[%d:%d], s[0:1], %d" % (S_WS, S_WS + 1, KA['ws']))
    a.e("s_load_dwordx2 s[24:25], s[0:1], 16")
    a.e("s_load_dwordx8 s[84:91], s[0:1], 32")
    a.e("s_and_b32 s%d, s2, 7" % S_T0)
    a.e("s_lshr_b32 s%d, s2, 3" % S_T1)
    a.e("s_lshr_b32 s%d, s%d, 1" % (S_H, S_T1))
    a.e("s_and_b32 s%d, s%d, 1" % (S_Q0, S_T1))
    a.e("s_lshl_b32 s%d, s%d, 1" % (S_T0, S_T0))
    a.e("s_add_u32 s%d, s%d, s%d" % (S_Q0, S_Q0, S_T0))
    a.e("s_lshl_b32 s%d, s%d, 7" % (S_Q0, S_Q0))
    a.e("v_and_b32 v%d, 63, v0" % V_LANE)
    a.e("v_lshrrev_b32 v%d, 6, v0" % V_T)
    a.e("v_and_b32 v%d, 15, v0" % V_L15)
    a.e("v_bfe_u32 v%d, v0, 4, 2" % V_G)
    a.e("v_readfirstlane_b32 s%d, v%d" % (S_W, V_T))
    a.e("s_waitcnt lgkmcnt(0)")
    build_srd(a, SRD_Q, S_WS, WS_Q, 32 * 2048 * 40)
    build_srd(a, SRD_K, S_WS, WS_K, 32 * 2048 * 40)
    build_srd(a, SRD_V, S_WS, WS_VT, 640 * 2048 * 2)
    build_srd(a, SRD_O, S_WS, WS_O, S * D * 2)
    T = V_T
    a.e("s_lshl_b32 s%d, s%d, 11" % (S_T0, S_H))
    a.e("s_add_u32 s%d, s%d, s%d" % (S_T0, S_T0, S_Q0))
    a.e("s_sub_u32 s%d, s%d, 256" % (S_T0, S_T0))
    a.e("s_mul_i32 s%d, s%d, 96" % (S_T1, S_W))
    a.e("s_add_u32 s%d, s%d, s%d" % (S_T0, S_T0, S_T1))
    a.e("s_mul_i32 s%d, s%d, 40" % (S_KS, S_T0))
    a.e("v_lshrrev_b32 v%d, 2, v%d" % (T, V_LANE))
    a.e("v_mul_u32_u24 v%d, 40, v%d" % (T, T))
    a.e("v_add_u32 v%d, s%d, v%d" % (T, S_KS, T))
    a.e("v_and_b32 v%d, 3, v%d" % (T + 1, V_LANE))
    a.e("v_mov_b32 v%d, 0x7fffff00" % (T + 6))
    a.e("v_lshl_add_u32 v%d, v%d, 4, v%d" % (T + 2, T + 1, T))
    a.e("v_cmp_eq_u32 vcc, 3, v%d" % (T + 1))
    a.e("v_xor_b32 v%d, 2, v%d" % (T + 1, T + 1))
    a.e("v_lshl_add_u32 v%d, v%d, 4, v%d" % (T + 3, T + 1, T))
    a.e("v_cndmask_b32 v%d, v%d, v%d, vcc" % (T + 2, T + 2, T + 6))
    a.e("v_cmp_eq_u32 vcc, 3, v%d" % (T + 1))
    a.e("s_mul_i32 s%d, s%d, 6144" % (S_T1, S_W))
    a.e("s_nop 0")
    a.e("v_cndmask_b32 v%d, v%d, v%d, vcc" % (T + 3, T + 3, T + 6))
    for i in range(6):
        a.e("s_add_u32 m0, s%d, %d" % (S_T1, KL + i * 1024))
        a.e("v_add_u32 v%d, %d, v%d" % (T + 4 + (i & 1), i * 640, T + 2 + (i & 1)))
        a.vmem("buffer_load_dwordx4 v%d, s[%d:%d], 0 offen lds" % (T + 4 + (i & 1), SRD_K, SRD_K + 3))
    a.e("s_lshl_b32 s%d, s%d, 11" % (S_T0, S_H))
    a.e("s_add_u32 s%d, s%d, s%d" % (S_T0, S_T0, S_Q0))
    a.e("s_lshl_b32 s%d, s%d, 5" % (S_T1, S_W))
    a.e("s_add_u32 s%d, s%d, s%d" % (S_T0, S_T0, S_T1))
    a.e("v_add_u32 v%d, s%d, v%d" % (T, S_T0, V_L15))
    a.e("v_mul_u32_u24 v%d, 40, v%d" % (T, T))
    a.e("v_lshl_add_u32 v%d, v%d, 4, v%d" % (T, V_G, T))
    a.vmem("buffer_load_dwordx4 %s, v%d, s[%d:%d], 0 offen" % (vr(V_Q, 4), T, SRD_Q, SRD_Q + 3), 'Q')
    a.vmem("buffer_load_dwordx4 %s, v%d, s[%d:%d], 0 offen offset:640" % (vr(V_Q + 4, 4), T, SRD_Q, SRD_Q + 3), 'Q')
    a.e("s_mul_i32 s%d, s%d, 20" % (S_T0, S_H))
    a.e("s_lshl_b32 s%d, s%d, 12" % (S_T0, S_T0))
    a.e("s_lshl_b32 s%d, s%d, 1" % (S_T1, S_Q0))
    a.e("s_add_u32 s%d, s%d, s%d" % (S_T0, S_T0, S_T1))
    a.e("s_sub_u32 s%d, s%d, 512" % (S_T0, S_T0))
    a.e("s_lshl_b32 s%d, s%d, 8" % (S_T1, S_W))
    a.e("s_mov_b32 s%d, 1311" % S_C)
    for G in range(1024):
        assert (G * 1311) >> 16 == G // 50
    for i in range(4):
        a.e("v_add_u32 v%d, s%d, v%d" % (T, S_T1, V_LANE))
        if i:
            a.e("v_add_u32 v%d, %d, v%d" % (T, i * 64, T))
        a.e("v_mul_lo_u32 v%d, v%d, s%d" % (T + 1, T, S_C))
        a.e("v_lshrrev_b32 v%d, 16, v%d" % (T + 1, T + 1))
        a.e("v_mul_u32_u24 v%d, 50, v%d" % (T + 2, T + 1))
        a.e("v_sub_u32 v%d, v%d, v%d" % (T + 2, T, T + 2))
        a.e("v_lshlrev_b32 v%d, 12, v%d" % (T + 3, T + 1))
        a.e("v_lshl_add_u32 v%d, v%d, 4, v%d" % (T + 3, T + 2, T + 3))
        a.e("v_add_u32 v%d, s%d, v%d" % (T + 3, S_T0, T + 3))
        a.e("v_cmp_le_u32 vcc, 20, v%d" % (T + 1))
        a.e("v_cmp_le_u32 s[%d:%d], 48, v%d" % (S_EX, S_EX + 1, T + 2))
        a.e("s_or_b64 vcc, vcc, s[%d:%d]" % (S_EX, S_EX + 1))
        a.e("v_mov_b32 v%d, 0x7fffff00" % (T + 4))
        a.e("s_lshl_b32 m0, s%d, 12" % S_W)
        a.e("v_cndmask_b32 v%d, v%d, v%d, vcc" % (T + 3, T + 3, T + 4))
        a.e("s_add_u32 m0, m0, %d" % (VL + i * 1024))
        a.e("s_nop 0")
        a.vmem("buffer_load_dwordx4 v%d, s[%d:%d], 0 offen lds" % (T + 3, SRD_V, SRD_V + 3), 'VD')
    a.stamp(1)
    a.stamp(2)
    a.e("v_lshrrev_b32 v%d, 2, v%d" % (T, V_L15))
    a.e("v_and_b32 v%d, 3, v%d" % (T + 1, V_L15))
    a.e("v_lshl_add_u32 v%d, v%d, 3, v%d" % (T, T, T + 1))
    a.e("v_bfe_u32 v%d, v%d, 4, 1" % (T + 1, T))
    a.e("v_lshlrev_b32 v%d, 1, v%d" % (T + 1, T + 1))
    a.e("v_xor_b32 v%d, v%d, v%d" % (T + 1, T + 1, V_G))
    a.e("v_lshlrev_b32 v%d, 6, v%d" % (T, T))
    a.e("v_lshl_add_u32 v%d, v%d, 4, v%d" % (T, T + 1, T))
    a.e("s_lshl_b32 s%d, s%d, 11" % (S_T0, S_W))
    a.e("v_add_u32 v%d, s%d, v%d" % (V_KA, S_T0, T))
    a.e("v_add_u32 v%d, 256, v%d" % (V_KA + 1, V_KA))
    a.e("v_mul_u32_u24 v%d, %d, v%d" % (T, PV, V_L15))
    a.e("v_lshl_add_u32 v%d, v%d, 4, v%d" % (T, V_G, T))
    a.e("s_lshl_b32 s%d, s%d, 6" % (S_T0, S_W))
    a.e("s_add_u32 s%d, s%d, %d" % (S_T0, S_T0, VL))
    a.e("v_add_u32 v%d, s%d, v%d" % (V_VA, S_T0, T))
    a.e("v_add_u32 v%d, 16, v%d" % (T, V_L15))
    a.e("v_add_u32 v%d, 17, v%d" % (T + 1, V_L15))
    a.e("v_min_u32 v%d, 22, v%d" % (T + 1, T + 1))
    a.e("v_cmp_gt_u32 vcc, 4, v%d" % V_L15)
    a.e("s_nop 1")
    a.e("v_cndmask_b32 v%d, v%d, v%d, vcc" % (T, T + 1, T))
    a.e("v_mul_u32_u24 v%d, %d, v%d" % (T, PV, T))
    a.e("v_lshl_add_u32 v%d, v%d, 4, v%d" % (T, V_G, T))
    a.e("v_add_u32 v%d, s%d, v%d" % (V_VA + 1, S_T0, T))
    a.e("v_lshlrev_b32 v%d, 3, v%d" % (T, V_G))
    a.e("v_sub_u32 v%d, v%d, v%d" % (V_A, V_L15, T))
    a.e("v_xor_b32 v%d, 16, v%d" % (T, V_LANE))
    a.e("v_lshlrev_b32 v%d, 2, v%d" % (V_X16, T))
    a.e("v_xor_b32 v%d, 32, v%d" % (T, V_LANE))
    a.e("v_lshlrev_b32 v%d, 2, v%d" % (V_X32, T))
    a.e("v_add_u32 v%d, 16, v%d" % (T, V_L15))
    a.e("v_lshlrev_b32 v%d, 2, v%d" % (V_BS, T))
    for i in range(16):
        a.e("v_mov_b32 v%d, 0" % (V_O + i))
    a.e("v_cmp_gt_u32 vcc, 48, v%d" % V_LANE)
    a.e("s_and_saveexec_b64 s[%d:%d], vcc" % (S_EX, S_EX + 1))
    a.e("s_cmp_lt_u32 s%d, 2" % S_W)
    labz = a.newlabel("ones")
    a.e("s_cbranch_scc0 %s" % labz)
    a.e("s_cmp_eq_u32 s%d, 0" % S_W)
    a.e("s_cselect_b32 s%d, 0x3f803f80, 0" % S_T0)
    for i in range(4):
        a.e("v_mov_b32 v%d, s%d" % (T + 4 + i, S_T0))
    a.e("s_mul_i32 s%d, s%d, %d" % (S_T0, S_W, PV))
    a.e("s_add_u32 s%d, s%d, %d" % (S_T0, S_T0, VL + 21 * PV))
    a.e("v_lshlrev_b32 v%d, 4, v%d" % (T, V_LANE))
    a.e("v_add_u32 v%d, s%d, v%d" % (T, S_T0, T))
    a.e("ds_write_b128 v%d, %s" % (T, vr(T + 4, 4)))
    a.label(labz)
    a.e("s_mov_b64 exec, s[%d:%d]" % (S_EX, S_EX + 1))
    emit_pack_calc(a, S_W, V_LANE, T, V_PD, V_PA, 44)
    a.e("v_cmp_gt_u32 vcc, 2, v%d" % V_G)
    a.e("v_cmp_gt_u32 s[%d:%d], 3, v%d" % (S_EX, S_EX + 1, V_G))
    a.e("s_waitcnt lgkmcnt(0)")
    a.wait_vm(['Q'])
    a.e("s_barrier")
    a.stamp(3)
    emit_pack_issue(a, V_PD, 44)
    for qt in range(2):
        a.e("v_cndmask_b32 v%d, 0, v%d, s[%d:%d]" % (V_Q + qt * 4, V_Q + qt * 4, S_EX, S_EX + 1))
        a.e("v_cndmask_b32 v%d, 0, v%d, s[%d:%d]" % (V_Q + qt * 4 + 1, V_Q + qt * 4 + 1, S_EX, S_EX + 1))
        a.e("v_cndmask_b32 v%d, 0, v%d, vcc" % (V_Q + qt * 4 + 2, V_Q + qt * 4 + 2))
        a.e("v_cndmask_b32 v%d, 0, v%d, vcc" % (V_Q + qt * 4 + 3, V_Q + qt * 4 + 3))
    a.stamp(4)

    def sreg(b, qt):
        return V_S + (b * 2 + qt) * 8

    def kread(b):
        for Tt in range(2):
            a.lds("ds_read_b128 %s, v%d offset:%d" % (vr(V_KF + (b & 1) * 8 + Tt * 4, 4), V_KA + Tt, KL + b * 2048), ('K', b))
    kread(0)
    for b in range(9):
        if b + 1 < 9:
            kread(b + 1)
        a.wait_lg([('K', b)])
        for qt in range(2):
            for Tt in range(2):
                a.e("v_mfma_f32_16x16x32_bf16 %s, %s, %s, 0" % (
                    vr(sreg(b, qt) + Tt * 4, 4), vr(V_KF + (b & 1) * 8 + Tt * 4, 4), vr(V_Q + qt * 4, 4)))
    a.wait_lg0()
    def vread(b):
        for dt in range(2):
            a.lds("ds_read_b128 %s, v%d offset:%d" % (vr(V_VF + (b & 1) * 8 + dt * 4, 4), V_VA + dt, b * 64), ('V', b))
    a.e("s_nop 7")
    a.e("s_nop 3")
    a.stamp(5)
    a.e("v_mov_b32 v%d, 0xf149f2ca" % (V_M + 2))
    for qt in range(2):
        for Tt in range(2):
            for r_ in range(4):
                th = Tt * 4 + r_ - qt * 16
                a.e("v_cmp_gt_i32 vcc, %d, v%d" % (th, V_A))
                a.e("s_nop 1")
                r0 = sreg(0, qt) + Tt * 4 + r_
                r8 = sreg(8, qt) + Tt * 4 + r_
                a.e("v_cndmask_b32 v%d, v%d, v%d, vcc" % (r0, V_M + 2, r0))
                a.e("v_cndmask_b32 v%d, v%d, v%d, vcc" % (r8, r8, V_M + 2))
    a.e("s_lshl_b32 s%d, s%d, 5" % (S_T0, S_W))
    a.e("s_add_u32 s%d, s%d, s%d" % (S_T0, S_T0, S_Q0))
    for b in range(8):
        lab = a.newlabel("neg")
        a.e("s_cmp_lt_i32 s%d, %d" % (S_T0, 256 - b * 32))
        a.e("s_cbranch_scc0 %s" % lab)
        for i in range(16):
            a.e("v_mov_b32 v%d, v%d" % (sreg(b, 0) + i, V_M + 2))
        a.label(lab)
    for qt in range(2):
        regs = [sreg(b, qt) + i for b in range(9) for i in range(8)]
        a.e("v_max3_f32 v%d, v%d, v%d, v%d" % (V_M + qt, regs[0], regs[1], regs[2]))
        for i in range(3, 71, 2):
            a.e("v_max3_f32 v%d, v%d, v%d, v%d" % (V_M + qt, V_M + qt, regs[i], regs[i + 1]))
        a.e("v_max_f32 v%d, v%d, v%d" % (V_M + qt, V_M + qt, regs[71]))
    for xr in (V_X16, V_X32):
        for qt in range(2):
            a.lds("ds_bpermute_b32 v%d, v%d, v%d" % (V_M + 2 + qt, xr, V_M + qt), 'x')
        a.wait_lg(['x'])
        for qt in range(2):
            a.e("v_max_f32 v%d, v%d, v%d" % (V_M + qt, V_M + qt, V_M + 2 + qt))
    cs = (DH ** -0.5) * 1.4426950408889634
    a.e("s_mov_b32 s%d, 0x%x" % (S_C, f32bits(cs)))
    for qt in range(2):
        a.e("v_mul_f32 v%d, s%d, v%d" % (V_M + qt, S_C, V_M + qt))
    a.stamp(6)
    a.wait_vm(['VD'])
    a.e("s_barrier")
    vread(0)
    for b in range(9):
        for qt in range(2):
            r0 = sreg(b, qt)
            for i in range(8):
                a.e("v_fma_f32 v%d, v%d, s%d, -v%d" % (r0 + i, r0 + i, S_C, V_M + qt))
            for i in range(8):
                a.e("v_exp_f32 v%d, v%d" % (r0 + i, r0 + i))
            a.e("s_nop 0")
            for i in range(4):
                a.e("v_cvt_pk_bf16_f32 v%d, v%d, v%d" % (r0 + i, r0 + 2 * i, r0 + 2 * i + 1))
        if b + 1 < 9:
            vread(b + 1)
        if b == 3:
            emit_pack_stores(a, S_WS, V_PD, V_PA, 44)
        a.wait_lg([('V', b)])
        a.e("s_nop 1")
        for dt in range(2):
            for qt in range(2):
                o = vr(V_O + (dt * 2 + qt) * 4, 4)
                a.e("v_mfma_f32_16x16x32_bf16 %s, %s, %s, %s" % (
                    o, vr(V_VF + (b & 1) * 8 + dt * 4, 4), vr(sreg(b, qt), 4), o))
    a.e("s_nop 7")
    a.e("s_nop 3")
    a.stamp(7)
    a.stamp(8)
    for qt in range(2):
        a.lds("ds_bpermute_b32 v%d, v%d, v%d" % (V_M + qt, V_BS, V_O + (2 + qt) * 4), 'x')
    a.e("s_lshl_b32 s%d, s%d, 5" % (S_T0, S_W))
    a.e("s_add_u32 s%d, s%d, s%d" % (S_T0, S_T0, S_Q0))
    a.e("v_add_u32 v%d, s%d, v%d" % (T, S_T0, V_L15))
    a.e("s_movk_i32 s%d, 1280" % S_T1)
    a.e("v_mul_lo_u32 v%d, v%d, s%d" % (T, T, S_T1))
    a.e("v_lshl_add_u32 v%d, v%d, 3, v%d" % (T, V_G, T))
    a.e("s_mul_i32 s%d, s%d, 40" % (S_T0, S_H))
    a.e("v_add_u32 v%d, s%d, v%d" % (T, S_T0, T))
    a.e("v_add_u32 v%d, %d, v%d" % (T + 1, 16 * 1280, T))
    a.wait_lg(['x'])
    for qt in range(2):
        a.e("v_rcp_f32 v%d, v%d" % (V_M + qt, V_M + qt))
    a.e("s_nop 0")
    for qt in range(2):
        for dt in range(2):
            o = V_O + (dt * 2 + qt) * 4
            for r_ in range(4):
                a.e("v_mul_f32 v%d, v%d, v%d" % (o + r_, o + r_, V_M + qt))
            a.e("v_cvt_pk_bf16_f32 v%d, v%d, v%d" % (o, o, o + 1))
            a.e("v_cvt_pk_bf16_f32 v%d, v%d, v%d" % (o + 1, o + 2, o + 3))
    for qt in range(2):
        a.e("buffer_store_dwordx2 %s, v%d, s[%d:%d], 0 offen offset:%d" % (
            vr(V_O + qt * 4, 2), T + qt, SRD_O, SRD_O + 3, 0))
    a.e("v_cmp_eq_u32 vcc, 0, v%d" % V_G)
    a.e("s_and_saveexec_b64 s[%d:%d], vcc" % (S_EX, S_EX + 1))
    for qt in range(2):
        a.e("buffer_store_dwordx2 %s, v%d, s[%d:%d], 0 offen offset:%d" % (
            vr(V_O + (2 + qt) * 4, 2), T + qt, SRD_O, SRD_O + 3, 32))
    a.e("s_mov_b64 exec, s[%d:%d]" % (S_EX, S_EX + 1))
    a.stamp(9)
    a.stamp_out(10, V_T, wg=40)
    a.label(L_end)
    a.e("s_endpgm")
    return a.lines, kernel_desc(name, nv, 0), 512, lds_bytes, 256


def main():
    out = sys.argv[1] if len(sys.argv) > 1 else "sequential_preLN__sliding_block__mixer_s_mlp__prompt.s"
    ks = []
    ks.append(("k1_kernel",) + gen_gemm("k1_kernel", 640, 1920, 128, 128, ('in', 'x'), 'wqkv', 1, 'qkv', 64, early=True, roll=True))
    ks.append(("k2_kernel",) + gen_attn("k2_kernel"))
    ks.append(("k3_kernel",) + gen_gemm("k3_kernel", 640, 640, 64, 80, ('ws', WS_O), 'wo', 0, 'res', 128, early=True, roll=True))
    ks.append(("k4_kernel",) + gen_gemm("k4_kernel", 640, 640, 64, 80, ('ws', WS_H), 'w1', 2, 'gelu', 128, early=True, roll=True))
    ks.append(("k5_kernel",) + gen_gemm("k5_kernel", 640, 640, 64, 80, ('ws', WS_HG), 'w2', 0, 'x1', 128, shift=True, pf=('w3', 640 * 1536 * 2)))
    ks.append(("k6_kernel",) + gen_gemm("k6_kernel", 640, 1536, 128, 96, ('ws', WS_X1), 'w3', 1, 'gelu', 64, early=True, roll=True))
    ks.append(("k7_kernel",) + gen_gemm("k7_kernel", 1536, 640, 64, 80, ('ws', WS_G), 'w4', 0, 'out', 128, early=True, roll=True))
    hdr = open("sequential_preLN__sliding_block__mixer_s_mlp__prompt.s.ref").read().split("\n")
    txt = []
    for l in hdr:
        if l.startswith("; @launch") or l.startswith("; Override") or l.startswith("; grid="):
            continue
        if not l.startswith(";"):
            break
        txt.append(l)
    for (nm, lines, desc, ntiles, lds, blk) in ks:
        txt.append("; @launch kernel=%s grid=(%d,1,1) block=(%d,1,1) lds=%d" % (nm, ntiles, blk, lds))
    txt.append('.amdgcn_target "amdgcn-amd-amdhsa--gfx950"')
    txt.append(".text")
    for (nm, lines, desc, ntiles, lds, blk) in ks:
        txt += lines
    txt.append('.section .rodata,"a"')
    for (nm, lines, desc, ntiles, lds, blk) in ks:
        txt.append(".p2align 6")
        txt.append(desc)
    open(out, "w").write("\n".join(txt) + "\n")
    print("wrote", out, "lines", len(txt))


if __name__ == "__main__":
    main()
```

```python
import sys, os
ABL = set(os.environ.get('ABL', '').split(','))

S = 2048
D = 640
F = 1536
H = 32
DH = 20

WS_Q = 0
WS_K = WS_Q + 32 * 2048 * 64
WS_VT = WS_K + 32 * 2048 * 64
WS_O = WS_VT + 640 * 2048 * 2
WS_H = WS_O + S * D * 2
WS_HG = WS_H + S * D * 2
WS_X1 = WS_HG + S * D * 2
WS_G = WS_X1 + S * D * 2
WS_ST = WS_G + S * F * 2
WS_PW = {}
_o = WS_ST + S * 8
for _k, _n in (('wo', 640 * 640 * 2), ('w1', 640 * 640 * 2), ('w2', 640 * 640 * 2), ('w3', 640 * 1536 * 2), ('w4', 640 * 1536 * 2)):
    WS_PW[_k] = _o
    _o += _n
WS_END = _o
PACK = dict(wo=(640, 640, 80, 128), w1=(640, 640, 80, 128), w2=(640, 640, 80, 128), w3=(640, 1536, 96, 64), w4=(1536, 640, 80, 128))

KA = dict(x=0, wqkv=8, wo=16, bx=24, w1=32, w2=40, w3=48, w4=56, out=64, dbg=72, ws=80)


class Asm:
    def __init__(self):
        self.lines = []
        self.vm = []
        self.lg = []
        Asm.uid = getattr(Asm, 'uid', 0)

    def e(self, s):
        self.lines.append("    " + s)

    def label(self, s):
        self.lines.append(s + ":")

    def c(self, s):
        self.lines.append("    ; " + s)

    def newlabel(self, p):
        Asm.uid += 1
        return "L_%s_%d" % (p, Asm.uid)

    def vmem(self, s, tag=None):
        self.e(s)
        self.vm.append(tag)

    def lds(self, s, tag=None):
        self.e(s)
        self.lg.append(tag)

    def _need(self, lst, tags):
        last = -1
        for i, t in enumerate(lst):
            if t in tags:
                last = i
        return last

    def wait_vm(self, tags):
        last = self._need(self.vm, tags)
        if last < 0:
            return
        n = len(self.vm) - 1 - last
        if n <= 63:
            self.e("s_waitcnt vmcnt(%d)" % n)
        self.vm = self.vm[last + 1:]

    def wait_lg(self, tags):
        last = self._need(self.lg, tags)
        if last < 0:
            return
        n = len(self.lg) - 1 - last
        assert n <= 15, n
        self.e("s_waitcnt lgkmcnt(%d)" % n)
        self.lg = self.lg[last + 1:]

    def stamp(self, i):
        if 'stamp' not in ABL:
            return
        self.e("s_memtime s[%d:%d]" % (60 + 2 * i, 61 + 2 * i))
        if i == 0:
            self.e("s_memrealtime s[92:93]")
        if i == 9:
            self.e("s_memrealtime s[94:95]")
        self.e("s_waitcnt lgkmcnt(0)")
        self.lg = []

    def stamp_out(self, n, vtmp, wg=0):
        if 'stamp' not in ABL:
            return
        Asm.kidx = getattr(Asm, 'kidx', 0) + 1
        self.e("s_load_dwordx2 s[56:57], s[0:1], 80")
        self.e("s_waitcnt lgkmcnt(0)")
        self.e("s_add_u32 s56, s56, 0x%x" % ((64 << 20) + self.kslot * 65536))
        self.e("s_addc_u32 s57, s57, 0")
        self.e("s_and_b32 s57, s57, 0xffff")
        self.e("s_mov_b32 s58, 65536")
        self.e("s_mov_b32 s59, 0x00020000")
        self.e("v_cmp_eq_u32 vcc, 0, v0")
        self.e("s_and_saveexec_b64 s[80:81], vcc")
        self.e("s_lshl_b32 s82, s2, 3")
        self.e("v_mov_b32 v%d, s82" % vtmp)
        self.e("v_mov_b32 v%d, s92" % (vtmp + 1))
        self.e("buffer_store_dword v%d, v%d, s[56:59], 0 offen" % (vtmp + 1, vtmp))
        self.e("v_mov_b32 v%d, s94" % (vtmp + 1))
        self.e("buffer_store_dword v%d, v%d, s[56:59], 0 offen offset:4" % (vtmp + 1, vtmp))
        self.e("s_mov_b64 exec, s[80:81]")
        lab = self.newlabel("stamp")
        self.e("s_cmp_eq_u32 s2, %d" % wg)
        self.e("s_cbranch_scc0 %s" % lab)
        self.e("s_load_dwordx2 s[56:57], s[0:1], 72")
        self.e("s_waitcnt lgkmcnt(0)")
        self.e("s_and_b32 s57, s57, 0xffff")
        self.e("s_mov_b32 s58, 256")
        self.e("s_mov_b32 s59, 0x00020000")
        self.e("v_lshrrev_b32 v%d, 6, v0" % vtmp)
        self.e("v_lshlrev_b32 v%d, 6, v%d" % (vtmp, vtmp))
        self.e("v_and_b32 v%d, 63, v0" % (vtmp + 1))
        self.e("v_cmp_eq_u32 vcc, 0, v%d" % (vtmp + 1))
        self.e("s_and_saveexec_b64 s[80:81], vcc")
        for i in range(n):
            self.e("s_sub_u32 s82, s%d, s60" % (60 + 2 * i))
            self.e("v_mov_b32 v%d, s82" % (vtmp + 1))
            self.e("buffer_store_dword v%d, v%d, s[56:59], 0 offen offset:%d" % (vtmp + 1, vtmp, i * 4))
        self.e("s_sub_u32 s82, s94, s92")
        self.e("v_mov_b32 v%d, s82" % (vtmp + 1))
        self.e("buffer_store_dword v%d, v%d, s[56:59], 0 offen offset:%d" % (vtmp + 1, vtmp, 40))
        self.e("v_mov_b32 v%d, s92" % (vtmp + 1))
        self.e("buffer_store_dword v%d, v%d, s[56:59], 0 offen offset:%d" % (vtmp + 1, vtmp, 44))
        self.e("v_mov_b32 v%d, s94" % (vtmp + 1))
        self.e("buffer_store_dword v%d, v%d, s[56:59], 0 offen offset:%d" % (vtmp + 1, vtmp, 48))
        self.e("s_mov_b64 exec, s[80:81]")
        self.label(lab)

    def wait_all(self):
        self.e("s_waitcnt vmcnt(0) lgkmcnt(0)")
        self.vm = []
        self.lg = []

    def wait_lg0(self):
        self.e("s_waitcnt lgkmcnt(0)")
        self.lg = []

    def wait_vm0(self):
        self.e("s_waitcnt vmcnt(0)")
        self.vm = []


def vr(b, n=1):
    return "v%d" % b if n == 1 else "v[%d:%d]" % (b, b + n - 1)


def ar(b, n=1):
    return "a%d" % b if n == 1 else "a[%d:%d]" % (b, b + n - 1)


def sr(b, n=1):
    return "s%d" % b if n == 1 else "s[%d:%d]" % (b, b + n - 1)


def build_srd(a, d, ptr, off, size):
    if off:
        a.e("s_add_u32 s%d, s%d, 0x%x" % (d, ptr, off))
        a.e("s_addc_u32 s%d, s%d, 0" % (d + 1, ptr + 1))
        a.e("s_and_b32 s%d, s%d, 0xffff" % (d + 1, d + 1))
    else:
        a.e("s_mov_b32 s%d, s%d" % (d, ptr))
        a.e("s_and_b32 s%d, s%d, 0xffff" % (d + 1, ptr + 1))
    a.e("s_mov_b32 s%d, 0x%x" % (d + 2, size))
    a.e("s_mov_b32 s%d, 0x00020000" % (d + 3))


def f32bits(x):
    import struct
    return struct.unpack("<I", struct.pack("<f", x))[0]


def sigma(nt, t, r):
    if nt == 5:
        return t
    if nt == 8:
        return t ^ r
    if nt == 6:
        return (t + (r >> 2)) % 6
    raise ValueError(nt)


def round_bf16(a, dst, src, tmp):
    a.e("v_cvt_pk_bf16_f32 %s, %s, %s" % (vr(tmp), vr(src), vr(src)))
    a.e("v_lshlrev_b32 %s, 16, %s" % (vr(dst), vr(tmp)))


def kernel_header(a, name):
    a.kslot = int(name[1])
    a.lines.append(".p2align 8")
    a.lines.append(".globl %s" % name)
    a.lines.append(".type %s,@function" % name)
    a.label(name)


def kernel_desc(name, nvgpr_arch, nagpr, nsgpr=96):
    acc = (nvgpr_arch + 3) // 4 * 4
    tot = acc + nagpr if nagpr else nvgpr_arch
    return """.amdhsa_kernel %s
  .amdhsa_next_free_vgpr %d
  .amdhsa_next_free_sgpr %d
  .amdhsa_accum_offset %d
  .amdhsa_group_segment_fixed_size 0
  .amdhsa_kernarg_size 88
  .amdhsa_user_sgpr_count 2
  .amdhsa_user_sgpr_kernarg_segment_ptr 1
  .amdhsa_system_sgpr_workgroup_id_x 1
.end_amdhsa_kernel
""" % (name, tot, nsgpr, acc)


def emit_prefetch(a, key, nbytes, nwg_per_xcd, s_srd, s_t0, s_w, v_lane, v_t, nwaves=4):
    if 'pf' not in ABL:
        return
    per_wg = (nbytes + nwg_per_xcd - 1) // nwg_per_xcd
    per_wave = (per_wg + nwaves - 1) // nwaves
    per_wave = (per_wave + 8191) // 8192 * 8192
    a.e("s_load_dwordx2 s[%d:%d], s[0:1], %d" % (s_srd, s_srd + 1, KA[key]))
    a.e("s_lshr_b32 s%d, s2, 3" % s_t0)
    a.e("s_mul_i32 s%d, s%d, %d" % (s_t0, s_t0, nwaves))
    a.e("s_add_u32 s%d, s%d, s%d" % (s_t0, s_t0, s_w))
    a.e("s_mul_i32 s%d, s%d, %d" % (s_t0, s_t0, per_wave))
    a.e("v_lshlrev_b32 v%d, 7, v%d" % (v_t, v_lane))
    a.e("v_add_u32 v%d, s%d, v%d" % (v_t, s_t0, v_t))
    a.e("s_waitcnt lgkmcnt(0)")
    a.lg = []
    a.e("s_and_b32 s%d, s%d, 0xffff" % (s_srd + 1, s_srd + 1))
    a.e("s_mov_b32 s%d, 0x%x" % (s_srd + 2, nbytes))
    a.e("s_mov_b32 s%d, 0x00020000" % (s_srd + 3))
    for i in range(per_wave // 8192):
        a.e("s_mov_b32 s%d, %d" % (s_t0, i * 8192))
        a.vmem("buffer_load_dword v%d, v%d, s[%d:%d], s%d offen" % (v_t + 1, v_t, s_srd, s_srd + 3, s_t0), 'PF')


def emit_b_src(a, nt, N, gpr, T, vG, dst, s_magic, s_n2):
    a.e("v_mul_lo_u32 v%d, v%d, s%d" % (T + 1, vG, s_magic))
    a.e("v_lshrrev_b32 v%d, 16, v%d" % (T + 1, T + 1))
    a.e("v_mul_u32_u24 v%d, %d, v%d" % (T + 2, gpr, T + 1))
    a.e("v_sub_u32 v%d, v%d, v%d" % (T + 2, vG, T + 2))
    a.e("v_lshrrev_b32 v%d, 1, v%d" % (T + 3, T + 2))
    a.e("v_and_b32 v%d, 1, v%d" % (T + 2, T + 2))
    a.e("v_and_b32 v%d, 7, v%d" % (T + 4, T + 1))
    if nt == 8:
        a.e("v_xor_b32 v%d, v%d, v%d" % (T + 3, T + 3, T + 4))
    elif nt == 6:
        a.e("v_lshrrev_b32 v%d, 2, v%d" % (T + 4, T + 4))
        a.e("v_sub_u32 v%d, v%d, v%d" % (T + 3, T + 3, T + 4))
        a.e("v_add_u32 v%d, 6, v%d" % (T + 4, T + 3))
        a.e("v_min_u32 v%d, v%d, v%d" % (T + 3, T + 3, T + 4))
    a.e("v_bfe_u32 v%d, v%d, 2, 2" % (T + 4, T + 1))
    a.e("v_bfe_u32 v%d, v%d, 4, 1" % (T + 5, T + 1))
    a.e("v_and_b32 v%d, 0x%x, v%d" % (T + 6, 0xffe3, T + 1))
    a.e("v_lshl_add_u32 v%d, v%d, 3, v%d" % (T + 6, T + 4, T + 6))
    a.e("v_lshl_add_u32 v%d, v%d, 2, v%d" % (T + 6, T + 5, T + 6))
    a.e("v_mul_lo_u32 v%d, v%d, s%d" % (T + 6, T + 6, s_n2))
    a.e("v_lshlrev_b32 v%d, 5, v%d" % (T + 3, T + 3))
    a.e("v_lshl_add_u32 v%d, v%d, 4, v%d" % (T + 3, T + 2, T + 3))
    a.e("v_add_u32 v%d, v%d, v%d" % (dst, T + 6, T + 3))


def emit_pack_path(a, first_wg, nwg):
    NW = 120
    NBAT = 16
    V_LANE, T, V_LS, V_L16, V_D = 1, 8, 16, 17, 20
    V_A = V_D + NBAT * 4
    S_WS, SRD_S, SRD_D = 4, 8, 12
    S_PW, S_U, S_CB, S_C, S_I, S_T0, S_T1, S_MG, S_N2 = 32, 33, 34, 35, 36, 37, 38, 39, 40
    L_done = a.newlabel("pkdone")
    a.e("s_load_dwordx2 s[%d:%d], s[0:1], %d" % (S_WS, S_WS + 1, KA['ws']))
    a.e("v_and_b32 v%d, 63, v0" % V_LANE)
    a.e("v_lshrrev_b32 v%d, 6, v0" % T)
    a.e("v_lshlrev_b32 v%d, 4, v%d" % (V_L16, V_LANE))
    a.e("v_readfirstlane_b32 s%d, v%d" % (S_PW, T))
    a.e("s_sub_u32 s%d, s2, %d" % (S_T0, first_wg))
    a.e("s_lshl_b32 s%d, s%d, 3" % (S_T0, S_T0))
    a.e("s_add_u32 s%d, s%d, s%d" % (S_PW, S_PW, S_T0))
    a.e("s_cmp_ge_u32 s%d, %d" % (S_PW, NW))
    a.e("s_cbranch_scc1 %s" % L_done)
    for key in ('wo', 'w1', 'w2', 'w3', 'w4'):
        K, N, Nt, kc = PACK[key]
        nt = Nt // 16
        gpr = Nt // 8
        U = K * N * 2 // 1024
        UC = K * Nt * 2 // 1024
        UB = kc * Nt * 2 // 1024
        NCH = K // kc
        assert NW % UB == 0 and UC % UB == 0
        magic = (65536 + gpr - 1) // gpr
        mUB = (1 << 32) // UB + 1
        mNC = (1 << 32) // NCH + 1
        nq = U // UB
        for u in range(U + NBAT * NW):
            assert (u * mUB) >> 32 == u // UB
        for q in range(nq + 200):
            assert (q * mNC) >> 32 == q // NCH
        a.e("s_load_dwordx2 s[%d:%d], s[0:1], %d" % (SRD_S, SRD_S + 1, KA[key]))
        a.e("s_mov_b32 s%d, %d" % (S_MG, magic))
        a.e("s_mov_b32 s%d, %d" % (S_N2, N * 2))
        a.e("s_mul_hi_u32 s%d, s%d, 0x%x" % (S_T0, S_PW, mUB))
        a.e("s_mul_i32 s%d, s%d, %d" % (S_T0, S_T0, UB))
        a.e("s_sub_u32 s%d, s%d, s%d" % (S_I, S_PW, S_T0))
        a.e("s_lshl_b32 s%d, s%d, 6" % (S_I, S_I))
        a.e("v_add_u32 v%d, s%d, v%d" % (T, S_I, V_LANE))
        emit_b_src(a, nt, N, gpr, T, T, V_LS, S_MG, S_N2)
        a.e("s_waitcnt lgkmcnt(0)")
        a.e("s_and_b32 s%d, s%d, 0xffff" % (SRD_S + 1, SRD_S + 1))
        a.e("s_mov_b32 s%d, 0x%x" % (SRD_S + 2, K * N * 2))
        a.e("s_mov_b32 s%d, 0x00020000" % (SRD_S + 3))
        build_srd(a, SRD_D, S_WS, WS_PW[key], K * N * 2)
        a.e("s_mov_b32 s%d, s%d" % (S_U, S_PW))
        nb = min(NBAT, (U + NW - 1) // NW)
        L = a.newlabel("pk")
        a.label(L)
        for b in range(nb):
            a.e("s_add_u32 s%d, s%d, %d" % (S_T1, S_U, b * NW))
            a.e("s_mul_hi_u32 s%d, s%d, 0x%x" % (S_C, S_T1, mUB))
            a.e("s_mul_hi_u32 s%d, s%d, 0x%x" % (S_CB, S_C, mNC))
            a.e("s_mul_i32 s%d, s%d, %d" % (S_T0, S_CB, NCH))
            a.e("s_sub_u32 s%d, s%d, s%d" % (S_C, S_C, S_T0))
            a.e("s_mul_i32 s%d, s%d, %d" % (S_C, S_C, kc * N * 2))
            a.e("s_mul_i32 s%d, s%d, %d" % (S_CB, S_CB, Nt * 2))
            a.e("s_add_u32 s%d, s%d, s%d" % (S_C, S_C, S_CB))
            a.e("s_lshl_b32 s%d, s%d, 10" % (S_T1, S_T1))
            a.e("v_add_u32 v%d, s%d, v%d" % (V_A + 2 * b, S_C, V_LS))
            a.e("v_add_u32 v%d, s%d, v%d" % (V_A + 2 * b + 1, S_T1, V_L16))
            a.e("buffer_load_dwordx4 %s, v%d, s[%d:%d], 0 offen" % (vr(V_D + b * 4, 4), V_A + 2 * b, SRD_S, SRD_S + 3))
        for b in range(nb):
            a.e("s_waitcnt vmcnt(%d)" % (nb - 1))
            a.e("buffer_store_dwordx4 %s, v%d, s[%d:%d], 0 offen" % (vr(V_D + b * 4, 4), V_A + 2 * b + 1, SRD_D, SRD_D + 3))
        a.e("s_add_u32 s%d, s%d, %d" % (S_U, S_U, nb * NW))
        a.e("s_cmp_lt_u32 s%d, %d" % (S_U, U))
        a.e("s_cbranch_scc1 %s" % L)
    a.label(L_done)
    a.e("s_endpgm")


def emit_pack_calc(a, s_w, v_lane, T, V_PD, V_PA, S0):
    S_PW, S_U, S_CB, S_C, S_I, S_T0, S_T1, S_MG, S_N2 = [S0 + i for i in range(9)]
    SRD_S = S0 + 12
    a.e("s_lshl_b32 s%d, s2, 2" % S_PW)
    a.e("s_add_u32 s%d, s%d, s%d" % (S_PW, S_PW, s_w))
    for idx, (key, wofs) in enumerate((('wo', 0), ('w1', 800), ('w2', 1240), ('w3', 0), ('w4', 0))):
        K, N, Nt, kc = PACK[key]
        nt = Nt // 16
        gpr = Nt // 8
        U = K * N * 2 // 1024
        UB = kc * Nt * 2 // 1024
        NCH = K // kc
        magic = (65536 + gpr - 1) // gpr
        mUB = (1 << 32) // UB + 1
        mNC = (1 << 32) // NCH + 1
        for u in range(2100):
            assert (u * mUB) >> 32 == u // UB
            assert (u * mNC) >> 32 == u // NCH
        a.e("s_mov_b32 s%d, %d" % (S_MG, magic))
        a.e("s_mov_b32 s%d, %d" % (S_N2, N * 2))
        a.e("s_sub_u32 s%d, s%d, %d" % (S_U, S_PW, wofs))
        a.e("s_cmp_lt_u32 s%d, %d" % (S_U, U))
        a.e("s_cselect_b32 s%d, s%d, 0x100000" % (S_U, S_U))
        a.e("s_mul_hi_u32 s%d, s%d, 0x%x" % (S_C, S_U, mUB))
        a.e("s_mul_i32 s%d, s%d, %d" % (S_T0, S_C, UB))
        a.e("s_sub_u32 s%d, s%d, s%d" % (S_I, S_U, S_T0))
        a.e("s_lshl_b32 s%d, s%d, 6" % (S_I, S_I))
        a.e("v_add_u32 v%d, s%d, v%d" % (T, S_I, v_lane))
        emit_b_src(a, nt, N, gpr, T, T, T + 7, S_MG, S_N2)
        a.e("s_mul_hi_u32 s%d, s%d, 0x%x" % (S_CB, S_C, mNC))
        a.e("s_mul_i32 s%d, s%d, %d" % (S_T0, S_CB, NCH))
        a.e("s_sub_u32 s%d, s%d, s%d" % (S_C, S_C, S_T0))
        a.e("s_mul_i32 s%d, s%d, %d" % (S_C, S_C, kc * N * 2))
        a.e("s_mul_i32 s%d, s%d, %d" % (S_CB, S_CB, Nt * 2))
        a.e("s_add_u32 s%d, s%d, s%d" % (S_C, S_C, S_CB))
        a.e("s_cmp_lt_u32 s%d, %d" % (S_U, U))
        a.e("s_cselect_b32 s%d, s%d, 0x7ff00000" % (S_C, S_C))
        a.e("v_add_u32 v%d, s%d, v%d" % (V_PD + idx * 4, S_C, T + 7))
        a.e("s_lshl_b32 s%d, s%d, 10" % (S_T1, S_U))
        a.e("s_add_u32 s%d, s%d, 0x%x" % (S_T1, S_T1, WS_PW[key] - WS_PW['wo']))
        a.e("v_lshl_add_u32 v%d, v%d, 4, s%d" % (V_PA + idx, v_lane, S_T1))


def emit_pack_issue(a, V_PD, S0):
    SRD_S = S0 + 12
    for idx, key in enumerate(('wo', 'w1', 'w2', 'w3', 'w4')):
        K, N, Nt, kc = PACK[key]
        sp = {'wo': 24, 'w1': 84, 'w2': 86, 'w3': 88, 'w4': 90}[key]
        a.e("s_mov_b32 s%d, s%d" % (SRD_S, sp))
        a.e("s_and_b32 s%d, s%d, 0xffff" % (SRD_S + 1, sp + 1))
        a.e("s_mov_b32 s%d, 0x%x" % (SRD_S + 2, K * N * 2))
        a.e("s_mov_b32 s%d, 0x00020000" % (SRD_S + 3))
        a.vmem("buffer_load_dwordx4 %s, v%d, s[%d:%d], 0 offen" % (vr(V_PD + idx * 4, 4), V_PD + idx * 4, SRD_S, SRD_S + 3), 'PK')


def emit_pack_stores(a, s_ws, V_PD, V_PA, S0):
    SRD_D = S0 + 12
    build_srd(a, SRD_D, s_ws, WS_PW['wo'], WS_END - WS_PW['wo'])
    a.wait_vm(['PK'])
    for idx in range(5):
        a.vmem("buffer_store_dwordx4 %s, v%d, s[%d:%d], 0 offen" % (vr(V_PD + idx * 4, 4), V_PA + idx, SRD_D, SRD_D + 3), 'PS')


GELU_C1 = -2.0 * 0.7978845608028654 * 1.4426950408889634
GELU_C2 = GELU_C1 * 0.044715


def gelu_inplace(a, x, t1, t2, s_c1, s_c2):
    a.e("v_mul_f32 %s, %s, %s" % (vr(t1), vr(x), vr(x)))
    a.e("v_mov_b32 %s, %s" % (vr(t2), sr(s_c1)))
    a.e("v_fma_f32 %s, %s, %s, %s" % (vr(t1), vr(t1), sr(s_c2), vr(t2)))
    a.e("v_mul_f32 %s, %s, %s" % (vr(t1), vr(t1), vr(x)))
    a.e("v_exp_f32 %s, %s" % (vr(t1), vr(t1)))
    a.e("s_nop 0")
    a.e("v_add_f32 %s, 1.0, %s" % (vr(t1), vr(t1)))
    a.e("v_rcp_f32 %s, %s" % (vr(t1), vr(t1)))
    a.e("s_nop 0")
    a.e("v_mul_f32 %s, %s, %s" % (vr(x), vr(x), vr(t1)))


def gen_gemm(name, K, N, Mt, Nt, a_src, w_key, ln, epi, kc, shift=False, nbuf=None, LA=None, pf=None, packwg=0, early=False, roll=False, fz=None):
    a = Asm() if fz is None else fz['a']
    SC = " sc1" if (fz is not None and fz.get('signal') is not None) else ""
    if 'roll' not in ABL:
        roll = False
        if kc == 128:
            early = False
    packed = w_key in PACK
    if packed:
        assert PACK[w_key] == (K, N, Nt, kc)
    mt = Mt // 64
    nt = Nt // 16
    WR = Mt // 4
    P = Nt * 2
    PA = kc * 2
    ABYTES = Mt * PA
    BBYTES = kc * P
    BREG = (BBYTES + 4095) // 4096 * 4096
    CH = ABYTES + BREG
    nch = K // kc
    kpc = kc // 32
    RB = S // Mt
    CB = N // Nt
    ntiles = RB * CB
    if nbuf is None:
        nbuf = min(nch, (156 * 1024) // CH)
    if LA is None:
        LA = nbuf - 1 if nbuf < nch else nbuf
        if early and nbuf < nch and 'safe' in ABL:
            LA = nbuf - 2
    MISC = nbuf * CH
    CSL = MISC
    ABL_ = MISC + 1024
    lds_bytes = MISC + 1024 + Mt * 8
    pitchA = K * 2
    nA = ABYTES // 4096
    nB = BREG // 4096
    assert ABYTES % 4096 == 0 and (BBYTES % 4096 == 0 or packed)
    lpr = kc // 8
    rpi = 64 // lpr
    gpr = Nt // 8
    ROT = 1 if nt == 5 else 2
    NCS = 2
    nS = nA

    V_LANE, V_L15, V_G = 1, 2, 3
    nxt = 4
    nset = (MISC + 65535) // 65536
    if roll:
        nset = 2
    V_B = nxt; nxt += nt * nset
    V_AR = nxt; nxt += kpc * nset
    V_T = nxt; nxt += 12
    nxt = (nxt + 3) // 4 * 4
    V_ONES = nxt; nxt += 4
    NF = int(os.environ.get('NF', '6'))
    if roll:
        NF = {8: 8, 6: 6, 5: 5}[nt]
        assert (kpc * nt) % NF == 0 and kpc % 2 == 0
    V_BF = nxt; nxt += NF * 4
    V_AF = nxt; nxt += 2 * mt * 4
    V_CS = nxt; nxt += nt * 4
    V_E = nxt; nxt += 24
    V_AL = nxt; nxt += 4 * mt
    V_BE = nxt; nxt += 4 * mt
    V_ADMA = V_B
    V_BDMA = V_B + nA
    V_SA = V_BDMA + nB
    assert nA + nB + 1 <= nt * nset + kpc * nset
    V_SD = V_BF
    V_SS = V_CS
    assert nS * 4 <= NF * 4 + 2 * mt * 4 and 2 * nS <= nt * 4
    EG = Mt * gpr
    nE = (EG + 511) // 512
    if epi == 'qkv':
        nE = 0
    V_EO = nxt; nxt += nE
    V_EL = nxt; nxt += nE
    nxt = (nxt + 3) // 4 * 4
    V_R1 = nxt; nxt += 4 * nE if epi in ('res', 'x1', 'out') else 0
    V_R2 = nxt; nxt += 4 * nE if epi in ('out',) else 0
    V_RS = nxt; nxt += 2 * nE if epi == 'x1' else 0
    nv = nxt
    A_ACC = 0
    A_CS = mt * nt * 4
    A_SM = A_CS + NCS * 4
    A_GR = A_SM + mt * 4
    nagpr = A_GR + mt * 4 if ln else A_CS
    assert (nv + 3) // 4 * 4 + nagpr <= 256, (name, nv, nagpr)

    S_WS, S_P = 4, 6
    SRD_A, SRD_W, SRD_O, SRD_R1, SRD_R2, SRD_ST = 8, 12, 16, 20, 24, 28
    S_W, S_RB, S_CB, S_ROW0, S_COL0, S_T0, S_T1, S_LA, S_LB, S_KA, S_KB = 32, 33, 34, 35, 36, 37, 38, 39, 40, 41, 42
    S_W8 = 43
    S_EX = 44
    S_SEC = 46
    S_C2 = 47
    S_TT = 48
    S_WR0 = 56 if 'stamp' not in ABL else 84

    L_end = name + "_end"
    if fz is None:
        kernel_header(a, name)
        a.e("s_cmp_ge_u32 s2, %d" % (ntiles + packwg))
        a.e("s_cbranch_scc1 %s" % L_end)
        if packwg:
            a.e("s_cmp_ge_u32 s2, %d" % ntiles)
            a.e("s_cbranch_scc1 %s_pack" % name)
        a.stamp(0)
        a.e("s_load_dwordx2 s[%d:%d], s[0:1], %d" % (S_WS, S_WS + 1, KA['ws']))
        if not packed:
            a.e("s_load_dwordx2 s[%d:%d], s[0:1], %d" % (SRD_W, SRD_W + 1, KA[w_key]))
        if a_src[0] == 'in':
            a.e("s_load_dwordx2 s[%d:%d], s[0:1], %d" % (SRD_A, SRD_A + 1, KA[a_src[1]]))
        if epi == 'res':
            a.e("s_load_dwordx2 s[%d:%d], s[0:1], %d" % (SRD_R1, SRD_R1 + 1, KA['x']))
        if epi == 'out':
            a.e("s_load_dwordx2 s[%d:%d], s[0:1], %d" % (SRD_O, SRD_O + 1, KA['out']))
    else:
        assert packed and a_src[0] == 'ws' and ntiles == 256
        a.vm = []
        a.lg = []
        if epi == 'res':
            a.e("s_mov_b64 s[%d:%d], s[62:63]" % (SRD_R1, SRD_R1 + 1))
        if epi == 'out':
            a.e("s_mov_b64 s[%d:%d], s[64:65]" % (SRD_O, SRD_O + 1))
    a.e("s_and_b32 s%d, s2, 7" % S_T0)
    a.e("s_lshr_b32 s%d, s2, 3" % S_T1)
    rbx = RB // 8
    if CB in (8, 16):
        sh = 3 if CB == 8 else 4
        a.e("s_lshr_b32 s%d, s%d, %d" % (S_RB, S_T1, sh))
        a.e("s_and_b32 s%d, s%d, %d" % (S_CB, S_T1, CB - 1))
    else:
        assert rbx == 2
        a.e("s_cmp_ge_u32 s%d, %d" % (S_T1, CB))
        a.e("s_cselect_b32 s%d, 1, 0" % S_RB)
        a.e("s_mul_i32 s%d, s%d, %d" % (S_CB, S_RB, CB))
        a.e("s_sub_u32 s%d, s%d, s%d" % (S_CB, S_T1, S_CB))
    a.e("s_mul_i32 s%d, s%d, %d" % (S_T0, S_T0, rbx))
    a.e("s_add_u32 s%d, s%d, s%d" % (S_RB, S_RB, S_T0))
    a.e("s_mul_i32 s%d, s%d, %d" % (S_ROW0, S_RB, Mt))
    a.e("s_mul_i32 s%d, s%d, %d" % (S_COL0, S_CB, Nt))
    a.e("v_and_b32 v%d, 63, v0" % V_LANE)
    a.e("v_lshrrev_b32 v%d, 6, v0" % V_T)
    a.e("v_and_b32 v%d, 15, v0" % V_L15)
    a.e("v_bfe_u32 v%d, v0, 4, 2" % V_G)
    a.e("v_readfirstlane_b32 s%d, v%d" % (S_W8, V_T))
    T = V_T
    lsh = {16: 4, 8: 3, 4: 2}[lpr]
    magic = (65536 + gpr - 1) // gpr
    for G in range(max(kc * gpr, nE * 512)):
        assert (G * magic) >> 16 == G // gpr
    PT = P + 16
    opitch = N * 2
    L_cons = name + "_cons"
    L_p2 = name + "_phase2"
    a.e("s_and_b32 s%d, s%d, 3" % (S_W, S_W8))
    a.e("s_mul_i32 s%d, s%d, %d" % (S_WR0, S_W, WR))
    a.e("s_cmp_lt_u32 s%d, 4" % S_W8)
    a.e("s_cbranch_scc1 %s" % L_cons)

    def out_srds():
        if epi == 'qkv':
            build_srd(a, SRD_O, S_WS, WS_Q, WS_O - WS_Q)
        elif epi == 'res':
            build_srd(a, SRD_O, S_WS, WS_H, S * D * 2)
            a.e("s_and_b32 s%d, s%d, 0xffff" % (SRD_R1 + 1, SRD_R1 + 1))
            a.e("s_mov_b32 s%d, 0x%x" % (SRD_R1 + 2, S * D * 2))
            a.e("s_mov_b32 s%d, 0x00020000" % (SRD_R1 + 3))
        elif epi == 'gelu':
            build_srd(a, SRD_O, S_WS, WS_HG if N == D else WS_G, S * N * 2)
            if ln == 2:
                build_srd(a, SRD_ST, S_WS, WS_ST, S * 8)
        elif epi == 'x1':
            build_srd(a, SRD_O, S_WS, WS_X1, S * D * 2)
            build_srd(a, SRD_R1, S_WS, WS_H, S * D * 2)
            build_srd(a, SRD_ST, S_WS, WS_ST, S * 8)
        elif epi == 'out':
            a.e("s_and_b32 s%d, s%d, 0xffff" % (SRD_O + 1, SRD_O + 1))
            a.e("s_mov_b32 s%d, 0x%x" % (SRD_O + 2, S * D * 2))
            a.e("s_mov_b32 s%d, 0x00020000" % (SRD_O + 3))
            build_srd(a, SRD_R1, S_WS, WS_X1, S * D * 2)
            build_srd(a, SRD_R2, S_WS, WS_H, S * D * 2)

    def e_setup():
        a.e("s_mov_b32 s%d, %d" % (S_T1, magic))
        a.e("s_mul_i32 s%d, s%d, %d" % (S_T0, S_W8, nE * 64))
        for e_ in range(nE):
            a.e("v_add_u32 v%d, s%d, v%d" % (T, S_T0, V_LANE))
            if e_:
                a.e("v_add_u32 v%d, %d, v%d" % (T, e_ * 64, T))
            a.e("v_mul_lo_u32 v%d, v%d, s%d" % (T + 1, T, S_T1))
            a.e("v_lshrrev_b32 v%d, 16, v%d" % (T + 1, T + 1))
            a.e("v_mul_u32_u24 v%d, %d, v%d" % (T + 2, gpr, T + 1))
            a.e("v_sub_u32 v%d, v%d, v%d" % (T + 2, T, T + 2))
            a.e("v_mul_u32_u24 v%d, %d, v%d" % (T + 3, PT, T + 1))
            a.e("v_lshl_add_u32 v%d, v%d, 4, v%d" % (V_EL + e_, T + 2, T + 3))
            a.e("v_add_u32 v%d, s%d, v%d" % (T + 3, S_ROW0, T + 1))
            if epi == 'x1':
                a.e("v_lshlrev_b32 v%d, 3, v%d" % (V_RS + 2 * e_, T + 3))
            a.e("v_mul_u32_u24 v%d, %d, v%d" % (T + 3, opitch, T + 3))
            a.e("v_lshl_add_u32 v%d, v%d, 4, v%d" % (T + 3, T + 2, T + 3))
            a.e("v_lshl_add_u32 v%d, s%d, 1, v%d" % (V_EO + e_, S_COL0, T + 3))
            if nE * 512 > EG:
                a.e("v_cmp_le_u32 vcc, %d, v%d" % (EG, T))
                a.e("v_mov_b32 v%d, 0x7fffff00" % (T + 4))
                a.e("v_mov_b32 v%d, 0" % (T + 5))
                a.e("v_cndmask_b32 v%d, v%d, v%d, vcc" % (V_EO + e_, V_EO + e_, T + 4))
                if epi == 'x1':
                    a.e("v_cndmask_b32 v%d, v%d, v%d, vcc" % (V_RS + 2 * e_, V_RS + 2 * e_, T + 4))
                a.e("v_cndmask_b32 v%d, v%d, v%d, vcc" % (V_EL + e_, V_EL + e_, T + 5))

    def res_loads():
        if epi in ('res', 'x1', 'out'):
            for e_ in range(nE):
                a.vmem("buffer_load_dwordx4 %s, v%d, s[%d:%d], 0 offen" % (
                    vr(V_R1 + e_ * 4, 4), V_EO + e_, SRD_R1, SRD_R1 + 3), 'R')
        if epi == 'out':
            for e_ in range(nE):
                a.vmem("buffer_load_dwordx4 %s, v%d, s[%d:%d], 0 offen" % (
                    vr(V_R2 + e_ * 4, 4), V_EO + e_, SRD_R2, SRD_R2 + 3), 'R')
        if epi == 'x1':
            for e_ in range(nE):
                a.vmem("buffer_load_dwordx2 %s, v%d, s[%d:%d], 0 offen" % (
                    vr(V_RS + e_ * 2, 2), V_RS + e_ * 2, SRD_ST, SRD_ST + 3), 'R')

    if 'pprio' in ABL:
        a.e("s_setprio 2")
    a.e("v_lshrrev_b32 v%d, %d, v%d" % (T, lsh, V_LANE))
    a.e("v_and_b32 v%d, %d, v%d" % (T + 1, lpr - 1, V_LANE))
    a.e("v_add_u32 v%d, s%d, v%d" % (T, S_WR0, T))
    assert nA * rpi == WR
    a.e("s_mov_b32 s%d, %d" % (S_T1, pitchA))
    for i in range(nA):
        a.e("v_add_u32 v%d, %d, v%d" % (T + 2, i * rpi, T))
        if lpr == 16:
            a.e("v_and_b32 v%d, 15, v%d" % (T + 3, T + 2))
        elif lpr == 8:
            a.e("v_bfe_u32 v%d, v%d, 1, 3" % (T + 3, T + 2))
        else:
            a.e("v_bfe_u32 v%d, v%d, 3, 1" % (T + 3, T + 2))
            a.e("v_lshlrev_b32 v%d, 1, v%d" % (T + 3, T + 3))
        a.e("v_xor_b32 v%d, v%d, v%d" % (T + 3, T + 3, T + 1))
        a.e("v_add_u32 v%d, s%d, v%d" % (T + 2, S_ROW0, T + 2))
        a.e("v_mul_lo_u32 v%d, v%d, s%d" % (T + 2, T + 2, S_T1))
        a.e("v_lshl_add_u32 v%d, v%d, 4, v%d" % (V_ADMA + i, T + 3, T + 2))
    if packed:
        a.e("s_mul_i32 s%d, s%d, %d" % (S_T0, S_CB, K * Nt * 2))
        a.e("s_mul_i32 s%d, s%d, %d" % (S_T1, S_W, nB * 1024))
        a.e("s_add_u32 s%d, s%d, s%d" % (S_T0, S_T0, S_T1))
        a.e("v_lshl_add_u32 v%d, v%d, 4, s%d" % (V_BDMA, V_LANE, S_T0))
    else:
        a.e("s_mov_b32 s%d, %d" % (S_T1, magic))
        a.e("s_mul_i32 s%d, s%d, %d" % (S_T0, S_W, nB * 64))
        a.e("v_add_u32 v%d, s%d, v%d" % (T + 7, S_T0, V_LANE))
        a.e("s_lshl_b32 s%d, s%d, 1" % (S_T0, S_COL0))
        a.e("s_mov_b32 s%d, %d" % (S_KB, N * 2))
        for i in range(nB):
            a.e("v_add_u32 v%d, %d, v%d" % (T, i * 64, T + 7))
            emit_b_src(a, nt, N, gpr, T, T, V_BDMA + i, S_T1, S_KB)
            a.e("v_add_u32 v%d, s%d, v%d" % (V_BDMA + i, S_T0, V_BDMA + i))
    a.e("s_waitcnt lgkmcnt(0)")
    if packed:
        build_srd(a, SRD_W, S_WS, WS_PW[w_key], K * N * 2)
    else:
        a.e("s_and_b32 s%d, s%d, 0xffff" % (SRD_W + 1, SRD_W + 1))
        a.e("s_mov_b32 s%d, 0x%x" % (SRD_W + 2, K * N * 2))
        a.e("s_mov_b32 s%d, 0x00020000" % (SRD_W + 3))
    if a_src[0] == 'in':
        a.e("s_and_b32 s%d, s%d, 0xffff" % (SRD_A + 1, SRD_A + 1))
        a.e("s_mov_b32 s%d, 0x%x" % (SRD_A + 2, S * K * 2))
        a.e("s_mov_b32 s%d, 0x00020000" % (SRD_A + 3))
    else:
        build_srd(a, SRD_A, S_WS, a_src[1], S * K * 2)
    a.e("s_mul_i32 s%d, s%d, %d" % (S_LA, S_W, nA * 1024))
    a.e("s_mul_i32 s%d, s%d, %d" % (S_LB, S_W, nB * 1024))
    a.e("s_mov_b32 s%d, 0x7ff00000" % S_SEC)

    def dma_a(c):
        buf = c % nbuf
        a.e("s_mov_b32 s%d, 0x%x" % (S_KA, c * kc * 2))
        for i in range(nA):
            src = V_ADMA + i
            if shift:
                k0 = c * kc
                g0 = k0 // 160
                g1 = (k0 + kc - 1) // 160
                sh = [-1, 1, -2, 2]
                if g0 == g1:
                    a.e("v_add_u32 v%d, 0x%x, v%d" % (T + 4, (sh[g0] * pitchA) & 0xffffffff, src))
                else:
                    thr = (g1 * 160 - k0) // 8
                    a.e("v_bfe_u32 v%d, v%d, 4, %d" % (T + 5, src, lsh))
                    a.e("v_cmp_gt_u32 vcc, %d, v%d" % (thr, T + 5))
                    a.e("v_add_u32 v%d, 0x%x, v%d" % (T + 4, (sh[g0] * pitchA) & 0xffffffff, src))
                    a.e("v_add_u32 v%d, 0x%x, v%d" % (T + 5, (sh[g1] * pitchA) & 0xffffffff, src))
                    a.e("v_cndmask_b32 v%d, v%d, v%d, vcc" % (T + 4, T + 5, T + 4))
                src = T + 4
            a.e("s_add_u32 m0, s%d, 0x%x" % (S_LA, buf * CH + i * 1024))
            a.e("s_nop 0")
            a.vmem("buffer_load_dwordx4 v%d, s[%d:%d], s%d offen lds" % (src, SRD_A, SRD_A + 3, S_KA), ('A', c))

    def dma_b(c):
        buf = c % nbuf
        if not packed:
            a.e("s_mov_b32 s%d, 0x%x" % (S_KB, c * kc * N * 2))
        for i in range(nB):
            a.e("s_add_u32 m0, s%d, 0x%x" % (S_LB, buf * CH + ABYTES + i * 1024))
            if packed:
                if BBYTES != BREG:
                    a.e("s_cmp_lt_u32 s%d, %d" % (S_LB, BBYTES - i * 1024))
                    a.e("s_cselect_b32 s%d, 0x%x, s%d" % (S_KB, c * BBYTES + i * 1024, S_SEC))
                else:
                    a.e("s_mov_b32 s%d, 0x%x" % (S_KB, c * BBYTES + i * 1024))
            else:
                a.e("s_nop 0")
            a.vmem("buffer_load_dwordx4 v%d, s[%d:%d], s%d offen lds" % (V_BDMA + (0 if packed else i), SRD_W, SRD_W + 3, S_KB), ('B', c))

    if fz is not None and fz.get('wait') is not None:
        for c in range(0, LA):
            dma_b(c)
        a.e("s_barrier")
        for c in range(0, LA):
            dma_a(c)
    else:
        for c in range(0, LA):
            dma_a(c)
            dma_b(c)
    out_srds()
    e_setup()
    if roll:
        assert not shift and LA == nbuf - 1
        S_PB, S_PI, S_PA2, S_PB2 = 57, 58, 59, 60 if 'stamp' not in ABL else 85
        a.e("s_mov_b32 s%d, %d" % (S_PB, (LA % nbuf) * CH))
        a.e("s_mov_b32 s%d, 0" % S_PI)
        a.e("s_mov_b32 s%d, %d" % (S_KA, LA * kc * 2))
        a.e("s_mov_b32 s%d, %d" % (S_PB2, LA * (BBYTES if packed else kc * N * 2)))
        L = a.newlabel("pl")
        a.label(L)
        a.e("s_waitcnt vmcnt(%d)" % ((LA - 1) * (nA + nB)))
        a.e("s_barrier")
        a.e("s_add_u32 s%d, s%d, s%d" % (S_PA2, S_LA, S_PB))
        for i in range(nA):
            a.e("s_add_u32 m0, s%d, %d" % (S_PA2, i * 1024))
            a.e("s_nop 0")
            a.e("buffer_load_dwordx4 v%d, s[%d:%d], s%d offen lds" % (V_ADMA + i, SRD_A, SRD_A + 3, S_KA))
        a.e("s_add_u32 s%d, s%d, s%d" % (S_PA2, S_LB, S_PB))
        for i in range(nB):
            a.e("s_add_u32 m0, s%d, %d" % (S_PA2, ABYTES + i * 1024))
            if packed:
                assert BBYTES == BREG
                a.e("s_add_u32 s%d, s%d, %d" % (S_KB, S_PB2, i * 1024))
                a.e("buffer_load_dwordx4 v%d, s[%d:%d], s%d offen lds" % (V_BDMA, SRD_W, SRD_W + 3, S_KB))
            else:
                a.e("s_nop 0")
                a.e("buffer_load_dwordx4 v%d, s[%d:%d], s%d offen lds" % (V_BDMA + i, SRD_W, SRD_W + 3, S_PB2))
        a.e("s_add_u32 s%d, s%d, %d" % (S_KA, S_KA, kc * 2))
        a.e("s_add_u32 s%d, s%d, %d" % (S_PB2, S_PB2, BBYTES if packed else kc * N * 2))
        a.e("s_add_u32 s%d, s%d, %d" % (S_PB, S_PB, CH))
        a.e("s_cmp_eq_u32 s%d, %d" % (S_PB, nbuf * CH))
        a.e("s_cselect_b32 s%d, 0, s%d" % (S_PB, S_PB))
        a.e("s_add_u32 s%d, s%d, 1" % (S_PI, S_PI))
        a.e("s_cmp_lt_u32 s%d, %d" % (S_PI, nch - LA))
        a.e("s_cbranch_scc1 %s" % L)
        for c in range(nch - LA, nch):
            a.e("s_waitcnt vmcnt(%d)" % ((nch - 1 - c) * (nA + nB)))
            a.e("s_barrier")
        a.vm = []
        res_loads()
    for c in range(nch if not roll else 0):
        a.wait_vm([('A', c), ('B', c)])
        a.e("s_barrier")
        nc = c + LA
        if nc < nch:
            assert nc - nbuf < c
            dma_a(nc)
            dma_b(nc)
        if c == max(0, nch - 2):
            res_loads()
    a.e("s_barrier")
    a.e("s_branch %s" % L_p2)
    prod_vm = list(a.vm)

    a.vm = []
    a.lg = []
    a.label(L_cons)
    if 'cprio' in ABL:
        a.e("s_setprio 2")
    a.e("s_waitcnt lgkmcnt(0)")
    if fz is not None and fz.get('wait') is not None:
        (mul, add, nl, byte, target) = fz['wait']
        Lp = a.newlabel("poll")
        Ld = a.newlabel("polld")
        a.e("s_cmp_eq_u32 s%d, 0" % S_W8)
        a.e("s_cbranch_scc0 %s" % Ld)
        if mul == 0:
            a.e("s_and_b32 s%d, s%d, 0xfffffffe" % (S_T0, S_RB))
        else:
            a.e("s_mul_i32 s%d, s%d, %d" % (S_T0, S_RB, mul))
        a.e("s_add_u32 s%d, s%d, %d" % (S_T0, S_T0, add & 0xffffffff) if add >= 0 else "s_sub_u32 s%d, s%d, %d" % (S_T0, S_T0, -add))
        a.e("v_add_u32 v%d, s%d, v%d" % (T, S_T0, V_LANE))
        a.e("v_cmp_gt_u32 vcc, 32, v%d" % T)
        a.e("v_cmp_gt_u32 s[%d:%d], %d, v%d" % (S_EX, S_EX + 1, nl, V_LANE))
        a.e("s_and_b64 s[%d:%d], vcc, s[%d:%d]" % (S_EX, S_EX + 1, S_EX, S_EX + 1))
        a.e("v_lshlrev_b32 v%d, 2, v%d" % (T, T))
        a.e("s_mov_b32 s%d, 0" % S_T1)
        a.label(Lp)
        a.e("buffer_load_dword v%d, v%d, s[68:71], 0 offen sc1" % (T + 1, T))
        a.e("s_waitcnt vmcnt(0)")
        a.e("v_bfe_u32 v%d, v%d, %d, 8" % (T + 1, T + 1, byte * 8))
        a.e("v_cmp_le_u32 vcc, %d, v%d" % (target, T + 1))
        a.e("s_and_b64 vcc, vcc, s[%d:%d]" % (S_EX, S_EX + 1))
        a.e("s_cmp_eq_u64 vcc, s[%d:%d]" % (S_EX, S_EX + 1))
        a.e("s_cbranch_scc1 %s" % Ld)
        a.e("s_sleep 1")
        a.e("s_add_u32 s%d, s%d, 1" % (S_T1, S_T1))
        a.e("s_cmp_lt_u32 s%d, 0x40000" % S_T1)
        a.e("s_cbranch_scc1 %s" % Lp)
        a.label(Ld)
        a.e("s_barrier")
    out_srds()
    for j in range(nt):
        if ln:
            a.e("s_mul_i32 s%d, s%d, %d" % (S_TT + j, S_W, ROT))
            a.e("s_add_u32 s%d, s%d, %d" % (S_TT + j, S_TT + j, j))
            a.e("s_cmp_ge_u32 s%d, %d" % (S_TT + j, nt))
            a.e("s_cselect_b32 s%d, %d, 0" % (S_T0, nt))
            a.e("s_sub_u32 s%d, s%d, s%d" % (S_TT + j, S_TT + j, S_T0))
        else:
            a.e("s_mov_b32 s%d, %d" % (S_TT + j, j))
    a.e("v_lshrrev_b32 v%d, 2, v%d" % (T, V_L15))
    a.e("v_lshl_add_u32 v%d, v%d, 2, v%d" % (T + 1, V_G, T))
    a.e("v_mul_u32_u24 v%d, %d, v%d" % (T + 2, P, T + 1))
    a.e("v_and_b32 v%d, 3, v%d" % (T + 3, V_L15))
    a.e("v_lshl_add_u32 v%d, v%d, 3, v%d" % (T + 2, T + 3, T + 2))
    a.e("v_add_u32 v%d, %d, v%d" % (T + 2, ABYTES, T + 2))
    a.e("v_and_b32 v%d, 7, v%d" % (T + 1, T + 1))
    for j in range(nt):
        if nt == 5:
            a.e("s_lshl_b32 s%d, s%d, 5" % (S_T0, S_TT + j))
            a.e("v_add_u32 v%d, s%d, v%d" % (V_B + j, S_T0, T + 2))
        elif nt == 8:
            a.e("v_xor_b32 v%d, s%d, v%d" % (T + 3, S_TT + j, T + 1))
            a.e("v_lshl_add_u32 v%d, v%d, 5, v%d" % (V_B + j, T + 3, T + 2))
        else:
            a.e("v_lshrrev_b32 v%d, 2, v%d" % (T + 3, T + 1))
            a.e("v_add_u32 v%d, s%d, v%d" % (T + 3, S_TT + j, T + 3))
            a.e("v_subrev_u32 v%d, 6, v%d" % (T + 4, T + 3))
            a.e("v_min_u32 v%d, v%d, v%d" % (T + 3, T + 3, T + 4))
            a.e("v_lshl_add_u32 v%d, v%d, 5, v%d" % (V_B + j, T + 3, T + 2))
    a.e("v_add_u32 v%d, s%d, v%d" % (T, S_WR0, V_L15))
    a.e("v_mul_u32_u24 v%d, %d, v%d" % (T, PA, T))
    if lpr == 16:
        a.e("v_xor_b32 v%d, v%d, v%d" % (T + 1, V_L15, V_G))
    elif lpr == 8:
        a.e("v_lshrrev_b32 v%d, 1, v%d" % (T + 1, V_L15))
        a.e("v_xor_b32 v%d, v%d, v%d" % (T + 1, T + 1, V_G))
    else:
        a.e("v_bfe_u32 v%d, v%d, 3, 1" % (T + 1, V_L15))
        a.e("v_lshlrev_b32 v%d, 1, v%d" % (T + 1, T + 1))
        a.e("v_xor_b32 v%d, v%d, v%d" % (T + 1, T + 1, V_G))
    for ks in range(kpc):
        a.e("v_xor_b32 v%d, %d, v%d" % (T + 2, ks * 4, T + 1))
        a.e("v_lshl_add_u32 v%d, v%d, 4, v%d" % (V_AR + ks, T + 2, T))
    for s_ in range(1, nset if not roll else 1):
        for j in range(nt):
            a.e("v_add_u32 v%d, 0x%x, v%d" % (V_B + s_ * nt + j, s_ * 65536, V_B + j))
        for ks in range(kpc):
            a.e("v_add_u32 v%d, 0x%x, v%d" % (V_AR + s_ * kpc + ks, s_ * 65536, V_AR + ks))
    for i in range(4):
        a.e("v_mov_b32 v%d, 0x3f803f80" % (V_ONES + i))
    for i in range(nagpr):
        a.e("v_accvgpr_write_b32 a%d, 0" % i)
    e_setup()

    S_BUF, S_DL, S_IT = 57, 58, 59

    def main_loop_rolled(swapped):
        F = kpc * nt
        PD = min(NF - 1, 5)
        fr = [(ks, t) for ks in range(kpc) for t in range(nt)]

        def rd(i, nxt_):
            ks, t = fr[i]
            st = 1 if nxt_ else 0
            tag = ('F', i)
            if t == 0:
                for mi in range(mt):
                    a.lds("ds_read_b128 %s, v%d offset:%d" % (
                        vr(V_AF + ((ks & 1) * mt + mi) * 4, 4), V_AR + st * kpc + ks, mi * 16 * PA), tag)
            reg = V_BF + (i % NF) * 4
            for r_ in range(2):
                a.lds("ds_read_b64_tr_b16 %s, v%d offset:%d" % (vr(reg + r_ * 2, 2), V_B + st * nt + t, (ks * 32 + r_ * 16) * P), tag)

        def comp(i):
            ks, t = fr[i]
            a.wait_lg([('F', i)])
            reg = V_BF + (i % NF) * 4
            for mi in range(mt):
                av = vr(V_AF + ((ks & 1) * mt + mi) * 4, 4)
                acc = ar(A_ACC + (mi * nt + t) * 4, 4)
                if swapped:
                    a.e("v_mfma_f32_16x16x32_bf16 %s, %s, %s, %s" % (acc, vr(reg, 4), av, acc))
                else:
                    a.e("v_mfma_f32_16x16x32_bf16 %s, %s, %s, %s" % (acc, av, vr(reg, 4), acc))
            if ln and t == 2:
                for mi in range(mt):
                    av = vr(V_AF + ((ks & 1) * mt + mi) * 4, 4)
                    a.e("v_mfma_f32_16x16x32_bf16 %s, %s, %s, %s" % (ar(A_SM + mi * 4, 4), vr(V_ONES, 4), av, ar(A_SM + mi * 4, 4)))
            if ln and t == 3:
                for mi in range(mt):
                    av = vr(V_AF + ((ks & 1) * mt + mi) * 4, 4)
                    a.e("v_mfma_f32_16x16x32_bf16 %s, %s, %s, %s" % (ar(A_GR + mi * 4, 4), av, av, ar(A_GR + mi * 4, 4)))
            if ln and t < NCS:
                acc = ar(A_CS + t * 4, 4)
                if swapped:
                    a.e("v_mfma_f32_16x16x32_bf16 %s, %s, %s, %s" % (acc, vr(reg, 4), vr(V_ONES, 4), acc))
                else:
                    a.e("v_mfma_f32_16x16x32_bf16 %s, %s, %s, %s" % (acc, vr(V_ONES, 4), vr(reg, 4), acc))

        assert PD <= nt
        a.e("s_mov_b32 s%d, 1" % S_BUF)
        a.e("s_mov_b32 s%d, 0" % S_IT)
        a.stamp(1)
        a.e("s_barrier")
        a.stamp(2)
        for i in range(PD):
            rd(i, False)
        L = a.newlabel("ml")
        a.label(L)
        a.e("s_cmp_eq_u32 s%d, %d" % (S_BUF, nbuf))
        a.e("s_cselect_b32 s%d, 0x%x, %d" % (S_DL, (-(nbuf - 1) * CH) & 0xffffffff, CH) if False else
            "s_mov_b32 s%d, %d" % (S_DL, CH))
        a.e("s_cbranch_scc0 %s_nw" % L)
        a.e("s_mov_b32 s%d, 0x%x" % (S_DL, (-(nbuf - 1) * CH) & 0xffffffff))
        a.e("s_mov_b32 s%d, 0" % S_BUF)
        a.label(L + "_nw")
        a.e("s_add_u32 s%d, s%d, 1" % (S_BUF, S_BUF))
        for j in range(PD):
            a.e("v_add_u32 v%d, s%d, v%d" % (V_B + nt + j, S_DL, V_B + j))
        a.e("v_add_u32 v%d, s%d, v%d" % (V_AR + kpc, S_DL, V_AR))
        for i in range(F):
            if i + PD < F:
                rd(i + PD, False)
            else:
                if i + PD == F:
                    a.e("s_barrier")
                rd(i + PD - F, True)
            comp(i)
        for j in range(nt):
            a.e("v_add_u32 v%d, s%d, v%d" % (V_B + j, S_DL, V_B + j))
        for ks in range(kpc):
            a.e("v_add_u32 v%d, s%d, v%d" % (V_AR + ks, S_DL, V_AR + ks))
        a.e("s_add_u32 s%d, s%d, 1" % (S_IT, S_IT))
        a.e("s_cmp_lt_u32 s%d, %d" % (S_IT, nch - 1))
        a.e("s_cbranch_scc1 %s" % L)
        res_loads()
        for i in range(F):
            if i + PD < F:
                rd(i + PD, False)
            comp(i)

    def main_loop(swapped):
        if roll:
            return main_loop_rolled(swapped)
        frs = [(c, ks, t) for c in range(nch) for ks in range(kpc) for t in range(nt)]
        if 'nocomp' in ABL:
            frs = []
            for c in range(nch):
                a.e("s_barrier")
        PD = NF - 1
        fpc = kpc * nt

        def chunk_begin(c):
            if c == 0:
                a.stamp(1)
            a.e("s_barrier")
            if c < 5:
                a.stamp(2 + c)
            if c == max(0, nch - 2):
                res_loads()

        def rd(idx):
            c, ks, t = frs[idx]
            buf = c % nbuf
            gk = c * kpc + ks
            if t == 0:
                for mi in range(mt):
                    off = buf * CH + mi * 16 * PA
                    st = off // 65536
                    a.lds("ds_read_b128 %s, v%d offset:%d" % (
                        vr(V_AF + ((gk & 1) * mt + mi) * 4, 4), V_AR + st * kpc + ks, off % 65536), ('F', idx))
            reg = V_BF + (idx % NF) * 4
            for r_ in range(2):
                off = buf * CH + (ks * 32 + r_ * 16) * P
                st = off // 65536
                a.lds("ds_read_b64_tr_b16 %s, v%d offset:%d" % (vr(reg + r_ * 2, 2), V_B + st * nt + t, off % 65536),
                      ('F', idx))
        issued = 0

        def issue_upto(lim):
            nonlocal issued
            while issued < min(lim, len(frs)):
                c, ks, t = frs[issued]
                if ks == 0 and t == 0:
                    chunk_begin(c)
                rd(issued)
                issued += 1
        for idx, (c, ks, t) in enumerate(frs):
            if early:
                issue_upto(idx + PD + 1)
            else:
                issue_upto(min(idx + PD + 1, (c + 1) * fpc))
            if 'nowait' in ABL:
                a.lg = [x for x in a.lg if x != ('F', idx)]
            else:
                a.wait_lg([('F', idx)])
            reg = V_BF + (idx % NF) * 4
            gk = c * kpc + ks
            for mi in range(mt):
                av = vr(V_AF + ((gk & 1) * mt + mi) * 4, 4)
                acc = ar(A_ACC + (mi * nt + t) * 4, 4)
                if swapped:
                    a.e("v_mfma_f32_16x16x32_bf16 %s, %s, %s, %s" % (acc, vr(reg, 4), av, acc))
                else:
                    a.e("v_mfma_f32_16x16x32_bf16 %s, %s, %s, %s" % (acc, av, vr(reg, 4), acc))
            if ln and t == 2:
                for mi in range(mt):
                    av = vr(V_AF + ((gk & 1) * mt + mi) * 4, 4)
                    a.e("v_mfma_f32_16x16x32_bf16 %s, %s, %s, %s" % (ar(A_SM + mi * 4, 4), vr(V_ONES, 4), av, ar(A_SM + mi * 4, 4)))
            if ln and t == 3:
                for mi in range(mt):
                    av = vr(V_AF + ((gk & 1) * mt + mi) * 4, 4)
                    a.e("v_mfma_f32_16x16x32_bf16 %s, %s, %s, %s" % (ar(A_GR + mi * 4, 4), av, av, ar(A_GR + mi * 4, 4)))
            if ln and t < NCS and 'nocs' not in ABL:
                acc = ar(A_CS + t * 4, 4)
                if swapped:
                    a.e("v_mfma_f32_16x16x32_bf16 %s, %s, %s, %s" % (acc, vr(reg, 4), vr(V_ONES, 4), acc))
                else:
                    a.e("v_mfma_f32_16x16x32_bf16 %s, %s, %s, %s" % (acc, vr(V_ONES, 4), vr(reg, 4), acc))

    def stats_fin():
        T = V_T
        a.e("s_mov_b32 s%d, 0x%x" % (S_T0, f32bits(1.0 / K)))
        a.e("s_mov_b32 s%d, 0x%x" % (S_T1, f32bits(1e-5)))
        a.e("v_and_b32 v%d, 3, v%d" % (T + 9, V_L15))
        a.e("v_lshrrev_b32 v%d, 2, v%d" % (T + 8, V_L15))
        a.e("v_cmp_eq_u32 s[%d:%d], v%d, v%d" % (S_EX, S_EX + 1, T + 8, V_G))
        a.e("v_add_u32 v%d, s%d, v%d" % (T + 10, S_WR0, V_L15))
        a.e("v_lshlrev_b32 v%d, 2, v%d" % (T + 11, T + 10))
        a.e("v_add_u32 v%d, 0x%x, v%d" % (T + 11, ABL_, T + 11))
        for mi in range(mt):
            sm, sq = V_BF, V_BF + 1
            mb, r1 = V_BF + 2, V_BF + 3
            a.e("v_accvgpr_read_b32 v%d, a%d" % (sm, A_SM + mi * 4))
            a.e("v_accvgpr_read_b32 v%d, a%d" % (sq, A_GR + mi * 4))
            for r_ in range(1, 4):
                a.e("v_accvgpr_read_b32 v%d, a%d" % (T + 6, A_GR + mi * 4 + r_))
                a.e("v_cmp_eq_u32 vcc, %d, v%d" % (r_, T + 9))
                a.e("s_nop 1")
                a.e("v_cndmask_b32 v%d, v%d, v%d, vcc" % (sq, sq, T + 6))
            a.e("v_mul_f32 v%d, s%d, v%d" % (sm, S_T0, sm))
            a.e("v_mul_f32 v%d, s%d, v%d" % (sq, S_T0, sq))
            a.e("v_fma_f32 v%d, -v%d, v%d, v%d" % (sq, sm, sm, sq))
            a.e("v_max_f32 v%d, 0, v%d" % (sq, sq))
            round_bf16(a, mb, sm, T)
            round_bf16(a, T + 1, sq, T)
            a.e("v_add_f32 v%d, s%d, v%d" % (T + 1, S_T1, T + 1))
            round_bf16(a, T + 1, T + 1, T)
            a.e("v_sqrt_f32 v%d, v%d" % (T + 1, T + 1))
            a.e("s_nop 0")
            round_bf16(a, T + 1, T + 1, T)
            a.e("v_rcp_f32 v%d, v%d" % (r1, T + 1))
            a.e("s_nop 0")
            al, be = T + 4, T + 5
            if ln == 1:
                a.e("v_mov_b32 v%d, v%d" % (al, r1))
                a.e("v_mul_f32 v%d, v%d, v%d" % (be, mb, r1))
            else:
                a.e("v_sub_f32 v%d, v%d, v%d" % (T + 2, sm, mb))
                a.e("v_mul_f32 v%d, v%d, v%d" % (T + 2, T + 2, r1))
                round_bf16(a, T + 2, T + 2, T)
                a.e("v_mul_f32 v%d, v%d, v%d" % (T + 3, sq, r1))
                a.e("v_mul_f32 v%d, v%d, v%d" % (T + 3, T + 3, r1))
                round_bf16(a, T + 3, T + 3, T)
                a.e("v_add_f32 v%d, s%d, v%d" % (T + 3, S_T1, T + 3))
                round_bf16(a, T + 3, T + 3, T)
                a.e("v_sqrt_f32 v%d, v%d" % (T + 3, T + 3))
                a.e("s_nop 0")
                round_bf16(a, T + 3, T + 3, T)
                a.e("v_rcp_f32 v%d, v%d" % (T + 3, T + 3))
                a.e("s_nop 0")
                a.e("v_mul_f32 v%d, v%d, v%d" % (al, r1, T + 3))
                a.e("v_mul_f32 v%d, v%d, v%d" % (T + 2, T + 2, T + 3))
                a.e("v_fma_f32 v%d, v%d, v%d, v%d" % (be, mb, al, T + 2))
            a.e("s_mov_b64 s[90:91], exec")
            a.e("s_mov_b64 exec, s[%d:%d]" % (S_EX, S_EX + 1))
            a.e("ds_write_b32 v%d, v%d offset:%d" % (T + 11, al, mi * 64))
            a.e("ds_write_b32 v%d, v%d offset:%d" % (T + 11, be, mi * 64 + Mt * 4))
            if ln == 2:
                lab = a.newlabel("st")
                a.e("s_cmp_eq_u32 s%d, 0" % S_CB)
                a.e("s_cbranch_scc0 %s" % lab)
                a.e("v_add_u32 v%d, s%d, v%d" % (T + 6, S_ROW0, T + 10))
                a.e("v_lshlrev_b32 v%d, 3, v%d" % (T + 6, T + 6))
                a.e("buffer_store_dwordx2 %s, v%d, s[%d:%d], 0 offen offset:%d%s" % (vr(mb, 2), T + 6, SRD_ST, SRD_ST + 3, mi * 128, SC))
                a.label(lab)
            a.e("s_mov_b64 exec, s[90:91]")

    def post_loop(swapped):
        a.stamp(7)
        a.e("s_nop 7")
        a.e("s_nop 1")
        T = V_E
        if ln:
            if swapped:
                a.e("v_lshlrev_b32 v%d, 4, v%d" % (T, V_G))
                a.e("v_cmp_eq_u32 vcc, 0, v%d" % V_L15)
            else:
                a.e("v_lshlrev_b32 v%d, 2, v%d" % (T, V_L15))
                a.e("v_cmp_eq_u32 vcc, 0, v%d" % V_G)
            a.e("v_add_u32 v%d, 0x%x, v%d" % (T, CSL, T))
            for j in range(nt):
                a.e("s_lshl_b32 s%d, s%d, 6" % (S_T0, S_TT + j))
                a.e("v_add_u32 v%d, s%d, v%d" % (V_CS + j * 4 + 3, S_T0, T))
            a.e("s_and_saveexec_b64 s[%d:%d], vcc" % (S_EX, S_EX + 1))
            for j in range(NCS):
                if swapped:
                    for r_ in range(4):
                        a.e("v_accvgpr_read_b32 v%d, a%d" % (T + 4 + r_, A_CS + j * 4 + r_))
                    a.e("ds_write_b128 v%d, %s" % (V_CS + j * 4 + 3, vr(T + 4, 4)))
                else:
                    a.e("v_accvgpr_read_b32 v%d, a%d" % (T + 4, A_CS + j * 4))
                    a.e("ds_write_b32 v%d, v%d" % (V_CS + j * 4 + 3, T + 4))
            a.e("s_mov_b64 exec, s[%d:%d]" % (S_EX, S_EX + 1))
            stats_fin()
        a.wait_lg0()
        a.e("s_barrier")
        if ln:
            for j in range(nt):
                if swapped:
                    a.lds("ds_read_b128 %s, v%d" % (vr(V_CS + j * 4, 4), V_CS + j * 4 + 3))
                else:
                    a.lds("ds_read_b32 v%d, v%d" % (V_CS + j * 4, V_CS + j * 4 + 3))
            if swapped:
                a.e("v_add_u32 v%d, s%d, v%d" % (T, S_WR0, V_L15))
                a.e("v_lshlrev_b32 v%d, 2, v%d" % (T, T))
                a.e("v_add_u32 v%d, 0x%x, v%d" % (T, ABL_, T))
                for mi in range(mt):
                    a.lds("ds_read_b32 v%d, v%d offset:%d" % (V_AL + mi * 4, T, mi * 64))
                    a.lds("ds_read_b32 v%d, v%d offset:%d" % (V_BE + mi * 4, T, mi * 64 + Mt * 4))
            else:
                a.e("v_lshl_add_u32 v%d, v%d, 2, s%d" % (T, V_G, S_WR0))
                a.e("v_lshlrev_b32 v%d, 2, v%d" % (T, T))
                a.e("v_add_u32 v%d, 0x%x, v%d" % (T, ABL_, T))
                for mi in range(mt):
                    a.lds("ds_read_b128 %s, v%d offset:%d" % (vr(V_AL + mi * 4, 4), T, mi * 64))
                    a.lds("ds_read_b128 %s, v%d offset:%d" % (vr(V_BE + mi * 4, 4), T, mi * 64 + Mt * 4))
            a.wait_lg0()
        a.stamp(8)

    def acc_read(mi, j, dst):
        for r_ in range(4):
            a.e("v_accvgpr_read_b32 v%d, a%d" % (dst + r_, A_ACC + (mi * nt + j) * 4 + r_))

    def unpack(dst, src, n):
        for i in range(n):
            a.e("v_lshlrev_b32 v%d, 16, v%d" % (dst + 2 * i, src + i))
            a.e("v_and_b32 v%d, 0xffff0000, v%d" % (dst + 2 * i + 1, src + i))

    def pack(dst, src, n):
        for i in range(n):
            a.e("v_cvt_pk_bf16_f32 v%d, v%d, v%d" % (dst + i, src + 2 * i, src + 2 * i + 1))

    E = V_E + 4
    PTV = Mt * 2 + 16

    def phase1(swapped):
        if swapped:
            a.e("v_add_u32 v%d, s%d, v%d" % (V_E, S_WR0, V_L15))
            a.e("v_mul_u32_u24 v%d, %d, v%d" % (V_E, PT, V_E))
            a.e("v_lshl_add_u32 v%d, v%d, 3, v%d" % (V_E, V_G, V_E))
        else:
            a.e("v_mul_u32_u24 v%d, %d, v%d" % (V_E, PTV, V_L15))
            a.e("v_lshl_add_u32 v%d, v%d, 3, v%d" % (V_E, V_G, V_E))
            a.e("v_lshl_add_u32 v%d, s%d, 1, v%d" % (V_E, S_WR0, V_E))
        for j in range(nt):
            a.e("s_mul_i32 s%d, s%d, %d" % (S_T0, S_TT + j, 32 if swapped else 16 * PTV))
            a.e("v_add_u32 v%d, s%d, v%d" % (V_E + 1, S_T0, V_E))
            for mi in range(mt):
                W_ = E + (mi & 1) * 8
                acc_read(mi, j, W_)
                if ln:
                    for r_ in range(4):
                        a.e("v_mul_f32 v%d, v%d, v%d" % (W_ + r_, W_ + r_, V_AL + mi * 4 + (0 if swapped else r_)))
                    for r_ in range(4):
                        if swapped:
                            a.e("v_fma_f32 v%d, -v%d, v%d, v%d" % (W_ + r_, V_BE + mi * 4, V_CS + j * 4 + r_, W_ + r_))
                        else:
                            a.e("v_fma_f32 v%d, -v%d, v%d, v%d" % (W_ + r_, V_BE + mi * 4 + r_, V_CS + j * 4, W_ + r_))
                pack(W_ + 4, W_, 2)
                a.lds("ds_write_b64 v%d, %s offset:%d" % (V_E + 1, vr(W_ + 4, 2), mi * 16 * PT if swapped else mi * 32))
        a.wait_lg0()

    if epi == 'qkv':
        L_v = name + "_vpath"
        a.e("s_cmp_ge_u32 s%d, 10" % S_CB)
        a.e("s_cbranch_scc1 %s" % L_v)
        saved = (list(a.vm), list(a.lg))
        main_loop(True)
        post_loop(True)
        phase1(True)
        a.e("s_branch %s" % L_p2)
        a.label(L_v)
        a.vm, a.lg = saved
        main_loop(False)
        post_loop(False)
        phase1(False)
    else:
        main_loop(True)
        post_loop(True)
        phase1(True)

    a.label(L_p2)
    a.e("s_barrier")
    a.vm = [None] * 70
    T = V_E
    if epi == 'qkv':
        L_v2 = name + "_v2"
        a.e("s_cmp_ge_u32 s%d, 10" % S_CB)
        a.e("s_cbranch_scc1 %s" % L_v2)
        a.e("s_cmp_ge_u32 s%d, 5" % S_CB)
        a.e("s_cselect_b32 s%d, 640, 0" % S_T0)
        a.e("s_cselect_b32 s%d, 0x%x, 0" % (S_SEC, WS_K - WS_Q))
        a.e("s_sub_u32 s%d, s%d, s%d" % (S_T0, S_COL0, S_T0))
        a.e("s_mov_b32 s%d, 3277" % S_T1)
        a.e("v_and_b32 v%d, 31, v%d" % (T, V_LANE))
        a.e("v_lshrrev_b32 v%d, 5, v%d" % (T + 1, V_LANE))
        a.e("v_lshl_add_u32 v%d, s%d, 4, v%d" % (T + 1, S_W8, T + 1))
        a.e("v_mul_u32_u24 v%d, %d, v%d" % (T + 2, PT, T + 1))
        a.e("v_lshl_add_u32 v%d, v%d, 3, v%d" % (T + 2, T, T + 2))
        a.e("v_lshl_add_u32 v%d, v%d, 2, s%d" % (T, T, S_T0))
        a.e("v_mul_lo_u32 v%d, v%d, s%d" % (T + 3, T, S_T1))
        a.e("v_lshrrev_b32 v%d, 16, v%d" % (T + 3, T + 3))
        a.e("v_mul_u32_u24 v%d, 20, v%d" % (E, T + 3))
        a.e("v_sub_u32 v%d, v%d, v%d" % (T, T, E))
        a.e("v_lshlrev_b32 v%d, 11, v%d" % (T + 3, T + 3))
        a.e("v_add3_u32 v%d, v%d, v%d, s%d" % (T + 3, T + 3, T + 1, S_ROW0))
        a.e("v_mul_u32_u24 v%d, 40, v%d" % (T + 3, T + 3))
        a.e("v_lshl_add_u32 v%d, v%d, 1, v%d" % (T + 3, T, T + 3))
        a.e("v_add_u32 v%d, s%d, v%d" % (T + 3, S_SEC, T + 3))
        for e_ in range(8):
            a.lds("ds_read_b64 %s, v%d offset:%d" % (vr(E + e_ * 2, 2), T + 2, e_ * 2 * PT), ('e', e_))
        for e_ in range(8):
            a.wait_lg([('e', e_)])
            a.e("buffer_store_dwordx2 %s, v%d, s[%d:%d], 0 offen offset:%d" % (
                vr(E + e_ * 2, 2), T + 3, SRD_O, SRD_O + 3, e_ * 80))
        a.stamp(9)
        a.stamp_out(10, V_E)
        a.e("s_endpgm")
        a.label(L_v2)
        a.e("v_lshrrev_b32 v%d, 4, v%d" % (T, V_LANE))
        a.e("v_lshl_add_u32 v%d, s%d, 4, v%d" % (T, S_W8, T))
        a.e("v_mul_u32_u24 v%d, %d, v%d" % (T + 1, PTV, T))
        a.e("v_lshl_add_u32 v%d, v%d, 4, v%d" % (T + 1, V_L15, T + 1))
        a.e("s_sub_u32 s%d, s%d, 1280" % (S_T0, S_COL0))
        a.e("v_add_u32 v%d, s%d, v%d" % (T, S_T0, T))
        a.e("v_lshlrev_b32 v%d, 12, v%d" % (T, T))
        a.e("v_lshl_add_u32 v%d, v%d, 4, v%d" % (T, V_L15, T))
        a.e("s_lshl_b32 s%d, s%d, 1" % (S_T0, S_ROW0))
        a.e("s_add_u32 s%d, s%d, 0x%x" % (S_T0, S_T0, WS_VT - WS_Q))
        a.e("v_add_u32 v%d, s%d, v%d" % (T, S_T0, T))
        for e_ in range(4):
            a.lds("ds_read_b128 %s, v%d offset:%d" % (vr(E + e_ * 4, 4), T + 1, e_ * 4 * PTV), ('e', e_))
        for e_ in range(4):
            a.wait_lg([('e', e_)])
            a.e("buffer_store_dwordx4 %s, v%d, s[%d:%d], 0 offen" % (vr(E + e_ * 4, 4), T, SRD_O, SRD_O + 3))
            a.e("v_add_u32 v%d, 0x4000, v%d" % (T, T))
    else:
        for e_ in range(nE):
            a.lds("ds_read_b128 %s, v%d" % (vr(V_CS + e_ * 4, 4), V_EL + e_), ('e', e_))
        assert nE * 4 <= nt * 4
        if epi == 'gelu':
            a.e("s_mov_b32 s%d, 0x%x" % (S_C2, f32bits(GELU_C2)))
            a.e("v_mov_b32 v%d, 0x%x" % (V_E, f32bits(GELU_C1)))
        else:
            a.e("s_waitcnt vmcnt(0)")
        for e_ in range(nE):
            a.wait_lg([('e', e_)])
            src = V_CS + e_ * 4
            unpack(E, src, 4)
            if epi == 'gelu':
                for r_ in range(8):
                    a.e("v_mul_f32 v%d, v%d, v%d" % (E + 8 + r_, E + r_, E + r_))
                for r_ in range(8):
                    a.e("v_fma_f32 v%d, v%d, s%d, v%d" % (E + 8 + r_, E + 8 + r_, S_C2, V_E))
                for r_ in range(8):
                    a.e("v_mul_f32 v%d, v%d, v%d" % (E + 8 + r_, E + 8 + r_, E + r_))
                for r_ in range(8):
                    a.e("v_exp_f32 v%d, v%d" % (E + 8 + r_, E + 8 + r_))
                for r_ in range(8):
                    a.e("v_add_f32 v%d, 1.0, v%d" % (E + 8 + r_, E + 8 + r_))
                for r_ in range(8):
                    a.e("v_rcp_f32 v%d, v%d" % (E + 8 + r_, E + 8 + r_))
                for r_ in range(8):
                    a.e("v_mul_f32 v%d, v%d, v%d" % (E + r_, E + r_, E + 8 + r_))
            else:
                unpack(E + 8, V_R1 + e_ * 4, 4)
                if epi == 'x1':
                    for r_ in range(8):
                        a.e("v_sub_f32 v%d, v%d, v%d" % (E + 8 + r_, E + 8 + r_, V_RS + e_ * 2))
                    pack(E + 16, E + 8, 4)
                    unpack(E + 8, E + 16, 4)
                    for r_ in range(8):
                        a.e("v_mul_f32 v%d, v%d, v%d" % (E + 8 + r_, E + 8 + r_, V_RS + e_ * 2 + 1))
                    pack(E + 16, E + 8, 4)
                    unpack(E + 8, E + 16, 4)
                for r_ in range(8):
                    a.e("v_add_f32 v%d, v%d, v%d" % (E + r_, E + r_, E + 8 + r_))
                if epi == 'out':
                    pack(E + 16, E, 4)
                    unpack(E, E + 16, 4)
                    unpack(E + 8, V_R2 + e_ * 4, 4)
                    for r_ in range(8):
                        a.e("v_add_f32 v%d, v%d, v%d" % (E + r_, E + r_, E + 8 + r_))
            pack(src, E, 4)
            a.e("buffer_store_dwordx4 %s, v%d, s[%d:%d], 0 offen%s" % (vr(src, 4), V_EO + e_, SRD_O, SRD_O + 3, SC))
        a.stamp(9)
        a.stamp_out(10, V_E)
    if fz is not None:
        if fz.get('signal') is not None:
            (mul, byte) = fz['signal']
            Ls = a.newlabel("sig")
            a.e("s_waitcnt vmcnt(0) lgkmcnt(0)")
            a.e("s_barrier")
            a.e("s_cmp_eq_u32 s%d, 0" % S_W8)
            a.e("s_cbranch_scc0 %s" % Ls)
            a.e("s_mul_i32 s%d, s%d, %d" % (S_T0, S_RB, mul * 4))
            a.e("v_mov_b32 v%d, s%d" % (V_T, S_T0))
            a.e("v_mov_b32 v%d, 0x%x" % (V_T + 1, 1 << (8 * byte)))
            a.e("v_cmp_eq_u32 vcc, 0, v%d" % V_LANE)
            a.e("s_and_saveexec_b64 s[%d:%d], vcc" % (S_EX, S_EX + 1))
            a.e("buffer_atomic_add v%d, v%d, s[68:71], 0 offen" % (V_T + 1, V_T))
            a.e("s_mov_b64 exec, s[%d:%d]" % (S_EX, S_EX + 1))
            a.label(Ls)
        return nv, nagpr, lds_bytes
    a.label(L_end)
    a.e("s_endpgm")
    if packwg:
        a.label(name + "_pack")
        emit_pack_path(a, ntiles, packwg)
    return a.lines, kernel_desc(name, nv, nagpr), ntiles + packwg, lds_bytes, 512


def gen_attn(name):
    a = Asm()
    KL = 0
    VL = 384 * 64
    PV = 800
    lds_bytes = VL + 23 * PV
    lds_bytes = (lds_bytes + 1023) // 1024 * 1024 + 1024

    V_LANE, V_L15, V_G = 1, 2, 3
    V_T = 4
    V_KA = 12
    V_VA = 14
    V_A = 16
    V_X16, V_X32, V_BS = 17, 18, 19
    V_Q = 20
    V_O = 28
    V_KF = 44
    V_VF = 60
    V_M = 76
    V_S = 80
    V_PD = V_S + 144
    V_PA = V_PD + 20
    nv = V_PA + 5
    S_WS = 4
    SRD_Q, SRD_K, SRD_V, SRD_O = 8, 12, 16, 20
    S_W, S_H, S_Q0, S_T0, S_T1, S_KS, S_C, S_EX = 32, 33, 34, 35, 36, 37, 38, 40

    kernel_header(a, name)
    L_end = name + "_end"
    a.e("s_cmp_ge_u32 s2, 512")
    a.e("s_cbranch_scc1 %s" % L_end)
    a.stamp(0)
    a.e("s_load_dwordx2 s[%d:%d], s[0:1], %d" % (S_WS, S_WS + 1, KA['ws']))
    a.e("s_load_dwordx2 s[24:25], s[0:1], 16")
    a.e("s_load_dwordx8 s[84:91], s[0:1], 32")
    a.e("s_and_b32 s%d, s2, 7" % S_T0)
    a.e("s_lshr_b32 s%d, s2, 3" % S_T1)
    a.e("s_lshr_b32 s%d, s%d, 1" % (S_H, S_T1))
    a.e("s_and_b32 s%d, s%d, 1" % (S_Q0, S_T1))
    a.e("s_lshl_b32 s%d, s%d, 1" % (S_T0, S_T0))
    a.e("s_add_u32 s%d, s%d, s%d" % (S_Q0, S_Q0, S_T0))
    a.e("s_lshl_b32 s%d, s%d, 7" % (S_Q0, S_Q0))
    a.e("v_and_b32 v%d, 63, v0" % V_LANE)
    a.e("v_lshrrev_b32 v%d, 6, v0" % V_T)
    a.e("v_and_b32 v%d, 15, v0" % V_L15)
    a.e("v_bfe_u32 v%d, v0, 4, 2" % V_G)
    a.e("v_readfirstlane_b32 s%d, v%d" % (S_W, V_T))
    a.e("s_waitcnt lgkmcnt(0)")
    build_srd(a, SRD_Q, S_WS, WS_Q, 32 * 2048 * 40)
    build_srd(a, SRD_K, S_WS, WS_K, 32 * 2048 * 40)
    build_srd(a, SRD_V, S_WS, WS_VT, 640 * 2048 * 2)
    build_srd(a, SRD_O, S_WS, WS_O, S * D * 2)
    T = V_T
    a.e("s_lshl_b32 s%d, s%d, 11" % (S_T0, S_H))
    a.e("s_add_u32 s%d, s%d, s%d" % (S_T0, S_T0, S_Q0))
    a.e("s_sub_u32 s%d, s%d, 256" % (S_T0, S_T0))
    a.e("s_mul_i32 s%d, s%d, 96" % (S_T1, S_W))
    a.e("s_add_u32 s%d, s%d, s%d" % (S_T0, S_T0, S_T1))
    a.e("s_mul_i32 s%d, s%d, 40" % (S_KS, S_T0))
    a.e("v_lshrrev_b32 v%d, 2, v%d" % (T, V_LANE))
    a.e("v_mul_u32_u24 v%d, 40, v%d" % (T, T))
    a.e("v_add_u32 v%d, s%d, v%d" % (T, S_KS, T))
    a.e("v_and_b32 v%d, 3, v%d" % (T + 1, V_LANE))
    a.e("v_mov_b32 v%d, 0x7fffff00" % (T + 6))
    a.e("v_lshl_add_u32 v%d, v%d, 4, v%d" % (T + 2, T + 1, T))
    a.e("v_cmp_eq_u32 vcc, 3, v%d" % (T + 1))
    a.e("v_xor_b32 v%d, 2, v%d" % (T + 1, T + 1))
    a.e("v_lshl_add_u32 v%d, v%d, 4, v%d" % (T + 3, T + 1, T))
    a.e("v_cndmask_b32 v%d, v%d, v%d, vcc" % (T + 2, T + 2, T + 6))
    a.e("v_cmp_eq_u32 vcc, 3, v%d" % (T + 1))
    a.e("s_mul_i32 s%d, s%d, 6144" % (S_T1, S_W))
    a.e("s_nop 0")
    a.e("v_cndmask_b32 v%d, v%d, v%d, vcc" % (T + 3, T + 3, T + 6))
    for i in range(6):
        a.e("s_add_u32 m0, s%d, %d" % (S_T1, KL + i * 1024))
        a.e("v_add_u32 v%d, %d, v%d" % (T + 4 + (i & 1), i * 640, T + 2 + (i & 1)))
        a.vmem("buffer_load_dwordx4 v%d, s[%d:%d], 0 offen lds" % (T + 4 + (i & 1), SRD_K, SRD_K + 3))
    a.e("s_lshl_b32 s%d, s%d, 11" % (S_T0, S_H))
    a.e("s_add_u32 s%d, s%d, s%d" % (S_T0, S_T0, S_Q0))
    a.e("s_lshl_b32 s%d, s%d, 5" % (S_T1, S_W))
    a.e("s_add_u32 s%d, s%d, s%d" % (S_T0, S_T0, S_T1))
    a.e("v_add_u32 v%d, s%d, v%d" % (T, S_T0, V_L15))
    a.e("v_mul_u32_u24 v%d, 40, v%d" % (T, T))
    a.e("v_lshl_add_u32 v%d, v%d, 4, v%d" % (T, V_G, T))
    a.vmem("buffer_load_dwordx4 %s, v%d, s[%d:%d], 0 offen" % (vr(V_Q, 4), T, SRD_Q, SRD_Q + 3), 'Q')
    a.vmem("buffer_load_dwordx4 %s, v%d, s[%d:%d], 0 offen offset:640" % (vr(V_Q + 4, 4), T, SRD_Q, SRD_Q + 3), 'Q')
    a.e("s_mul_i32 s%d, s%d, 20" % (S_T0, S_H))
    a.e("s_lshl_b32 s%d, s%d, 12" % (S_T0, S_T0))
    a.e("s_lshl_b32 s%d, s%d, 1" % (S_T1, S_Q0))
    a.e("s_add_u32 s%d, s%d, s%d" % (S_T0, S_T0, S_T1))
    a.e("s_sub_u32 s%d, s%d, 512" % (S_T0, S_T0))
    a.e("s_lshl_b32 s%d, s%d, 8" % (S_T1, S_W))
    a.e("s_mov_b32 s%d, 1311" % S_C)
    for G in range(1024):
        assert (G * 1311) >> 16 == G // 50
    for i in range(4):
        a.e("v_add_u32 v%d, s%d, v%d" % (T, S_T1, V_LANE))
        if i:
            a.e("v_add_u32 v%d, %d, v%d" % (T, i * 64, T))
        a.e("v_mul_lo_u32 v%d, v%d, s%d" % (T + 1, T, S_C))
        a.e("v_lshrrev_b32 v%d, 16, v%d" % (T + 1, T + 1))
        a.e("v_mul_u32_u24 v%d, 50, v%d" % (T + 2, T + 1))
        a.e("v_sub_u32 v%d, v%d, v%d" % (T + 2, T, T + 2))
        a.e("v_lshlrev_b32 v%d, 12, v%d" % (T + 3, T + 1))
        a.e("v_lshl_add_u32 v%d, v%d, 4, v%d" % (T + 3, T + 2, T + 3))
        a.e("v_add_u32 v%d, s%d, v%d" % (T + 3, S_T0, T + 3))
        a.e("v_cmp_le_u32 vcc, 20, v%d" % (T + 1))
        a.e("v_cmp_le_u32 s[%d:%d], 48, v%d" % (S_EX, S_EX + 1, T + 2))
        a.e("s_or_b64 vcc, vcc, s[%d:%d]" % (S_EX, S_EX + 1))
        a.e("v_mov_b32 v%d, 0x7fffff00" % (T + 4))
        a.e("s_lshl_b32 m0, s%d, 12" % S_W)
        a.e("v_cndmask_b32 v%d, v%d, v%d, vcc" % (T + 3, T + 3, T + 4))
        a.e("s_add_u32 m0, m0, %d" % (VL + i * 1024))
        a.e("s_nop 0")
        a.vmem("buffer_load_dwordx4 v%d, s[%d:%d], 0 offen lds" % (T + 3, SRD_V, SRD_V + 3), 'VD')
    a.stamp(1)
    a.stamp(2)
    a.e("v_lshrrev_b32 v%d, 2, v%d" % (T, V_L15))
    a.e("v_and_b32 v%d, 3, v%d" % (T + 1, V_L15))
    a.e("v_lshl_add_u32 v%d, v%d, 3, v%d" % (T, T, T + 1))
    a.e("v_bfe_u32 v%d, v%d, 4, 1" % (T + 1, T))
    a.e("v_lshlrev_b32 v%d, 1, v%d" % (T + 1, T + 1))
    a.e("v_xor_b32 v%d, v%d, v%d" % (T + 1, T + 1, V_G))
    a.e("v_lshlrev_b32 v%d, 6, v%d" % (T, T))
    a.e("v_lshl_add_u32 v%d, v%d, 4, v%d" % (T, T + 1, T))
    a.e("s_lshl_b32 s%d, s%d, 11" % (S_T0, S_W))
    a.e("v_add_u32 v%d, s%d, v%d" % (V_KA, S_T0, T))
    a.e("v_add_u32 v%d, 256, v%d" % (V_KA + 1, V_KA))
    a.e("v_mul_u32_u24 v%d, %d, v%d" % (T, PV, V_L15))
    a.e("v_lshl_add_u32 v%d, v%d, 4, v%d" % (T, V_G, T))
    a.e("s_lshl_b32 s%d, s%d, 6" % (S_T0, S_W))
    a.e("s_add_u32 s%d, s%d, %d" % (S_T0, S_T0, VL))
    a.e("v_add_u32 v%d, s%d, v%d" % (V_VA, S_T0, T))
    a.e("v_add_u32 v%d, 16, v%d" % (T, V_L15))
    a.e("v_add_u32 v%d, 17, v%d" % (T + 1, V_L15))
    a.e("v_min_u32 v%d, 22, v%d" % (T + 1, T + 1))
    a.e("v_cmp_gt_u32 vcc, 4, v%d" % V_L15)
    a.e("s_nop 1")
    a.e("v_cndmask_b32 v%d, v%d, v%d, vcc" % (T, T + 1, T))
    a.e("v_mul_u32_u24 v%d, %d, v%d" % (T, PV, T))
    a.e("v_lshl_add_u32 v%d, v%d, 4, v%d" % (T, V_G, T))
    a.e("v_add_u32 v%d, s%d, v%d" % (V_VA + 1, S_T0, T))
    a.e("v_lshlrev_b32 v%d, 3, v%d" % (T, V_G))
    a.e("v_sub_u32 v%d, v%d, v%d" % (V_A, V_L15, T))
    a.e("v_xor_b32 v%d, 16, v%d" % (T, V_LANE))
    a.e("v_lshlrev_b32 v%d, 2, v%d" % (V_X16, T))
    a.e("v_xor_b32 v%d, 32, v%d" % (T, V_LANE))
    a.e("v_lshlrev_b32 v%d, 2, v%d" % (V_X32, T))
    a.e("v_add_u32 v%d, 16, v%d" % (T, V_L15))
    a.e("v_lshlrev_b32 v%d, 2, v%d" % (V_BS, T))
    for i in range(16):
        a.e("v_mov_b32 v%d, 0" % (V_O + i))
    a.e("v_cmp_gt_u32 vcc, 48, v%d" % V_LANE)
    a.e("s_and_saveexec_b64 s[%d:%d], vcc" % (S_EX, S_EX + 1))
    a.e("s_cmp_lt_u32 s%d, 2" % S_W)
    labz = a.newlabel("ones")
    a.e("s_cbranch_scc0 %s" % labz)
    a.e("s_cmp_eq_u32 s%d, 0" % S_W)
    a.e("s_cselect_b32 s%d, 0x3f803f80, 0" % S_T0)
    for i in range(4):
        a.e("v_mov_b32 v%d, s%d" % (T + 4 + i, S_T0))
    a.e("s_mul_i32 s%d, s%d, %d" % (S_T0, S_W, PV))
    a.e("s_add_u32 s%d, s%d, %d" % (S_T0, S_T0, VL + 21 * PV))
    a.e("v_lshlrev_b32 v%d, 4, v%d" % (T, V_LANE))
    a.e("v_add_u32 v%d, s%d, v%d" % (T, S_T0, T))
    a.e("ds_write_b128 v%d, %s" % (T, vr(T + 4, 4)))
    a.label(labz)
    a.e("s_mov_b64 exec, s[%d:%d]" % (S_EX, S_EX + 1))
    emit_pack_calc(a, S_W, V_LANE, T, V_PD, V_PA, 44)
    a.e("v_cmp_gt_u32 vcc, 2, v%d" % V_G)
    a.e("v_cmp_gt_u32 s[%d:%d], 3, v%d" % (S_EX, S_EX + 1, V_G))
    a.e("s_waitcnt lgkmcnt(0)")
    a.wait_vm(['Q'])
    a.e("s_barrier")
    a.stamp(3)
    emit_pack_issue(a, V_PD, 44)
    for qt in range(2):
        a.e("v_cndmask_b32 v%d, 0, v%d, s[%d:%d]" % (V_Q + qt * 4, V_Q + qt * 4, S_EX, S_EX + 1))
        a.e("v_cndmask_b32 v%d, 0, v%d, s[%d:%d]" % (V_Q + qt * 4 + 1, V_Q + qt * 4 + 1, S_EX, S_EX + 1))
        a.e("v_cndmask_b32 v%d, 0, v%d, vcc" % (V_Q + qt * 4 + 2, V_Q + qt * 4 + 2))
        a.e("v_cndmask_b32 v%d, 0, v%d, vcc" % (V_Q + qt * 4 + 3, V_Q + qt * 4 + 3))
    a.stamp(4)

    def sreg(b, qt):
        return V_S + (b * 2 + qt) * 8

    def kread(b):
        for Tt in range(2):
            a.lds("ds_read_b128 %s, v%d offset:%d" % (vr(V_KF + (b & 1) * 8 + Tt * 4, 4), V_KA + Tt, KL + b * 2048), ('K', b))
    kread(0)
    for b in range(9):
        if b + 1 < 9:
            kread(b + 1)
        a.wait_lg([('K', b)])
        for qt in range(2):
            for Tt in range(2):
                a.e("v_mfma_f32_16x16x32_bf16 %s, %s, %s, 0" % (
                    vr(sreg(b, qt) + Tt * 4, 4), vr(V_KF + (b & 1) * 8 + Tt * 4, 4), vr(V_Q + qt * 4, 4)))
    a.wait_lg0()
    def vread(b):
        for dt in range(2):
            a.lds("ds_read_b128 %s, v%d offset:%d" % (vr(V_VF + (b & 1) * 8 + dt * 4, 4), V_VA + dt, b * 64), ('V', b))
    a.e("s_nop 7")
    a.e("s_nop 3")
    a.stamp(5)
    a.e("v_mov_b32 v%d, 0xf149f2ca" % (V_M + 2))
    for qt in range(2):
        for Tt in range(2):
            for r_ in range(4):
                th = Tt * 4 + r_ - qt * 16
                a.e("v_cmp_gt_i32 vcc, %d, v%d" % (th, V_A))
                a.e("s_nop 1")
                r0 = sreg(0, qt) + Tt * 4 + r_
                r8 = sreg(8, qt) + Tt * 4 + r_
                a.e("v_cndmask_b32 v%d, v%d, v%d, vcc" % (r0, V_M + 2, r0))
                a.e("v_cndmask_b32 v%d, v%d, v%d, vcc" % (r8, r8, V_M + 2))
    a.e("s_lshl_b32 s%d, s%d, 5" % (S_T0, S_W))
    a.e("s_add_u32 s%d, s%d, s%d" % (S_T0, S_T0, S_Q0))
    for b in range(8):
        lab = a.newlabel("neg")
        a.e("s_cmp_lt_i32 s%d, %d" % (S_T0, 256 - b * 32))
        a.e("s_cbranch_scc0 %s" % lab)
        for i in range(16):
            a.e("v_mov_b32 v%d, v%d" % (sreg(b, 0) + i, V_M + 2))
        a.label(lab)
    for qt in range(2):
        regs = [sreg(b, qt) + i for b in range(9) for i in range(8)]
        a.e("v_max3_f32 v%d, v%d, v%d, v%d" % (V_M + qt, regs[0], regs[1], regs[2]))
        for i in range(3, 71, 2):
            a.e("v_max3_f32 v%d, v%d, v%d, v%d" % (V_M + qt, V_M + qt, regs[i], regs[i + 1]))
        a.e("v_max_f32 v%d, v%d, v%d" % (V_M + qt, V_M + qt, regs[71]))
    for xr in (V_X16, V_X32):
        for qt in range(2):
            a.lds("ds_bpermute_b32 v%d, v%d, v%d" % (V_M + 2 + qt, xr, V_M + qt), 'x')
        a.wait_lg(['x'])
        for qt in range(2):
            a.e("v_max_f32 v%d, v%d, v%d" % (V_M + qt, V_M + qt, V_M + 2 + qt))
    cs = (DH ** -0.5) * 1.4426950408889634
    a.e("s_mov_b32 s%d, 0x%x" % (S_C, f32bits(cs)))
    for qt in range(2):
        a.e("v_mul_f32 v%d, s%d, v%d" % (V_M + qt, S_C, V_M + qt))
    a.stamp(6)
    a.wait_vm(['VD'])
    a.e("s_barrier")
    vread(0)
    for b in range(9):
        for qt in range(2):
            r0 = sreg(b, qt)
            for i in range(8):
                a.e("v_fma_f32 v%d, v%d, s%d, -v%d" % (r0 + i, r0 + i, S_C, V_M + qt))
            for i in range(8):
                a.e("v_exp_f32 v%d, v%d" % (r0 + i, r0 + i))
            a.e("s_nop 0")
            for i in range(4):
                a.e("v_cvt_pk_bf16_f32 v%d, v%d, v%d" % (r0 + i, r0 + 2 * i, r0 + 2 * i + 1))
        if b + 1 < 9:
            vread(b + 1)
        if b == 3:
            emit_pack_stores(a, S_WS, V_PD, V_PA, 44)
        a.wait_lg([('V', b)])
        a.e("s_nop 1")
        for dt in range(2):
            for qt in range(2):
                o = vr(V_O + (dt * 2 + qt) * 4, 4)
                a.e("v_mfma_f32_16x16x32_bf16 %s, %s, %s, %s" % (
                    o, vr(V_VF + (b & 1) * 8 + dt * 4, 4), vr(sreg(b, qt), 4), o))
    a.e("s_nop 7")
    a.e("s_nop 3")
    a.stamp(7)
    a.stamp(8)
    for qt in range(2):
        a.lds("ds_bpermute_b32 v%d, v%d, v%d" % (V_M + qt, V_BS, V_O + (2 + qt) * 4), 'x')
    a.e("s_lshl_b32 s%d, s%d, 5" % (S_T0, S_W))
    a.e("s_add_u32 s%d, s%d, s%d" % (S_T0, S_T0, S_Q0))
    a.e("v_add_u32 v%d, s%d, v%d" % (T, S_T0, V_L15))
    a.e("s_movk_i32 s%d, 1280" % S_T1)
    a.e("v_mul_lo_u32 v%d, v%d, s%d" % (T, T, S_T1))
    a.e("v_lshl_add_u32 v%d, v%d, 3, v%d" % (T, V_G, T))
    a.e("s_mul_i32 s%d, s%d, 40" % (S_T0, S_H))
    a.e("v_add_u32 v%d, s%d, v%d" % (T, S_T0, T))
    a.e("v_add_u32 v%d, %d, v%d" % (T + 1, 16 * 1280, T))
    a.wait_lg(['x'])
    for qt in range(2):
        a.e("v_rcp_f32 v%d, v%d" % (V_M + qt, V_M + qt))
    a.e("s_nop 0")
    for qt in range(2):
        for dt in range(2):
            o = V_O + (dt * 2 + qt) * 4
            for r_ in range(4):
                a.e("v_mul_f32 v%d, v%d, v%d" % (o + r_, o + r_, V_M + qt))
            a.e("v_cvt_pk_bf16_f32 v%d, v%d, v%d" % (o, o, o + 1))
            a.e("v_cvt_pk_bf16_f32 v%d, v%d, v%d" % (o + 1, o + 2, o + 3))
    for qt in range(2):
        a.e("buffer_store_dwordx2 %s, v%d, s[%d:%d], 0 offen offset:%d" % (
            vr(V_O + qt * 4, 2), T + qt, SRD_O, SRD_O + 3, 0))
    a.e("v_cmp_eq_u32 vcc, 0, v%d" % V_G)
    a.e("s_and_saveexec_b64 s[%d:%d], vcc" % (S_EX, S_EX + 1))
    for qt in range(2):
        a.e("buffer_store_dwordx2 %s, v%d, s[%d:%d], 0 offen offset:%d" % (
            vr(V_O + (2 + qt) * 4, 2), T + qt, SRD_O, SRD_O + 3, 32))
    a.e("s_mov_b64 exec, s[%d:%d]" % (S_EX, S_EX + 1))
    a.stamp(9)
    a.stamp_out(10, V_T, wg=40)
    a.label(L_end)
    a.e("s_endpgm")
    return a.lines, kernel_desc(name, nv, 0), 512, lds_bytes, 256


def gen_fused(name):
    a = Asm()
    kernel_header(a, name)
    a.e("s_cmp_ge_u32 s2, 256")
    a.e("s_cbranch_scc1 %s_end" % name)
    a.e("s_load_dwordx2 s[4:5], s[0:1], %d" % KA['ws'])
    a.e("s_load_dwordx2 s[62:63], s[0:1], %d" % KA['x'])
    a.e("s_load_dwordx4 s[64:67], s[0:1], %d" % KA['out'])
    a.e("s_waitcnt lgkmcnt(0)")
    a.e("s_mov_b32 s68, s66")
    a.e("s_and_b32 s69, s67, 0xffff")
    a.e("s_mov_b32 s70, 256")
    a.e("s_mov_b32 s71, 0x00020000")
    r = []
    r.append(gen_gemm("f3", 640, 640, 64, 80, ('ws', WS_O), 'wo', 0, 'res', 128, fz=dict(a=a, wait=None, signal=(1, 0))))
    r.append(gen_gemm("f4", 640, 640, 64, 80, ('ws', WS_H), 'w1', 2, 'gelu', 128, fz=dict(a=a, wait=(1, 0, 1, 0, 8), signal=(1, 1))))
    r.append(gen_gemm("f5", 640, 640, 64, 80, ('ws', WS_HG), 'w2', 0, 'x1', 128, shift=True, fz=dict(a=a, wait=(1, -1, 3, 1, 8), signal=(1, 2))))
    r.append(gen_gemm("f6", 640, 1536, 128, 96, ('ws', WS_X1), 'w3', 1, 'gelu', 64, early=True, fz=dict(a=a, wait=(2, 0, 2, 2, 8), signal=(2, 3))))
    r.append(gen_gemm("f7", 1536, 640, 64, 80, ('ws', WS_G), 'w4', 0, 'out', 128, fz=dict(a=a, wait=(0, 0, 1, 3, 16), signal=None)))
    a.label(name + "_end")
    a.e("s_endpgm")
    nv = max(x[0] for x in r)
    nag = max(x[1] for x in r)
    assert (nv + 3) // 4 * 4 + nag <= 256
    return a.lines, kernel_desc(name, nv, nag), 256, max(x[2] for x in r), 512


def main():
    out = sys.argv[1] if len(sys.argv) > 1 else "sequential_preLN__sliding_block__mixer_s_mlp__prompt.s"
    ks = []
    ks.append(("k1_kernel",) + gen_gemm("k1_kernel", 640, 1920, 128, 128, ('in', 'x'), 'wqkv', 1, 'qkv', 64, early=True, roll=True))
    ks.append(("k2_kernel",) + gen_attn("k2_kernel"))
    if 'fused' in ABL:
        ks.append(("kf_kernel",) + gen_fused("kf_kernel"))
    else:
      ks.append(("k3_kernel",) + gen_gemm("k3_kernel", 640, 640, 64, 80, ('ws', WS_O), 'wo', 0, 'res', 128, early=True, roll=True))
      ks.append(("k4_kernel",) + gen_gemm("k4_kernel", 640, 640, 64, 80, ('ws', WS_H), 'w1', 2, 'gelu', 128, early=True, roll=True))
      ks.append(("k5_kernel",) + gen_gemm("k5_kernel", 640, 640, 64, 80, ('ws', WS_HG), 'w2', 0, 'x1', 128, shift=True, pf=('w3', 640 * 1536 * 2)))
      ks.append(("k6_kernel",) + gen_gemm("k6_kernel", 640, 1536, 128, 96, ('ws', WS_X1), 'w3', 1, 'gelu', 64, early=True, roll=True))
      ks.append(("k7_kernel",) + gen_gemm("k7_kernel", 1536, 640, 64, 80, ('ws', WS_G), 'w4', 0, 'out', 128, early=True, roll=True))
    hdr = open("sequential_preLN__sliding_block__mixer_s_mlp__prompt.s.ref").read().split("\n")
    txt = []
    for l in hdr:
        if l.startswith("; @launch") or l.startswith("; Override") or l.startswith("; grid="):
            continue
        if not l.startswith(";"):
            break
        txt.append(l)
    for (nm, lines, desc, ntiles, lds, blk) in ks:
        txt.append("; @launch kernel=%s grid=(%d,1,1) block=(%d,1,1) lds=%d" % (nm, ntiles, blk, lds))
    txt.append('.amdgcn_target "amdgcn-amd-amdhsa--gfx950"')
    txt.append(".text")
    for (nm, lines, desc, ntiles, lds, blk) in ks:
        txt += lines
    txt.append('.section .rodata,"a"')
    for (nm, lines, desc, ntiles, lds, blk) in ks:
        txt.append(".p2align 6")
        txt.append(desc)
    open(out, "w").write("\n".join(txt) + "\n")
    print("wrote", out, "lines", len(txt))


if __name__ == "__main__":
    main()
```

```python
import sys, os
ABL = set(os.environ.get('ABL', '').split(','))

S = 2048
D = 640
F = 1536
H = 32
DH = 20

WS_Q = 0
WS_K = WS_Q + 32 * 2048 * 64
WS_VT = WS_K + 32 * 2048 * 64
WS_O = WS_VT + 640 * 2048 * 2
WS_H = WS_O + S * D * 2
WS_HG = WS_H + S * D * 2
WS_X1 = WS_HG + S * D * 2
WS_G = WS_X1 + S * D * 2
WS_ST = WS_G + S * F * 2
WS_PW = {}
_o = WS_ST + S * 8
for _k, _n in (('wo', 640 * 640 * 2), ('w1', 640 * 640 * 2), ('w2', 640 * 640 * 2), ('w3', 640 * 1536 * 2), ('w4', 640 * 1536 * 2)):
    WS_PW[_k] = _o
    _o += _n
WS_END = _o
PACK = dict(wo=(640, 640, 80, 128), w1=(640, 640, 80, 128), w2=(640, 640, 80, 128), w3=(640, 1536, 96, 64), w4=(1536, 640, 80, 128))

KA = dict(x=0, wqkv=8, wo=16, bx=24, w1=32, w2=40, w3=48, w4=56, out=64, dbg=72, ws=80)


class Asm:
    def __init__(self):
        self.lines = []
        self.vm = []
        self.lg = []
        Asm.uid = getattr(Asm, 'uid', 0)

    def e(self, s):
        self.lines.append("    " + s)

    def label(self, s):
        self.lines.append(s + ":")

    def c(self, s):
        self.lines.append("    ; " + s)

    def newlabel(self, p):
        Asm.uid += 1
        return "L_%s_%d" % (p, Asm.uid)

    def vmem(self, s, tag=None):
        self.e(s)
        self.vm.append(tag)

    def lds(self, s, tag=None):
        self.e(s)
        self.lg.append(tag)

    def _need(self, lst, tags):
        last = -1
        for i, t in enumerate(lst):
            if t in tags:
                last = i
        return last

    def wait_vm(self, tags):
        last = self._need(self.vm, tags)
        if last < 0:
            return
        n = len(self.vm) - 1 - last
        if n <= 63:
            self.e("s_waitcnt vmcnt(%d)" % n)
        self.vm = self.vm[last + 1:]

    def wait_lg(self, tags):
        last = self._need(self.lg, tags)
        if last < 0:
            return
        n = len(self.lg) - 1 - last
        assert n <= 15, n
        self.e("s_waitcnt lgkmcnt(%d)" % n)
        self.lg = self.lg[last + 1:]

    def stamp(self, i):
        if 'stamp' not in ABL:
            return
        self.e("s_memtime s[%d:%d]" % (60 + 2 * i, 61 + 2 * i))
        if i == 0:
            self.e("s_memrealtime s[92:93]")
        if i == 9:
            self.e("s_memrealtime s[94:95]")
        self.e("s_waitcnt lgkmcnt(0)")
        self.lg = []

    def stamp_out(self, n, vtmp, wg=0):
        if 'stamp' not in ABL:
            return
        Asm.kidx = getattr(Asm, 'kidx', 0) + 1
        self.e("s_load_dwordx2 s[56:57], s[0:1], 80")
        self.e("s_waitcnt lgkmcnt(0)")
        self.e("s_add_u32 s56, s56, 0x%x" % ((64 << 20) + self.kslot * 65536))
        self.e("s_addc_u32 s57, s57, 0")
        self.e("s_and_b32 s57, s57, 0xffff")
        self.e("s_mov_b32 s58, 65536")
        self.e("s_mov_b32 s59, 0x00020000")
        self.e("v_cmp_eq_u32 vcc, 0, v0")
        self.e("s_and_saveexec_b64 s[80:81], vcc")
        self.e("s_lshl_b32 s82, s2, 3")
        self.e("v_mov_b32 v%d, s82" % vtmp)
        self.e("v_mov_b32 v%d, s92" % (vtmp + 1))
        self.e("buffer_store_dword v%d, v%d, s[56:59], 0 offen" % (vtmp + 1, vtmp))
        self.e("v_mov_b32 v%d, s94" % (vtmp + 1))
        self.e("buffer_store_dword v%d, v%d, s[56:59], 0 offen offset:4" % (vtmp + 1, vtmp))
        self.e("s_mov_b64 exec, s[80:81]")
        lab = self.newlabel("stamp")
        self.e("s_cmp_eq_u32 s2, %d" % wg)
        self.e("s_cbranch_scc0 %s" % lab)
        self.e("s_load_dwordx2 s[56:57], s[0:1], 72")
        self.e("s_waitcnt lgkmcnt(0)")
        self.e("s_and_b32 s57, s57, 0xffff")
        self.e("s_mov_b32 s58, 256")
        self.e("s_mov_b32 s59, 0x00020000")
        self.e("v_lshrrev_b32 v%d, 6, v0" % vtmp)
        self.e("v_lshlrev_b32 v%d, 6, v%d" % (vtmp, vtmp))
        self.e("v_and_b32 v%d, 63, v0" % (vtmp + 1))
        self.e("v_cmp_eq_u32 vcc, 0, v%d" % (vtmp + 1))
        self.e("s_and_saveexec_b64 s[80:81], vcc")
        for i in range(n):
            self.e("s_sub_u32 s82, s%d, s60" % (60 + 2 * i))
            self.e("v_mov_b32 v%d, s82" % (vtmp + 1))
            self.e("buffer_store_dword v%d, v%d, s[56:59], 0 offen offset:%d" % (vtmp + 1, vtmp, i * 4))
        self.e("s_sub_u32 s82, s94, s92")
        self.e("v_mov_b32 v%d, s82" % (vtmp + 1))
        self.e("buffer_store_dword v%d, v%d, s[56:59], 0 offen offset:%d" % (vtmp + 1, vtmp, 40))
        self.e("v_mov_b32 v%d, s92" % (vtmp + 1))
        self.e("buffer_store_dword v%d, v%d, s[56:59], 0 offen offset:%d" % (vtmp + 1, vtmp, 44))
        self.e("v_mov_b32 v%d, s94" % (vtmp + 1))
        self.e("buffer_store_dword v%d, v%d, s[56:59], 0 offen offset:%d" % (vtmp + 1, vtmp, 48))
        self.e("s_mov_b64 exec, s[80:81]")
        self.label(lab)

    def wait_all(self):
        self.e("s_waitcnt vmcnt(0) lgkmcnt(0)")
        self.vm = []
        self.lg = []

    def wait_lg0(self):
        self.e("s_waitcnt lgkmcnt(0)")
        self.lg = []

    def wait_vm0(self):
        self.e("s_waitcnt vmcnt(0)")
        self.vm = []


def vr(b, n=1):
    return "v%d" % b if n == 1 else "v[%d:%d]" % (b, b + n - 1)


def ar(b, n=1):
    return "a%d" % b if n == 1 else "a[%d:%d]" % (b, b + n - 1)


def sr(b, n=1):
    return "s%d" % b if n == 1 else "s[%d:%d]" % (b, b + n - 1)


def build_srd(a, d, ptr, off, size):
    if off:
        a.e("s_add_u32 s%d, s%d, 0x%x" % (d, ptr, off))
        a.e("s_addc_u32 s%d, s%d, 0" % (d + 1, ptr + 1))
        a.e("s_and_b32 s%d, s%d, 0xffff" % (d + 1, d + 1))
    else:
        a.e("s_mov_b32 s%d, s%d" % (d, ptr))
        a.e("s_and_b32 s%d, s%d, 0xffff" % (d + 1, ptr + 1))
    a.e("s_mov_b32 s%d, 0x%x" % (d + 2, size))
    a.e("s_mov_b32 s%d, 0x00020000" % (d + 3))


def f32bits(x):
    import struct
    return struct.unpack("<I", struct.pack("<f", x))[0]


def sigma(nt, t, r):
    if nt == 5:
        return t
    if nt == 8:
        return t ^ r
    if nt == 6:
        return (t + (r >> 2)) % 6
    raise ValueError(nt)


def round_bf16(a, dst, src, tmp):
    a.e("v_cvt_pk_bf16_f32 %s, %s, %s" % (vr(tmp), vr(src), vr(src)))
    a.e("v_lshlrev_b32 %s, 16, %s" % (vr(dst), vr(tmp)))


def kernel_header(a, name):
    a.kslot = int(name[1]) if name[1].isdigit() else 3
    a.lines.append(".p2align 8")
    a.lines.append(".globl %s" % name)
    a.lines.append(".type %s,@function" % name)
    a.label(name)


def kernel_desc(name, nvgpr_arch, nagpr, nsgpr=96):
    acc = (nvgpr_arch + 3) // 4 * 4
    tot = acc + nagpr if nagpr else nvgpr_arch
    return """.amdhsa_kernel %s
  .amdhsa_next_free_vgpr %d
  .amdhsa_next_free_sgpr %d
  .amdhsa_accum_offset %d
  .amdhsa_group_segment_fixed_size 0
  .amdhsa_kernarg_size 88
  .amdhsa_user_sgpr_count 2
  .amdhsa_user_sgpr_kernarg_segment_ptr 1
  .amdhsa_system_sgpr_workgroup_id_x 1
.end_amdhsa_kernel
""" % (name, tot, nsgpr, acc)


def emit_prefetch(a, key, nbytes, nwg_per_xcd, s_srd, s_t0, s_w, v_lane, v_t, nwaves=4):
    if 'pf' not in ABL:
        return
    per_wg = (nbytes + nwg_per_xcd - 1) // nwg_per_xcd
    per_wave = (per_wg + nwaves - 1) // nwaves
    per_wave = (per_wave + 8191) // 8192 * 8192
    a.e("s_load_dwordx2 s[%d:%d], s[0:1], %d" % (s_srd, s_srd + 1, KA[key]))
    a.e("s_lshr_b32 s%d, s2, 3" % s_t0)
    a.e("s_mul_i32 s%d, s%d, %d" % (s_t0, s_t0, nwaves))
    a.e("s_add_u32 s%d, s%d, s%d" % (s_t0, s_t0, s_w))
    a.e("s_mul_i32 s%d, s%d, %d" % (s_t0, s_t0, per_wave))
    a.e("v_lshlrev_b32 v%d, 7, v%d" % (v_t, v_lane))
    a.e("v_add_u32 v%d, s%d, v%d" % (v_t, s_t0, v_t))
    a.e("s_waitcnt lgkmcnt(0)")
    a.lg = []
    a.e("s_and_b32 s%d, s%d, 0xffff" % (s_srd + 1, s_srd + 1))
    a.e("s_mov_b32 s%d, 0x%x" % (s_srd + 2, nbytes))
    a.e("s_mov_b32 s%d, 0x00020000" % (s_srd + 3))
    for i in range(per_wave // 8192):
        a.e("s_mov_b32 s%d, %d" % (s_t0, i * 8192))
        a.vmem("buffer_load_dword v%d, v%d, s[%d:%d], s%d offen" % (v_t + 1, v_t, s_srd, s_srd + 3, s_t0), 'PF')


def emit_b_src(a, nt, N, gpr, T, vG, dst, s_magic, s_n2):
    a.e("v_mul_lo_u32 v%d, v%d, s%d" % (T + 1, vG, s_magic))
    a.e("v_lshrrev_b32 v%d, 16, v%d" % (T + 1, T + 1))
    a.e("v_mul_u32_u24 v%d, %d, v%d" % (T + 2, gpr, T + 1))
    a.e("v_sub_u32 v%d, v%d, v%d" % (T + 2, vG, T + 2))
    a.e("v_lshrrev_b32 v%d, 1, v%d" % (T + 3, T + 2))
    a.e("v_and_b32 v%d, 1, v%d" % (T + 2, T + 2))
    a.e("v_and_b32 v%d, 7, v%d" % (T + 4, T + 1))
    if nt == 8:
        a.e("v_xor_b32 v%d, v%d, v%d" % (T + 3, T + 3, T + 4))
    elif nt == 6:
        a.e("v_lshrrev_b32 v%d, 2, v%d" % (T + 4, T + 4))
        a.e("v_sub_u32 v%d, v%d, v%d" % (T + 3, T + 3, T + 4))
        a.e("v_add_u32 v%d, 6, v%d" % (T + 4, T + 3))
        a.e("v_min_u32 v%d, v%d, v%d" % (T + 3, T + 3, T + 4))
    a.e("v_bfe_u32 v%d, v%d, 2, 2" % (T + 4, T + 1))
    a.e("v_bfe_u32 v%d, v%d, 4, 1" % (T + 5, T + 1))
    a.e("v_and_b32 v%d, 0x%x, v%d" % (T + 6, 0xffe3, T + 1))
    a.e("v_lshl_add_u32 v%d, v%d, 3, v%d" % (T + 6, T + 4, T + 6))
    a.e("v_lshl_add_u32 v%d, v%d, 2, v%d" % (T + 6, T + 5, T + 6))
    a.e("v_mul_lo_u32 v%d, v%d, s%d" % (T + 6, T + 6, s_n2))
    a.e("v_lshlrev_b32 v%d, 5, v%d" % (T + 3, T + 3))
    a.e("v_lshl_add_u32 v%d, v%d, 4, v%d" % (T + 3, T + 2, T + 3))
    a.e("v_add_u32 v%d, v%d, v%d" % (dst, T + 6, T + 3))


def emit_pack_path(a, first_wg, nwg):
    NW = 120
    NBAT = 16
    V_LANE, T, V_LS, V_L16, V_D = 1, 8, 16, 17, 20
    V_A = V_D + NBAT * 4
    S_WS, SRD_S, SRD_D = 4, 8, 12
    S_PW, S_U, S_CB, S_C, S_I, S_T0, S_T1, S_MG, S_N2 = 32, 33, 34, 35, 36, 37, 38, 39, 40
    L_done = a.newlabel("pkdone")
    a.e("s_load_dwordx2 s[%d:%d], s[0:1], %d" % (S_WS, S_WS + 1, KA['ws']))
    a.e("v_and_b32 v%d, 63, v0" % V_LANE)
    a.e("v_lshrrev_b32 v%d, 6, v0" % T)
    a.e("v_lshlrev_b32 v%d, 4, v%d" % (V_L16, V_LANE))
    a.e("v_readfirstlane_b32 s%d, v%d" % (S_PW, T))
    a.e("s_sub_u32 s%d, s2, %d" % (S_T0, first_wg))
    a.e("s_lshl_b32 s%d, s%d, 3" % (S_T0, S_T0))
    a.e("s_add_u32 s%d, s%d, s%d" % (S_PW, S_PW, S_T0))
    a.e("s_cmp_ge_u32 s%d, %d" % (S_PW, NW))
    a.e("s_cbranch_scc1 %s" % L_done)
    for key in ('wo', 'w1', 'w2', 'w3', 'w4'):
        K, N, Nt, kc = PACK[key]
        nt = Nt // 16
        gpr = Nt // 8
        U = K * N * 2 // 1024
        UC = K * Nt * 2 // 1024
        UB = kc * Nt * 2 // 1024
        NCH = K // kc
        assert NW % UB == 0 and UC % UB == 0
        magic = (65536 + gpr - 1) // gpr
        mUB = (1 << 32) // UB + 1
        mNC = (1 << 32) // NCH + 1
        nq = U // UB
        for u in range(U + NBAT * NW):
            assert (u * mUB) >> 32 == u // UB
        for q in range(nq + 200):
            assert (q * mNC) >> 32 == q // NCH
        a.e("s_load_dwordx2 s[%d:%d], s[0:1], %d" % (SRD_S, SRD_S + 1, KA[key]))
        a.e("s_mov_b32 s%d, %d" % (S_MG, magic))
        a.e("s_mov_b32 s%d, %d" % (S_N2, N * 2))
        a.e("s_mul_hi_u32 s%d, s%d, 0x%x" % (S_T0, S_PW, mUB))
        a.e("s_mul_i32 s%d, s%d, %d" % (S_T0, S_T0, UB))
        a.e("s_sub_u32 s%d, s%d, s%d" % (S_I, S_PW, S_T0))
        a.e("s_lshl_b32 s%d, s%d, 6" % (S_I, S_I))
        a.e("v_add_u32 v%d, s%d, v%d" % (T, S_I, V_LANE))
        emit_b_src(a, nt, N, gpr, T, T, V_LS, S_MG, S_N2)
        a.e("s_waitcnt lgkmcnt(0)")
        a.e("s_and_b32 s%d, s%d, 0xffff" % (SRD_S + 1, SRD_S + 1))
        a.e("s_mov_b32 s%d, 0x%x" % (SRD_S + 2, K * N * 2))
        a.e("s_mov_b32 s%d, 0x00020000" % (SRD_S + 3))
        build_srd(a, SRD_D, S_WS, WS_PW[key], K * N * 2)
        a.e("s_mov_b32 s%d, s%d" % (S_U, S_PW))
        nb = min(NBAT, (U + NW - 1) // NW)
        L = a.newlabel("pk")
        a.label(L)
        for b in range(nb):
            a.e("s_add_u32 s%d, s%d, %d" % (S_T1, S_U, b * NW))
            a.e("s_mul_hi_u32 s%d, s%d, 0x%x" % (S_C, S_T1, mUB))
            a.e("s_mul_hi_u32 s%d, s%d, 0x%x" % (S_CB, S_C, mNC))
            a.e("s_mul_i32 s%d, s%d, %d" % (S_T0, S_CB, NCH))
            a.e("s_sub_u32 s%d, s%d, s%d" % (S_C, S_C, S_T0))
            a.e("s_mul_i32 s%d, s%d, %d" % (S_C, S_C, kc * N * 2))
            a.e("s_mul_i32 s%d, s%d, %d" % (S_CB, S_CB, Nt * 2))
            a.e("s_add_u32 s%d, s%d, s%d" % (S_C, S_C, S_CB))
            a.e("s_lshl_b32 s%d, s%d, 10" % (S_T1, S_T1))
            a.e("v_add_u32 v%d, s%d, v%d" % (V_A + 2 * b, S_C, V_LS))
            a.e("v_add_u32 v%d, s%d, v%d" % (V_A + 2 * b + 1, S_T1, V_L16))
            a.e("buffer_load_dwordx4 %s, v%d, s[%d:%d], 0 offen" % (vr(V_D + b * 4, 4), V_A + 2 * b, SRD_S, SRD_S + 3))
        for b in range(nb):
            a.e("s_waitcnt vmcnt(%d)" % (nb - 1))
            a.e("buffer_store_dwordx4 %s, v%d, s[%d:%d], 0 offen" % (vr(V_D + b * 4, 4), V_A + 2 * b + 1, SRD_D, SRD_D + 3))
        a.e("s_add_u32 s%d, s%d, %d" % (S_U, S_U, nb * NW))
        a.e("s_cmp_lt_u32 s%d, %d" % (S_U, U))
        a.e("s_cbranch_scc1 %s" % L)
    a.label(L_done)
    a.e("s_endpgm")


def emit_pack_calc(a, s_w, v_lane, T, V_PD, V_PA, S0):
    S_PW, S_U, S_CB, S_C, S_I, S_T0, S_T1, S_MG, S_N2 = [S0 + i for i in range(9)]
    SRD_S = S0 + 12
    a.e("s_lshl_b32 s%d, s2, 2" % S_PW)
    a.e("s_add_u32 s%d, s%d, s%d" % (S_PW, S_PW, s_w))
    for idx, (key, wofs) in enumerate((('wo', 0), ('w1', 800), ('w2', 1240), ('w3', 0), ('w4', 0))):
        K, N, Nt, kc = PACK[key]
        nt = Nt // 16
        gpr = Nt // 8
        U = K * N * 2 // 1024
        UB = kc * Nt * 2 // 1024
        NCH = K // kc
        magic = (65536 + gpr - 1) // gpr
        mUB = (1 << 32) // UB + 1
        mNC = (1 << 32) // NCH + 1
        for u in range(2100):
            assert (u * mUB) >> 32 == u // UB
            assert (u * mNC) >> 32 == u // NCH
        a.e("s_mov_b32 s%d, %d" % (S_MG, magic))
        a.e("s_mov_b32 s%d, %d" % (S_N2, N * 2))
        a.e("s_sub_u32 s%d, s%d, %d" % (S_U, S_PW, wofs))
        a.e("s_cmp_lt_u32 s%d, %d" % (S_U, U))
        a.e("s_cselect_b32 s%d, s%d, 0x100000" % (S_U, S_U))
        a.e("s_mul_hi_u32 s%d, s%d, 0x%x" % (S_C, S_U, mUB))
        a.e("s_mul_i32 s%d, s%d, %d" % (S_T0, S_C, UB))
        a.e("s_sub_u32 s%d, s%d, s%d" % (S_I, S_U, S_T0))
        a.e("s_lshl_b32 s%d, s%d, 6" % (S_I, S_I))
        a.e("v_add_u32 v%d, s%d, v%d" % (T, S_I, v_lane))
        emit_b_src(a, nt, N, gpr, T, T, T + 7, S_MG, S_N2)
        a.e("s_mul_hi_u32 s%d, s%d, 0x%x" % (S_CB, S_C, mNC))
        a.e("s_mul_i32 s%d, s%d, %d" % (S_T0, S_CB, NCH))
        a.e("s_sub_u32 s%d, s%d, s%d" % (S_C, S_C, S_T0))
        a.e("s_mul_i32 s%d, s%d, %d" % (S_C, S_C, kc * N * 2))
        a.e("s_mul_i32 s%d, s%d, %d" % (S_CB, S_CB, Nt * 2))
        a.e("s_add_u32 s%d, s%d, s%d" % (S_C, S_C, S_CB))
        a.e("s_cmp_lt_u32 s%d, %d" % (S_U, U))
        a.e("s_cselect_b32 s%d, s%d, 0x7ff00000" % (S_C, S_C))
        a.e("v_add_u32 v%d, s%d, v%d" % (V_PD + idx * 4, S_C, T + 7))
        a.e("s_lshl_b32 s%d, s%d, 10" % (S_T1, S_U))
        a.e("s_add_u32 s%d, s%d, 0x%x" % (S_T1, S_T1, WS_PW[key] - WS_PW['wo']))
        a.e("v_lshl_add_u32 v%d, v%d, 4, s%d" % (V_PA + idx, v_lane, S_T1))


def emit_pack_issue(a, V_PD, S0):
    SRD_S = S0 + 12
    for idx, key in enumerate(('wo', 'w1', 'w2', 'w3', 'w4')):
        K, N, Nt, kc = PACK[key]
        sp = {'wo': 24, 'w1': 84, 'w2': 86, 'w3': 88, 'w4': 90}[key]
        a.e("s_mov_b32 s%d, s%d" % (SRD_S, sp))
        a.e("s_and_b32 s%d, s%d, 0xffff" % (SRD_S + 1, sp + 1))
        a.e("s_mov_b32 s%d, 0x%x" % (SRD_S + 2, K * N * 2))
        a.e("s_mov_b32 s%d, 0x00020000" % (SRD_S + 3))
        a.vmem("buffer_load_dwordx4 %s, v%d, s[%d:%d], 0 offen" % (vr(V_PD + idx * 4, 4), V_PD + idx * 4, SRD_S, SRD_S + 3), 'PK')


def emit_pack_stores(a, s_ws, V_PD, V_PA, S0):
    SRD_D = S0 + 12
    build_srd(a, SRD_D, s_ws, WS_PW['wo'], WS_END - WS_PW['wo'])
    a.wait_vm(['PK'])
    for idx in range(5):
        a.vmem("buffer_store_dwordx4 %s, v%d, s[%d:%d], 0 offen" % (vr(V_PD + idx * 4, 4), V_PA + idx, SRD_D, SRD_D + 3), 'PS')


GELU_C1 = -2.0 * 0.7978845608028654 * 1.4426950408889634
GELU_C2 = GELU_C1 * 0.044715


def gelu_inplace(a, x, t1, t2, s_c1, s_c2):
    a.e("v_mul_f32 %s, %s, %s" % (vr(t1), vr(x), vr(x)))
    a.e("v_mov_b32 %s, %s" % (vr(t2), sr(s_c1)))
    a.e("v_fma_f32 %s, %s, %s, %s" % (vr(t1), vr(t1), sr(s_c2), vr(t2)))
    a.e("v_mul_f32 %s, %s, %s" % (vr(t1), vr(t1), vr(x)))
    a.e("v_exp_f32 %s, %s" % (vr(t1), vr(t1)))
    a.e("s_nop 0")
    a.e("v_add_f32 %s, 1.0, %s" % (vr(t1), vr(t1)))
    a.e("v_rcp_f32 %s, %s" % (vr(t1), vr(t1)))
    a.e("s_nop 0")
    a.e("v_mul_f32 %s, %s, %s" % (vr(x), vr(x), vr(t1)))


def gen_gemm(name, K, N, Mt, Nt, a_src, w_key, ln, epi, kc, shift=False, nbuf=None, LA=None, pf=None, packwg=0, early=False, roll=False, fz=None):
    a = Asm() if fz is None else fz['a']
    SC = " sc1" if (fz is not None and fz.get('signal') is not None) else ""
    if 'roll' not in ABL:
        roll = False
        if kc == 128 and 'early128' not in ABL:
            early = False
    packed = w_key in PACK
    if packed:
        assert PACK[w_key] == (K, N, Nt, kc)
    mt = Mt // 64
    nt = Nt // 16
    WR = Mt // 4
    P = Nt * 2
    PA = kc * 2
    ABYTES = Mt * PA
    BBYTES = kc * P
    BREG = (BBYTES + 4095) // 4096 * 4096
    CH = ABYTES + BREG
    nch = K // kc
    kpc = kc // 32
    RB = S // Mt
    CB = N // Nt
    ntiles = RB * CB
    if nbuf is None:
        nbuf = min(nch, (156 * 1024) // CH)
    if LA is None:
        LA = nbuf - 1 if nbuf < nch else nbuf
        if early and nbuf < nch and 'safe' in ABL:
            LA = nbuf - 2
    MISC = nbuf * CH
    CSL = MISC
    ABL_ = MISC + 1024
    lds_bytes = MISC + 1024 + Mt * 8
    pitchA = K * 2
    nA = ABYTES // 4096
    nB = BREG // 4096
    assert ABYTES % 4096 == 0 and (BBYTES % 4096 == 0 or packed)
    lpr = kc // 8
    rpi = 64 // lpr
    gpr = Nt // 8
    ROT = 1 if nt == 5 else 2
    NCS = 2
    nS = nA

    V_LANE, V_L15, V_G = 1, 2, 3
    nxt = 4
    nset = (MISC + 65535) // 65536
    if roll:
        nset = 2
    V_B = nxt; nxt += nt * nset
    V_AR = nxt; nxt += kpc * nset
    V_T = nxt; nxt += 12
    nxt = (nxt + 3) // 4 * 4
    V_ONES = nxt; nxt += 4
    NF = int(os.environ.get('NF', '6'))
    if roll:
        NF = {8: 8, 6: 6, 5: 5}[nt]
        assert (kpc * nt) % NF == 0 and kpc % 2 == 0
    V_BF = nxt; nxt += NF * 4
    V_AF = nxt; nxt += 2 * mt * 4
    V_CS = nxt; nxt += nt * 4
    V_E = nxt; nxt += 24
    V_AL = nxt; nxt += 4 * mt
    V_BE = nxt; nxt += 4 * mt
    V_ADMA = V_B
    V_BDMA = V_B + nA
    V_SA = V_BDMA + nB
    assert nA + nB + 1 <= nt * nset + kpc * nset
    V_SD = V_BF
    V_SS = V_CS
    assert nS * 4 <= NF * 4 + 2 * mt * 4 and 2 * nS <= nt * 4
    EG = Mt * gpr
    nE = (EG + 511) // 512
    if epi == 'qkv':
        nE = 0
    V_EO = nxt; nxt += nE
    V_EL = nxt; nxt += nE
    nxt = (nxt + 3) // 4 * 4
    V_R1 = nxt; nxt += 4 * nE if epi in ('res', 'x1', 'out') else 0
    V_R2 = nxt; nxt += 4 * nE if epi in ('out',) else 0
    V_RS = nxt; nxt += 2 * nE if epi == 'x1' else 0
    nv = nxt
    A_ACC = 0
    A_CS = mt * nt * 4
    A_SM = A_CS + NCS * 4
    A_GR = A_SM + mt * 4
    nagpr = A_GR + mt * 4 if ln else A_CS
    assert (nv + 3) // 4 * 4 + nagpr <= 256, (name, nv, nagpr)

    S_WS, S_P = 4, 6
    SRD_A, SRD_W, SRD_O, SRD_R1, SRD_R2, SRD_ST = 8, 12, 16, 20, 24, 28
    S_W, S_RB, S_CB, S_ROW0, S_COL0, S_T0, S_T1, S_LA, S_LB, S_KA, S_KB = 32, 33, 34, 35, 36, 37, 38, 39, 40, 41, 42
    S_W8 = 43
    S_EX = 44
    S_SEC = 46
    S_C2 = 47
    S_TT = 48
    S_WR0 = 56 if 'stamp' not in ABL else 84

    L_end = name + "_end"
    if fz is None:
        kernel_header(a, name)
        a.e("s_cmp_ge_u32 s2, %d" % (ntiles + packwg))
        a.e("s_cbranch_scc1 %s" % L_end)
        if packwg:
            a.e("s_cmp_ge_u32 s2, %d" % ntiles)
            a.e("s_cbranch_scc1 %s_pack" % name)
        a.stamp(0)
        a.e("s_load_dwordx2 s[%d:%d], s[0:1], %d" % (S_WS, S_WS + 1, KA['ws']))
        if not packed:
            a.e("s_load_dwordx2 s[%d:%d], s[0:1], %d" % (SRD_W, SRD_W + 1, KA[w_key]))
        if a_src[0] == 'in':
            a.e("s_load_dwordx2 s[%d:%d], s[0:1], %d" % (SRD_A, SRD_A + 1, KA[a_src[1]]))
        if epi == 'res':
            a.e("s_load_dwordx2 s[%d:%d], s[0:1], %d" % (SRD_R1, SRD_R1 + 1, KA['x']))
        if epi == 'out':
            a.e("s_load_dwordx2 s[%d:%d], s[0:1], %d" % (SRD_O, SRD_O + 1, KA['out']))
    else:
        assert packed and a_src[0] == 'ws' and ntiles == 256
        a.vm = []
        a.lg = []
        if epi == 'res':
            a.e("s_mov_b64 s[%d:%d], s[62:63]" % (SRD_R1, SRD_R1 + 1))
        if epi == 'out':
            a.e("s_mov_b64 s[%d:%d], s[64:65]" % (SRD_O, SRD_O + 1))
    a.e("s_and_b32 s%d, s2, 7" % S_T0)
    a.e("s_lshr_b32 s%d, s2, 3" % S_T1)
    rbx = RB // 8
    if CB in (8, 16):
        sh = 3 if CB == 8 else 4
        a.e("s_lshr_b32 s%d, s%d, %d" % (S_RB, S_T1, sh))
        a.e("s_and_b32 s%d, s%d, %d" % (S_CB, S_T1, CB - 1))
    else:
        assert rbx == 2
        a.e("s_cmp_ge_u32 s%d, %d" % (S_T1, CB))
        a.e("s_cselect_b32 s%d, 1, 0" % S_RB)
        a.e("s_mul_i32 s%d, s%d, %d" % (S_CB, S_RB, CB))
        a.e("s_sub_u32 s%d, s%d, s%d" % (S_CB, S_T1, S_CB))
    a.e("s_mul_i32 s%d, s%d, %d" % (S_T0, S_T0, rbx))
    a.e("s_add_u32 s%d, s%d, s%d" % (S_RB, S_RB, S_T0))
    a.e("s_mul_i32 s%d, s%d, %d" % (S_ROW0, S_RB, Mt))
    a.e("s_mul_i32 s%d, s%d, %d" % (S_COL0, S_CB, Nt))
    a.e("v_and_b32 v%d, 63, v0" % V_LANE)
    a.e("v_lshrrev_b32 v%d, 6, v0" % V_T)
    a.e("v_and_b32 v%d, 15, v0" % V_L15)
    a.e("v_bfe_u32 v%d, v0, 4, 2" % V_G)
    a.e("v_readfirstlane_b32 s%d, v%d" % (S_W8, V_T))
    T = V_T
    lsh = {16: 4, 8: 3, 4: 2}[lpr]
    magic = (65536 + gpr - 1) // gpr
    for G in range(max(kc * gpr, nE * 512)):
        assert (G * magic) >> 16 == G // gpr
    PT = P + 16
    opitch = N * 2
    L_cons = name + "_cons"
    L_p2 = name + "_phase2"
    a.e("s_and_b32 s%d, s%d, 3" % (S_W, S_W8))
    a.e("s_mul_i32 s%d, s%d, %d" % (S_WR0, S_W, WR))
    a.e("s_cmp_lt_u32 s%d, 4" % S_W8)
    a.e("s_cbranch_scc1 %s" % L_cons)

    def out_srds():
        if epi == 'qkv':
            build_srd(a, SRD_O, S_WS, WS_Q, WS_O - WS_Q)
        elif epi == 'res':
            build_srd(a, SRD_O, S_WS, WS_H, S * D * 2)
            a.e("s_and_b32 s%d, s%d, 0xffff" % (SRD_R1 + 1, SRD_R1 + 1))
            a.e("s_mov_b32 s%d, 0x%x" % (SRD_R1 + 2, S * D * 2))
            a.e("s_mov_b32 s%d, 0x00020000" % (SRD_R1 + 3))
        elif epi == 'gelu':
            build_srd(a, SRD_O, S_WS, WS_HG if N == D else WS_G, S * N * 2)
            if ln == 2:
                build_srd(a, SRD_ST, S_WS, WS_ST, S * 8)
        elif epi == 'x1':
            build_srd(a, SRD_O, S_WS, WS_X1, S * D * 2)
            build_srd(a, SRD_R1, S_WS, WS_H, S * D * 2)
            build_srd(a, SRD_ST, S_WS, WS_ST, S * 8)
        elif epi == 'out':
            a.e("s_and_b32 s%d, s%d, 0xffff" % (SRD_O + 1, SRD_O + 1))
            a.e("s_mov_b32 s%d, 0x%x" % (SRD_O + 2, S * D * 2))
            a.e("s_mov_b32 s%d, 0x00020000" % (SRD_O + 3))
            build_srd(a, SRD_R1, S_WS, WS_X1, S * D * 2)
            build_srd(a, SRD_R2, S_WS, WS_H, S * D * 2)

    def e_setup():
        a.e("s_mov_b32 s%d, %d" % (S_T1, magic))
        a.e("s_mul_i32 s%d, s%d, %d" % (S_T0, S_W8, nE * 64))
        for e_ in range(nE):
            a.e("v_add_u32 v%d, s%d, v%d" % (T, S_T0, V_LANE))
            if e_:
                a.e("v_add_u32 v%d, %d, v%d" % (T, e_ * 64, T))
            a.e("v_mul_lo_u32 v%d, v%d, s%d" % (T + 1, T, S_T1))
            a.e("v_lshrrev_b32 v%d, 16, v%d" % (T + 1, T + 1))
            a.e("v_mul_u32_u24 v%d, %d, v%d" % (T + 2, gpr, T + 1))
            a.e("v_sub_u32 v%d, v%d, v%d" % (T + 2, T, T + 2))
            a.e("v_mul_u32_u24 v%d, %d, v%d" % (T + 3, PT, T + 1))
            a.e("v_lshl_add_u32 v%d, v%d, 4, v%d" % (V_EL + e_, T + 2, T + 3))
            a.e("v_add_u32 v%d, s%d, v%d" % (T + 3, S_ROW0, T + 1))
            if epi == 'x1':
                a.e("v_lshlrev_b32 v%d, 3, v%d" % (V_RS + 2 * e_, T + 3))
            a.e("v_mul_u32_u24 v%d, %d, v%d" % (T + 3, opitch, T + 3))
            a.e("v_lshl_add_u32 v%d, v%d, 4, v%d" % (T + 3, T + 2, T + 3))
            a.e("v_lshl_add_u32 v%d, s%d, 1, v%d" % (V_EO + e_, S_COL0, T + 3))
            if nE * 512 > EG:
                a.e("v_cmp_le_u32 vcc, %d, v%d" % (EG, T))
                a.e("v_mov_b32 v%d, 0x7fffff00" % (T + 4))
                a.e("v_mov_b32 v%d, 0" % (T + 5))
                a.e("v_cndmask_b32 v%d, v%d, v%d, vcc" % (V_EO + e_, V_EO + e_, T + 4))
                if epi == 'x1':
                    a.e("v_cndmask_b32 v%d, v%d, v%d, vcc" % (V_RS + 2 * e_, V_RS + 2 * e_, T + 4))
                a.e("v_cndmask_b32 v%d, v%d, v%d, vcc" % (V_EL + e_, V_EL + e_, T + 5))

    def res_loads():
        if epi in ('res', 'x1', 'out'):
            for e_ in range(nE):
                a.vmem("buffer_load_dwordx4 %s, v%d, s[%d:%d], 0 offen" % (
                    vr(V_R1 + e_ * 4, 4), V_EO + e_, SRD_R1, SRD_R1 + 3), 'R')
        if epi == 'out':
            for e_ in range(nE):
                a.vmem("buffer_load_dwordx4 %s, v%d, s[%d:%d], 0 offen" % (
                    vr(V_R2 + e_ * 4, 4), V_EO + e_, SRD_R2, SRD_R2 + 3), 'R')
        if epi == 'x1':
            for e_ in range(nE):
                a.vmem("buffer_load_dwordx2 %s, v%d, s[%d:%d], 0 offen" % (
                    vr(V_RS + e_ * 2, 2), V_RS + e_ * 2, SRD_ST, SRD_ST + 3), 'R')

    if 'pprio' in ABL:
        a.e("s_setprio 2")
    a.e("v_lshrrev_b32 v%d, %d, v%d" % (T, lsh, V_LANE))
    a.e("v_and_b32 v%d, %d, v%d" % (T + 1, lpr - 1, V_LANE))
    a.e("v_add_u32 v%d, s%d, v%d" % (T, S_WR0, T))
    assert nA * rpi == WR
    a.e("s_mov_b32 s%d, %d" % (S_T1, pitchA))
    for i in range(nA):
        a.e("v_add_u32 v%d, %d, v%d" % (T + 2, i * rpi, T))
        if lpr == 16:
            a.e("v_and_b32 v%d, 15, v%d" % (T + 3, T + 2))
        elif lpr == 8:
            a.e("v_bfe_u32 v%d, v%d, 1, 3" % (T + 3, T + 2))
        else:
            a.e("v_bfe_u32 v%d, v%d, 3, 1" % (T + 3, T + 2))
            a.e("v_lshlrev_b32 v%d, 1, v%d" % (T + 3, T + 3))
        a.e("v_xor_b32 v%d, v%d, v%d" % (T + 3, T + 3, T + 1))
        a.e("v_add_u32 v%d, s%d, v%d" % (T + 2, S_ROW0, T + 2))
        a.e("v_mul_lo_u32 v%d, v%d, s%d" % (T + 2, T + 2, S_T1))
        a.e("v_lshl_add_u32 v%d, v%d, 4, v%d" % (V_ADMA + i, T + 3, T + 2))
    if packed:
        a.e("s_mul_i32 s%d, s%d, %d" % (S_T0, S_CB, K * Nt * 2))
        a.e("s_mul_i32 s%d, s%d, %d" % (S_T1, S_W, nB * 1024))
        a.e("s_add_u32 s%d, s%d, s%d" % (S_T0, S_T0, S_T1))
        a.e("v_lshl_add_u32 v%d, v%d, 4, s%d" % (V_BDMA, V_LANE, S_T0))
    else:
        a.e("s_mov_b32 s%d, %d" % (S_T1, magic))
        a.e("s_mul_i32 s%d, s%d, %d" % (S_T0, S_W, nB * 64))
        a.e("v_add_u32 v%d, s%d, v%d" % (T + 7, S_T0, V_LANE))
        a.e("s_lshl_b32 s%d, s%d, 1" % (S_T0, S_COL0))
        a.e("s_mov_b32 s%d, %d" % (S_KB, N * 2))
        for i in range(nB):
            a.e("v_add_u32 v%d, %d, v%d" % (T, i * 64, T + 7))
            emit_b_src(a, nt, N, gpr, T, T, V_BDMA + i, S_T1, S_KB)
            a.e("v_add_u32 v%d, s%d, v%d" % (V_BDMA + i, S_T0, V_BDMA + i))
    a.e("s_waitcnt lgkmcnt(0)")
    if packed:
        build_srd(a, SRD_W, S_WS, WS_PW[w_key], K * N * 2)
    else:
        a.e("s_and_b32 s%d, s%d, 0xffff" % (SRD_W + 1, SRD_W + 1))
        a.e("s_mov_b32 s%d, 0x%x" % (SRD_W + 2, K * N * 2))
        a.e("s_mov_b32 s%d, 0x00020000" % (SRD_W + 3))
    if a_src[0] == 'in':
        a.e("s_and_b32 s%d, s%d, 0xffff" % (SRD_A + 1, SRD_A + 1))
        a.e("s_mov_b32 s%d, 0x%x" % (SRD_A + 2, S * K * 2))
        a.e("s_mov_b32 s%d, 0x00020000" % (SRD_A + 3))
    else:
        build_srd(a, SRD_A, S_WS, a_src[1], S * K * 2)
    a.e("s_mul_i32 s%d, s%d, %d" % (S_LA, S_W, nA * 1024))
    a.e("s_mul_i32 s%d, s%d, %d" % (S_LB, S_W, nB * 1024))
    a.e("s_mov_b32 s%d, 0x7ff00000" % S_SEC)

    def dma_a(c):
        buf = c % nbuf
        a.e("s_mov_b32 s%d, 0x%x" % (S_KA, c * kc * 2))
        for i in range(nA):
            src = V_ADMA + i
            if shift:
                k0 = c * kc
                g0 = k0 // 160
                g1 = (k0 + kc - 1) // 160
                sh = [-1, 1, -2, 2]
                if g0 == g1:
                    a.e("v_add_u32 v%d, 0x%x, v%d" % (T + 4, (sh[g0] * pitchA) & 0xffffffff, src))
                else:
                    thr = (g1 * 160 - k0) // 8
                    a.e("v_bfe_u32 v%d, v%d, 4, %d" % (T + 5, src, lsh))
                    a.e("v_cmp_gt_u32 vcc, %d, v%d" % (thr, T + 5))
                    a.e("v_add_u32 v%d, 0x%x, v%d" % (T + 4, (sh[g0] * pitchA) & 0xffffffff, src))
                    a.e("v_add_u32 v%d, 0x%x, v%d" % (T + 5, (sh[g1] * pitchA) & 0xffffffff, src))
                    a.e("v_cndmask_b32 v%d, v%d, v%d, vcc" % (T + 4, T + 5, T + 4))
                src = T + 4
            a.e("s_add_u32 m0, s%d, 0x%x" % (S_LA, buf * CH + i * 1024))
            a.e("s_nop 0")
            a.vmem("buffer_load_dwordx4 v%d, s[%d:%d], s%d offen lds" % (src, SRD_A, SRD_A + 3, S_KA), ('A', c))

    def dma_b(c):
        buf = c % nbuf
        if not packed:
            a.e("s_mov_b32 s%d, 0x%x" % (S_KB, c * kc * N * 2))
        for i in range(nB):
            a.e("s_add_u32 m0, s%d, 0x%x" % (S_LB, buf * CH + ABYTES + i * 1024))
            if packed:
                if BBYTES != BREG:
                    a.e("s_cmp_lt_u32 s%d, %d" % (S_LB, BBYTES - i * 1024))
                    a.e("s_cselect_b32 s%d, 0x%x, s%d" % (S_KB, c * BBYTES + i * 1024, S_SEC))
                else:
                    a.e("s_mov_b32 s%d, 0x%x" % (S_KB, c * BBYTES + i * 1024))
            else:
                a.e("s_nop 0")
            a.vmem("buffer_load_dwordx4 v%d, s[%d:%d], s%d offen lds" % (V_BDMA + (0 if packed else i), SRD_W, SRD_W + 3, S_KB), ('B', c))

    if fz is not None and fz.get('wait') is not None:
        for c in range(0, LA):
            dma_b(c)
        a.e("s_barrier")
        for c in range(0, LA):
            dma_a(c)
    else:
        for c in range(0, LA):
            dma_a(c)
            dma_b(c)
    out_srds()
    e_setup()
    if roll:
        assert not shift and LA == nbuf - 1
        S_PB, S_PI, S_PA2, S_PB2 = 57, 58, 59, 60 if 'stamp' not in ABL else 85
        a.e("s_mov_b32 s%d, %d" % (S_PB, (LA % nbuf) * CH))
        a.e("s_mov_b32 s%d, 0" % S_PI)
        a.e("s_mov_b32 s%d, %d" % (S_KA, LA * kc * 2))
        a.e("s_mov_b32 s%d, %d" % (S_PB2, LA * (BBYTES if packed else kc * N * 2)))
        L = a.newlabel("pl")
        a.label(L)
        a.e("s_waitcnt vmcnt(%d)" % ((LA - 1) * (nA + nB)))
        a.e("s_barrier")
        a.e("s_add_u32 s%d, s%d, s%d" % (S_PA2, S_LA, S_PB))
        for i in range(nA):
            a.e("s_add_u32 m0, s%d, %d" % (S_PA2, i * 1024))
            a.e("s_nop 0")
            a.e("buffer_load_dwordx4 v%d, s[%d:%d], s%d offen lds" % (V_ADMA + i, SRD_A, SRD_A + 3, S_KA))
        a.e("s_add_u32 s%d, s%d, s%d" % (S_PA2, S_LB, S_PB))
        for i in range(nB):
            a.e("s_add_u32 m0, s%d, %d" % (S_PA2, ABYTES + i * 1024))
            if packed:
                assert BBYTES == BREG
                a.e("s_add_u32 s%d, s%d, %d" % (S_KB, S_PB2, i * 1024))
                a.e("buffer_load_dwordx4 v%d, s[%d:%d], s%d offen lds" % (V_BDMA, SRD_W, SRD_W + 3, S_KB))
            else:
                a.e("s_nop 0")
                a.e("buffer_load_dwordx4 v%d, s[%d:%d], s%d offen lds" % (V_BDMA + i, SRD_W, SRD_W + 3, S_PB2))
        a.e("s_add_u32 s%d, s%d, %d" % (S_KA, S_KA, kc * 2))
        a.e("s_add_u32 s%d, s%d, %d" % (S_PB2, S_PB2, BBYTES if packed else kc * N * 2))
        a.e("s_add_u32 s%d, s%d, %d" % (S_PB, S_PB, CH))
        a.e("s_cmp_eq_u32 s%d, %d" % (S_PB, nbuf * CH))
        a.e("s_cselect_b32 s%d, 0, s%d" % (S_PB, S_PB))
        a.e("s_add_u32 s%d, s%d, 1" % (S_PI, S_PI))
        a.e("s_cmp_lt_u32 s%d, %d" % (S_PI, nch - LA))
        a.e("s_cbranch_scc1 %s" % L)
        for c in range(nch - LA, nch):
            a.e("s_waitcnt vmcnt(%d)" % ((nch - 1 - c) * (nA + nB)))
            a.e("s_barrier")
        a.vm = []
        res_loads()
    for c in range(nch if not roll else 0):
        a.wait_vm([('A', c), ('B', c)])
        a.e("s_barrier")
        nc = c + LA
        if nc < nch:
            assert nc - nbuf < c
            dma_a(nc)
            dma_b(nc)
        if c == max(0, nch - 2):
            res_loads()
    a.e("s_barrier")
    a.e("s_branch %s" % L_p2)
    prod_vm = list(a.vm)

    a.vm = []
    a.lg = []
    a.label(L_cons)
    if 'cprio' in ABL:
        a.e("s_setprio 2")
    a.e("s_waitcnt lgkmcnt(0)")
    if fz is not None and fz.get('wait') is not None:
        (mul, add, nl, byte, target) = fz['wait']
        Lp = a.newlabel("poll")
        Ld = a.newlabel("polld")
        a.e("s_cmp_eq_u32 s%d, 0" % S_W8)
        a.e("s_cbranch_scc0 %s" % Ld)
        if mul == 0:
            a.e("s_and_b32 s%d, s%d, 0xfffffffe" % (S_T0, S_RB))
        else:
            a.e("s_mul_i32 s%d, s%d, %d" % (S_T0, S_RB, mul))
        a.e("s_add_u32 s%d, s%d, %d" % (S_T0, S_T0, add & 0xffffffff) if add >= 0 else "s_sub_u32 s%d, s%d, %d" % (S_T0, S_T0, -add))
        a.e("v_add_u32 v%d, s%d, v%d" % (T, S_T0, V_LANE))
        a.e("v_cmp_gt_u32 vcc, 32, v%d" % T)
        a.e("v_cmp_gt_u32 s[%d:%d], %d, v%d" % (S_EX, S_EX + 1, nl, V_LANE))
        a.e("s_and_b64 s[%d:%d], vcc, s[%d:%d]" % (S_EX, S_EX + 1, S_EX, S_EX + 1))
        a.e("v_lshlrev_b32 v%d, 2, v%d" % (T, T))
        a.e("s_mov_b32 s%d, 0" % S_T1)
        a.label(Lp)
        a.e("buffer_load_dword v%d, v%d, s[68:71], 0 offen sc1" % (T + 1, T))
        a.e("s_waitcnt vmcnt(0)")
        a.e("v_bfe_u32 v%d, v%d, %d, 8" % (T + 1, T + 1, byte * 8))
        a.e("v_cmp_le_u32 vcc, %d, v%d" % (target, T + 1))
        a.e("s_and_b64 vcc, vcc, s[%d:%d]" % (S_EX, S_EX + 1))
        a.e("s_cmp_eq_u64 vcc, s[%d:%d]" % (S_EX, S_EX + 1))
        a.e("s_cbranch_scc1 %s" % Ld)
        a.e("s_sleep 1")
        a.e("s_add_u32 s%d, s%d, 1" % (S_T1, S_T1))
        a.e("s_cmp_lt_u32 s%d, 0x40000" % S_T1)
        a.e("s_cbranch_scc1 %s" % Lp)
        a.label(Ld)
        a.e("s_barrier")
    out_srds()
    for j in range(nt):
        if ln:
            a.e("s_mul_i32 s%d, s%d, %d" % (S_TT + j, S_W, ROT))
            a.e("s_add_u32 s%d, s%d, %d" % (S_TT + j, S_TT + j, j))
            a.e("s_cmp_ge_u32 s%d, %d" % (S_TT + j, nt))
            a.e("s_cselect_b32 s%d, %d, 0" % (S_T0, nt))
            a.e("s_sub_u32 s%d, s%d, s%d" % (S_TT + j, S_TT + j, S_T0))
        else:
            a.e("s_mov_b32 s%d, %d" % (S_TT + j, j))
    a.e("v_lshrrev_b32 v%d, 2, v%d" % (T, V_L15))
    a.e("v_lshl_add_u32 v%d, v%d, 2, v%d" % (T + 1, V_G, T))
    a.e("v_mul_u32_u24 v%d, %d, v%d" % (T + 2, P, T + 1))
    a.e("v_and_b32 v%d, 3, v%d" % (T + 3, V_L15))
    a.e("v_lshl_add_u32 v%d, v%d, 3, v%d" % (T + 2, T + 3, T + 2))
    a.e("v_add_u32 v%d, %d, v%d" % (T + 2, ABYTES, T + 2))
    a.e("v_and_b32 v%d, 7, v%d" % (T + 1, T + 1))
    for j in range(nt):
        if nt == 5:
            a.e("s_lshl_b32 s%d, s%d, 5" % (S_T0, S_TT + j))
            a.e("v_add_u32 v%d, s%d, v%d" % (V_B + j, S_T0, T + 2))
        elif nt == 8:
            a.e("v_xor_b32 v%d, s%d, v%d" % (T + 3, S_TT + j, T + 1))
            a.e("v_lshl_add_u32 v%d, v%d, 5, v%d" % (V_B + j, T + 3, T + 2))
        else:
            a.e("v_lshrrev_b32 v%d, 2, v%d" % (T + 3, T + 1))
            a.e("v_add_u32 v%d, s%d, v%d" % (T + 3, S_TT + j, T + 3))
            a.e("v_subrev_u32 v%d, 6, v%d" % (T + 4, T + 3))
            a.e("v_min_u32 v%d, v%d, v%d" % (T + 3, T + 3, T + 4))
            a.e("v_lshl_add_u32 v%d, v%d, 5, v%d" % (V_B + j, T + 3, T + 2))
    a.e("v_add_u32 v%d, s%d, v%d" % (T, S_WR0, V_L15))
    a.e("v_mul_u32_u24 v%d, %d, v%d" % (T, PA, T))
    if lpr == 16:
        a.e("v_xor_b32 v%d, v%d, v%d" % (T + 1, V_L15, V_G))
    elif lpr == 8:
        a.e("v_lshrrev_b32 v%d, 1, v%d" % (T + 1, V_L15))
        a.e("v_xor_b32 v%d, v%d, v%d" % (T + 1, T + 1, V_G))
    else:
        a.e("v_bfe_u32 v%d, v%d, 3, 1" % (T + 1, V_L15))
        a.e("v_lshlrev_b32 v%d, 1, v%d" % (T + 1, T + 1))
        a.e("v_xor_b32 v%d, v%d, v%d" % (T + 1, T + 1, V_G))
    for ks in range(kpc):
        a.e("v_xor_b32 v%d, %d, v%d" % (T + 2, ks * 4, T + 1))
        a.e("v_lshl_add_u32 v%d, v%d, 4, v%d" % (V_AR + ks, T + 2, T))
    for s_ in range(1, nset if not roll else 1):
        for j in range(nt):
            a.e("v_add_u32 v%d, 0x%x, v%d" % (V_B + s_ * nt + j, s_ * 65536, V_B + j))
        for ks in range(kpc):
            a.e("v_add_u32 v%d, 0x%x, v%d" % (V_AR + s_ * kpc + ks, s_ * 65536, V_AR + ks))
    for i in range(4):
        a.e("v_mov_b32 v%d, 0x3f803f80" % (V_ONES + i))
    for i in range(nagpr):
        a.e("v_accvgpr_write_b32 a%d, 0" % i)
    e_setup()

    S_BUF, S_DL, S_IT = 57, 58, 59

    def main_loop_rolled(swapped):
        F = kpc * nt
        PD = min(NF - 1, 5)
        fr = [(ks, t) for ks in range(kpc) for t in range(nt)]

        def rd(i, nxt_):
            ks, t = fr[i]
            st = 1 if nxt_ else 0
            tag = ('F', i)
            if t == 0:
                for mi in range(mt):
                    a.lds("ds_read_b128 %s, v%d offset:%d" % (
                        vr(V_AF + ((ks & 1) * mt + mi) * 4, 4), V_AR + st * kpc + ks, mi * 16 * PA), tag)
            reg = V_BF + (i % NF) * 4
            for r_ in range(2):
                a.lds("ds_read_b64_tr_b16 %s, v%d offset:%d" % (vr(reg + r_ * 2, 2), V_B + st * nt + t, (ks * 32 + r_ * 16) * P), tag)

        def comp(i):
            ks, t = fr[i]
            a.wait_lg([('F', i)])
            reg = V_BF + (i % NF) * 4
            for mi in range(mt):
                av = vr(V_AF + ((ks & 1) * mt + mi) * 4, 4)
                acc = ar(A_ACC + (mi * nt + t) * 4, 4)
                if swapped:
                    a.e("v_mfma_f32_16x16x32_bf16 %s, %s, %s, %s" % (acc, vr(reg, 4), av, acc))
                else:
                    a.e("v_mfma_f32_16x16x32_bf16 %s, %s, %s, %s" % (acc, av, vr(reg, 4), acc))
            if ln and t == 2:
                for mi in range(mt):
                    av = vr(V_AF + ((ks & 1) * mt + mi) * 4, 4)
                    a.e("v_mfma_f32_16x16x32_bf16 %s, %s, %s, %s" % (ar(A_SM + mi * 4, 4), vr(V_ONES, 4), av, ar(A_SM + mi * 4, 4)))
            if ln and t == 3:
                for mi in range(mt):
                    av = vr(V_AF + ((ks & 1) * mt + mi) * 4, 4)
                    a.e("v_mfma_f32_16x16x32_bf16 %s, %s, %s, %s" % (ar(A_GR + mi * 4, 4), av, av, ar(A_GR + mi * 4, 4)))
            if ln and t < NCS:
                acc = ar(A_CS + t * 4, 4)
                if swapped:
                    a.e("v_mfma_f32_16x16x32_bf16 %s, %s, %s, %s" % (acc, vr(reg, 4), vr(V_ONES, 4), acc))
                else:
                    a.e("v_mfma_f32_16x16x32_bf16 %s, %s, %s, %s" % (acc, vr(V_ONES, 4), vr(reg, 4), acc))

        assert PD <= nt
        a.e("s_mov_b32 s%d, 1" % S_BUF)
        a.e("s_mov_b32 s%d, 0" % S_IT)
        a.stamp(1)
        a.e("s_barrier")
        a.stamp(2)
        for i in range(PD):
            rd(i, False)
        L = a.newlabel("ml")
        a.label(L)
        a.e("s_cmp_eq_u32 s%d, %d" % (S_BUF, nbuf))
        a.e("s_cselect_b32 s%d, 0x%x, %d" % (S_DL, (-(nbuf - 1) * CH) & 0xffffffff, CH) if False else
            "s_mov_b32 s%d, %d" % (S_DL, CH))
        a.e("s_cbranch_scc0 %s_nw" % L)
        a.e("s_mov_b32 s%d, 0x%x" % (S_DL, (-(nbuf - 1) * CH) & 0xffffffff))
        a.e("s_mov_b32 s%d, 0" % S_BUF)
        a.label(L + "_nw")
        a.e("s_add_u32 s%d, s%d, 1" % (S_BUF, S_BUF))
        for j in range(PD):
            a.e("v_add_u32 v%d, s%d, v%d" % (V_B + nt + j, S_DL, V_B + j))
        a.e("v_add_u32 v%d, s%d, v%d" % (V_AR + kpc, S_DL, V_AR))
        for i in range(F):
            if i + PD < F:
                rd(i + PD, False)
            else:
                if i + PD == F:
                    a.e("s_barrier")
                rd(i + PD - F, True)
            comp(i)
        for j in range(nt):
            a.e("v_add_u32 v%d, s%d, v%d" % (V_B + j, S_DL, V_B + j))
        for ks in range(kpc):
            a.e("v_add_u32 v%d, s%d, v%d" % (V_AR + ks, S_DL, V_AR + ks))
        a.e("s_add_u32 s%d, s%d, 1" % (S_IT, S_IT))
        a.e("s_cmp_lt_u32 s%d, %d" % (S_IT, nch - 1))
        a.e("s_cbranch_scc1 %s" % L)
        res_loads()
        for i in range(F):
            if i + PD < F:
                rd(i + PD, False)
            comp(i)

    def main_loop(swapped):
        if roll:
            return main_loop_rolled(swapped)
        frs = [(c, ks, t) for c in range(nch) for ks in range(kpc) for t in range(nt)]
        if 'nocomp' in ABL:
            frs = []
            for c in range(nch):
                a.e("s_barrier")
        PD = NF - 1
        fpc = kpc * nt

        def chunk_begin(c):
            if c == 0:
                a.stamp(1)
            a.e("s_barrier")
            if c < 5:
                a.stamp(2 + c)
            if c == max(0, nch - 2):
                res_loads()

        def rd(idx):
            c, ks, t = frs[idx]
            buf = c % nbuf
            gk = c * kpc + ks
            if t == 0:
                for mi in range(mt):
                    off = buf * CH + mi * 16 * PA
                    st = off // 65536
                    a.lds("ds_read_b128 %s, v%d offset:%d" % (
                        vr(V_AF + ((gk & 1) * mt + mi) * 4, 4), V_AR + st * kpc + ks, off % 65536), ('F', idx))
            reg = V_BF + (idx % NF) * 4
            for r_ in range(2):
                off = buf * CH + (ks * 32 + r_ * 16) * P
                st = off // 65536
                a.lds("ds_read_b64_tr_b16 %s, v%d offset:%d" % (vr(reg + r_ * 2, 2), V_B + st * nt + t, off % 65536),
                      ('F', idx))
        issued = 0

        def issue_upto(lim):
            nonlocal issued
            while issued < min(lim, len(frs)):
                c, ks, t = frs[issued]
                if ks == 0 and t == 0:
                    chunk_begin(c)
                rd(issued)
                issued += 1
        for idx, (c, ks, t) in enumerate(frs):
            if early:
                issue_upto(idx + PD + 1)
            else:
                issue_upto(min(idx + PD + 1, (c + 1) * fpc))
            if 'nowait' in ABL:
                a.lg = [x for x in a.lg if x != ('F', idx)]
            else:
                a.wait_lg([('F', idx)])
            reg = V_BF + (idx % NF) * 4
            gk = c * kpc + ks
            for mi in range(mt):
                av = vr(V_AF + ((gk & 1) * mt + mi) * 4, 4)
                acc = ar(A_ACC + (mi * nt + t) * 4, 4)
                if swapped:
                    a.e("v_mfma_f32_16x16x32_bf16 %s, %s, %s, %s" % (acc, vr(reg, 4), av, acc))
                else:
                    a.e("v_mfma_f32_16x16x32_bf16 %s, %s, %s, %s" % (acc, av, vr(reg, 4), acc))
            if ln and t == 2:
                for mi in range(mt):
                    av = vr(V_AF + ((gk & 1) * mt + mi) * 4, 4)
                    a.e("v_mfma_f32_16x16x32_bf16 %s, %s, %s, %s" % (ar(A_SM + mi * 4, 4), vr(V_ONES, 4), av, ar(A_SM + mi * 4, 4)))
            if ln and t == 3:
                for mi in range(mt):
                    av = vr(V_AF + ((gk & 1) * mt + mi) * 4, 4)
                    a.e("v_mfma_f32_16x16x32_bf16 %s, %s, %s, %s" % (ar(A_GR + mi * 4, 4), av, av, ar(A_GR + mi * 4, 4)))
            if ln and t < NCS and 'nocs' not in ABL:
                acc = ar(A_CS + t * 4, 4)
                if swapped:
                    a.e("v_mfma_f32_16x16x32_bf16 %s, %s, %s, %s" % (acc, vr(reg, 4), vr(V_ONES, 4), acc))
                else:
                    a.e("v_mfma_f32_16x16x32_bf16 %s, %s, %s, %s" % (acc, vr(V_ONES, 4), vr(reg, 4), acc))

    def stats_fin():
        T = V_T
        a.e("s_mov_b32 s%d, 0x%x" % (S_T0, f32bits(1.0 / K)))
        a.e("s_mov_b32 s%d, 0x%x" % (S_T1, f32bits(1e-5)))
        a.e("v_and_b32 v%d, 3, v%d" % (T + 9, V_L15))
        a.e("v_lshrrev_b32 v%d, 2, v%d" % (T + 8, V_L15))
        a.e("v_cmp_eq_u32 s[%d:%d], v%d, v%d" % (S_EX, S_EX + 1, T + 8, V_G))
        a.e("v_add_u32 v%d, s%d, v%d" % (T + 10, S_WR0, V_L15))
        a.e("v_lshlrev_b32 v%d, 2, v%d" % (T + 11, T + 10))
        a.e("v_add_u32 v%d, 0x%x, v%d" % (T + 11, ABL_, T + 11))
        for mi in range(mt):
            sm, sq = V_BF, V_BF + 1
            mb, r1 = V_BF + 2, V_BF + 3
            a.e("v_accvgpr_read_b32 v%d, a%d" % (sm, A_SM + mi * 4))
            a.e("v_accvgpr_read_b32 v%d, a%d" % (sq, A_GR + mi * 4))
            for r_ in range(1, 4):
                a.e("v_accvgpr_read_b32 v%d, a%d" % (T + 6, A_GR + mi * 4 + r_))
                a.e("v_cmp_eq_u32 vcc, %d, v%d" % (r_, T + 9))
                a.e("s_nop 1")
                a.e("v_cndmask_b32 v%d, v%d, v%d, vcc" % (sq, sq, T + 6))
            a.e("v_mul_f32 v%d, s%d, v%d" % (sm, S_T0, sm))
            a.e("v_mul_f32 v%d, s%d, v%d" % (sq, S_T0, sq))
            a.e("v_fma_f32 v%d, -v%d, v%d, v%d" % (sq, sm, sm, sq))
            a.e("v_max_f32 v%d, 0, v%d" % (sq, sq))
            round_bf16(a, mb, sm, T)
            round_bf16(a, T + 1, sq, T)
            a.e("v_add_f32 v%d, s%d, v%d" % (T + 1, S_T1, T + 1))
            round_bf16(a, T + 1, T + 1, T)
            a.e("v_sqrt_f32 v%d, v%d" % (T + 1, T + 1))
            a.e("s_nop 0")
            round_bf16(a, T + 1, T + 1, T)
            a.e("v_rcp_f32 v%d, v%d" % (r1, T + 1))
            a.e("s_nop 0")
            al, be = T + 4, T + 5
            if ln == 1:
                a.e("v_mov_b32 v%d, v%d" % (al, r1))
                a.e("v_mul_f32 v%d, v%d, v%d" % (be, mb, r1))
            else:
                a.e("v_sub_f32 v%d, v%d, v%d" % (T + 2, sm, mb))
                a.e("v_mul_f32 v%d, v%d, v%d" % (T + 2, T + 2, r1))
                round_bf16(a, T + 2, T + 2, T)
                a.e("v_mul_f32 v%d, v%d, v%d" % (T + 3, sq, r1))
                a.e("v_mul_f32 v%d, v%d, v%d" % (T + 3, T + 3, r1))
                round_bf16(a, T + 3, T + 3, T)
                a.e("v_add_f32 v%d, s%d, v%d" % (T + 3, S_T1, T + 3))
                round_bf16(a, T + 3, T + 3, T)
                a.e("v_sqrt_f32 v%d, v%d" % (T + 3, T + 3))
                a.e("s_nop 0")
                round_bf16(a, T + 3, T + 3, T)
                a.e("v_rcp_f32 v%d, v%d" % (T + 3, T + 3))
                a.e("s_nop 0")
                a.e("v_mul_f32 v%d, v%d, v%d" % (al, r1, T + 3))
                a.e("v_mul_f32 v%d, v%d, v%d" % (T + 2, T + 2, T + 3))
                a.e("v_fma_f32 v%d, v%d, v%d, v%d" % (be, mb, al, T + 2))
            a.e("s_mov_b64 s[90:91], exec")
            a.e("s_mov_b64 exec, s[%d:%d]" % (S_EX, S_EX + 1))
            a.e("ds_write_b32 v%d, v%d offset:%d" % (T + 11, al, mi * 64))
            a.e("ds_write_b32 v%d, v%d offset:%d" % (T + 11, be, mi * 64 + Mt * 4))
            if ln == 2:
                lab = a.newlabel("st")
                a.e("s_cmp_eq_u32 s%d, 0" % S_CB)
                a.e("s_cbranch_scc0 %s" % lab)
                a.e("v_add_u32 v%d, s%d, v%d" % (T + 6, S_ROW0, T + 10))
                a.e("v_lshlrev_b32 v%d, 3, v%d" % (T + 6, T + 6))
                a.e("buffer_store_dwordx2 %s, v%d, s[%d:%d], 0 offen offset:%d%s" % (vr(mb, 2), T + 6, SRD_ST, SRD_ST + 3, mi * 128, SC))
                a.label(lab)
            a.e("s_mov_b64 exec, s[90:91]")

    def post_loop(swapped):
        a.stamp(7)
        a.e("s_nop 7")
        a.e("s_nop 1")
        T = V_E
        if ln:
            if swapped:
                a.e("v_lshlrev_b32 v%d, 4, v%d" % (T, V_G))
                a.e("v_cmp_eq_u32 vcc, 0, v%d" % V_L15)
            else:
                a.e("v_lshlrev_b32 v%d, 2, v%d" % (T, V_L15))
                a.e("v_cmp_eq_u32 vcc, 0, v%d" % V_G)
            a.e("v_add_u32 v%d, 0x%x, v%d" % (T, CSL, T))
            for j in range(nt):
                a.e("s_lshl_b32 s%d, s%d, 6" % (S_T0, S_TT + j))
                a.e("v_add_u32 v%d, s%d, v%d" % (V_CS + j * 4 + 3, S_T0, T))
            a.e("s_and_saveexec_b64 s[%d:%d], vcc" % (S_EX, S_EX + 1))
            for j in range(NCS):
                if swapped:
                    for r_ in range(4):
                        a.e("v_accvgpr_read_b32 v%d, a%d" % (T + 4 + r_, A_CS + j * 4 + r_))
                    a.e("ds_write_b128 v%d, %s" % (V_CS + j * 4 + 3, vr(T + 4, 4)))
                else:
                    a.e("v_accvgpr_read_b32 v%d, a%d" % (T + 4, A_CS + j * 4))
                    a.e("ds_write_b32 v%d, v%d" % (V_CS + j * 4 + 3, T + 4))
            a.e("s_mov_b64 exec, s[%d:%d]" % (S_EX, S_EX + 1))
            stats_fin()
        a.wait_lg0()
        a.e("s_barrier")
        if ln:
            for j in range(nt):
                if swapped:
                    a.lds("ds_read_b128 %s, v%d" % (vr(V_CS + j * 4, 4), V_CS + j * 4 + 3))
                else:
                    a.lds("ds_read_b32 v%d, v%d" % (V_CS + j * 4, V_CS + j * 4 + 3))
            if swapped:
                a.e("v_add_u32 v%d, s%d, v%d" % (T, S_WR0, V_L15))
                a.e("v_lshlrev_b32 v%d, 2, v%d" % (T, T))
                a.e("v_add_u32 v%d, 0x%x, v%d" % (T, ABL_, T))
                for mi in range(mt):
                    a.lds("ds_read_b32 v%d, v%d offset:%d" % (V_AL + mi * 4, T, mi * 64))
                    a.lds("ds_read_b32 v%d, v%d offset:%d" % (V_BE + mi * 4, T, mi * 64 + Mt * 4))
            else:
                a.e("v_lshl_add_u32 v%d, v%d, 2, s%d" % (T, V_G, S_WR0))
                a.e("v_lshlrev_b32 v%d, 2, v%d" % (T, T))
                a.e("v_add_u32 v%d, 0x%x, v%d" % (T, ABL_, T))
                for mi in range(mt):
                    a.lds("ds_read_b128 %s, v%d offset:%d" % (vr(V_AL + mi * 4, 4), T, mi * 64))
                    a.lds("ds_read_b128 %s, v%d offset:%d" % (vr(V_BE + mi * 4, 4), T, mi * 64 + Mt * 4))
            a.wait_lg0()
        a.stamp(8)

    def acc_read(mi, j, dst):
        for r_ in range(4):
            a.e("v_accvgpr_read_b32 v%d, a%d" % (dst + r_, A_ACC + (mi * nt + j) * 4 + r_))

    def unpack(dst, src, n):
        for i in range(n):
            a.e("v_lshlrev_b32 v%d, 16, v%d" % (dst + 2 * i, src + i))
            a.e("v_and_b32 v%d, 0xffff0000, v%d" % (dst + 2 * i + 1, src + i))

    def pack(dst, src, n):
        for i in range(n):
            a.e("v_cvt_pk_bf16_f32 v%d, v%d, v%d" % (dst + i, src + 2 * i, src + 2 * i + 1))

    E = V_E + 4
    PTV = Mt * 2 + 16

    def phase1(swapped):
        if ln and swapped:
            for mi in range(mt):
                a.e("v_mov_b32 v%d, v%d" % (V_AL + mi * 4 + 1, V_AL + mi * 4))
                a.e("v_sub_f32 v%d, 0, v%d" % (V_BE + mi * 4, V_BE + mi * 4))
                a.e("v_mov_b32 v%d, v%d" % (V_BE + mi * 4 + 1, V_BE + mi * 4))
        if swapped:
            a.e("v_add_u32 v%d, s%d, v%d" % (V_E, S_WR0, V_L15))
            a.e("v_mul_u32_u24 v%d, %d, v%d" % (V_E, PT, V_E))
            a.e("v_lshl_add_u32 v%d, v%d, 3, v%d" % (V_E, V_G, V_E))
        else:
            a.e("v_mul_u32_u24 v%d, %d, v%d" % (V_E, PTV, V_L15))
            a.e("v_lshl_add_u32 v%d, v%d, 3, v%d" % (V_E, V_G, V_E))
            a.e("v_lshl_add_u32 v%d, s%d, 1, v%d" % (V_E, S_WR0, V_E))
        for j in range(nt):
            a.e("s_mul_i32 s%d, s%d, %d" % (S_T0, S_TT + j, 32 if swapped else 16 * PTV))
            a.e("v_add_u32 v%d, s%d, v%d" % (V_E + 1, S_T0, V_E))
            for mi in range(mt):
                W_ = E + (mi & 1) * 8
                acc_read(mi, j, W_)
                if ln and swapped:
                    for r_ in (0, 2):
                        a.e("v_pk_mul_f32 %s, %s, %s" % (vr(W_ + r_, 2), vr(W_ + r_, 2), vr(V_AL + mi * 4, 2)))
                    for r_ in (0, 2):
                        a.e("v_pk_fma_f32 %s, %s, %s, %s" % (vr(W_ + r_, 2), vr(V_BE + mi * 4, 2), vr(V_CS + j * 4 + r_, 2), vr(W_ + r_, 2)))
                elif ln:
                    for r_ in range(4):
                        a.e("v_mul_f32 v%d, v%d, v%d" % (W_ + r_, W_ + r_, V_AL + mi * 4 + r_))
                    for r_ in range(4):
                        a.e("v_fma_f32 v%d, -v%d, v%d, v%d" % (W_ + r_, V_BE + mi * 4 + r_, V_CS + j * 4, W_ + r_))
                pack(W_ + 4, W_, 2)
                a.lds("ds_write_b64 v%d, %s offset:%d" % (V_E + 1, vr(W_ + 4, 2), mi * 16 * PT if swapped else mi * 32))
        a.wait_lg0()

    if epi == 'qkv':
        L_v = name + "_vpath"
        a.e("s_cmp_ge_u32 s%d, 10" % S_CB)
        a.e("s_cbranch_scc1 %s" % L_v)
        saved = (list(a.vm), list(a.lg))
        main_loop(True)
        post_loop(True)
        phase1(True)
        a.e("s_branch %s" % L_p2)
        a.label(L_v)
        a.vm, a.lg = saved
        main_loop(False)
        post_loop(False)
        phase1(False)
    else:
        main_loop(True)
        post_loop(True)
        phase1(True)

    a.label(L_p2)
    a.e("s_barrier")
    a.vm = [None] * 70
    T = V_E
    if epi == 'qkv':
        L_v2 = name + "_v2"
        a.e("s_cmp_ge_u32 s%d, 10" % S_CB)
        a.e("s_cbranch_scc1 %s" % L_v2)
        a.e("s_cmp_ge_u32 s%d, 5" % S_CB)
        a.e("s_cselect_b32 s%d, 640, 0" % S_T0)
        a.e("s_cselect_b32 s%d, 0x%x, 0" % (S_SEC, WS_K - WS_Q))
        a.e("s_sub_u32 s%d, s%d, s%d" % (S_T0, S_COL0, S_T0))
        a.e("s_mov_b32 s%d, 3277" % S_T1)
        a.e("v_and_b32 v%d, 31, v%d" % (T, V_LANE))
        a.e("v_lshrrev_b32 v%d, 5, v%d" % (T + 1, V_LANE))
        a.e("v_lshl_add_u32 v%d, s%d, 4, v%d" % (T + 1, S_W8, T + 1))
        a.e("v_mul_u32_u24 v%d, %d, v%d" % (T + 2, PT, T + 1))
        a.e("v_lshl_add_u32 v%d, v%d, 3, v%d" % (T + 2, T, T + 2))
        a.e("v_lshl_add_u32 v%d, v%d, 2, s%d" % (T, T, S_T0))
        a.e("v_mul_lo_u32 v%d, v%d, s%d" % (T + 3, T, S_T1))
        a.e("v_lshrrev_b32 v%d, 16, v%d" % (T + 3, T + 3))
        a.e("v_mul_u32_u24 v%d, 20, v%d" % (E, T + 3))
        a.e("v_sub_u32 v%d, v%d, v%d" % (T, T, E))
        a.e("v_lshlrev_b32 v%d, 11, v%d" % (T + 3, T + 3))
        a.e("v_add3_u32 v%d, v%d, v%d, s%d" % (T + 3, T + 3, T + 1, S_ROW0))
        a.e("v_mul_u32_u24 v%d, 40, v%d" % (T + 3, T + 3))
        a.e("v_lshl_add_u32 v%d, v%d, 1, v%d" % (T + 3, T, T + 3))
        a.e("v_add_u32 v%d, s%d, v%d" % (T + 3, S_SEC, T + 3))
        for e_ in range(8):
            a.lds("ds_read_b64 %s, v%d offset:%d" % (vr(E + e_ * 2, 2), T + 2, e_ * 2 * PT), ('e', e_))
        for e_ in range(8):
            a.wait_lg([('e', e_)])
            a.e("buffer_store_dwordx2 %s, v%d, s[%d:%d], 0 offen offset:%d" % (
                vr(E + e_ * 2, 2), T + 3, SRD_O, SRD_O + 3, e_ * 80))
        a.stamp(9)
        a.stamp_out(10, V_E)
        a.e("s_endpgm")
        a.label(L_v2)
        a.e("v_lshrrev_b32 v%d, 4, v%d" % (T, V_LANE))
        a.e("v_lshl_add_u32 v%d, s%d, 4, v%d" % (T, S_W8, T))
        a.e("v_mul_u32_u24 v%d, %d, v%d" % (T + 1, PTV, T))
        a.e("v_lshl_add_u32 v%d, v%d, 4, v%d" % (T + 1, V_L15, T + 1))
        a.e("s_sub_u32 s%d, s%d, 1280" % (S_T0, S_COL0))
        a.e("v_add_u32 v%d, s%d, v%d" % (T, S_T0, T))
        a.e("v_lshlrev_b32 v%d, 12, v%d" % (T, T))
        a.e("v_lshl_add_u32 v%d, v%d, 4, v%d" % (T, V_L15, T))
        a.e("s_lshl_b32 s%d, s%d, 1" % (S_T0, S_ROW0))
        a.e("s_add_u32 s%d, s%d, 0x%x" % (S_T0, S_T0, WS_VT - WS_Q))
        a.e("v_add_u32 v%d, s%d, v%d" % (T, S_T0, T))
        for e_ in range(4):
            a.lds("ds_read_b128 %s, v%d offset:%d" % (vr(E + e_ * 4, 4), T + 1, e_ * 4 * PTV), ('e', e_))
        for e_ in range(4):
            a.wait_lg([('e', e_)])
            a.e("buffer_store_dwordx4 %s, v%d, s[%d:%d], 0 offen" % (vr(E + e_ * 4, 4), T, SRD_O, SRD_O + 3))
            a.e("v_add_u32 v%d, 0x4000, v%d" % (T, T))
    else:
        for e_ in range(nE):
            a.lds("ds_read_b128 %s, v%d" % (vr(V_CS + e_ * 4, 4), V_EL + e_), ('e', e_))
        assert nE * 4 <= nt * 4
        if epi == 'gelu':
            a.e("v_mov_b32 v%d, 0x%x" % (V_E, f32bits(GELU_C1)))
            a.e("v_mov_b32 v%d, 0x%x" % (V_E + 1, f32bits(GELU_C1)))
            a.e("v_mov_b32 v%d, 0x%x" % (V_E + 2, f32bits(GELU_C2)))
            a.e("v_mov_b32 v%d, 0x%x" % (V_E + 3, f32bits(GELU_C2)))
            a.e("v_mov_b32 v%d, 1.0" % (E + 16))
            a.e("v_mov_b32 v%d, 1.0" % (E + 17))
        else:
            a.e("s_waitcnt vmcnt(0)")
        for e_ in range(nE):
            a.wait_lg([('e', e_)])
            src = V_CS + e_ * 4
            unpack(E, src, 4)
            if epi == 'gelu':
                for r_ in range(0, 8, 2):
                    a.e("v_pk_mul_f32 %s, %s, %s" % (vr(E + 8 + r_, 2), vr(E + r_, 2), vr(E + r_, 2)))
                for r_ in range(0, 8, 2):
                    a.e("v_pk_fma_f32 %s, %s, %s, %s" % (vr(E + 8 + r_, 2), vr(E + 8 + r_, 2), vr(V_E + 2, 2), vr(V_E, 2)))
                for r_ in range(0, 8, 2):
                    a.e("v_pk_mul_f32 %s, %s, %s" % (vr(E + 8 + r_, 2), vr(E + 8 + r_, 2), vr(E + r_, 2)))
                for r_ in range(8):
                    a.e("v_exp_f32 v%d, v%d" % (E + 8 + r_, E + 8 + r_))
                a.e("s_nop 0")
                for r_ in range(0, 8, 2):
                    a.e("v_pk_add_f32 %s, %s, %s" % (vr(E + 8 + r_, 2), vr(E + 8 + r_, 2), vr(E + 16, 2)))
                for r_ in range(8):
                    a.e("v_rcp_f32 v%d, v%d" % (E + 8 + r_, E + 8 + r_))
                a.e("s_nop 0")
                for r_ in range(0, 8, 2):
                    a.e("v_pk_mul_f32 %s, %s, %s" % (vr(E + r_, 2), vr(E + r_, 2), vr(E + 8 + r_, 2)))
            else:
                unpack(E + 8, V_R1 + e_ * 4, 4)
                if epi == 'x1':
                    for r_ in range(8):
                        a.e("v_sub_f32 v%d, v%d, v%d" % (E + 8 + r_, E + 8 + r_, V_RS + e_ * 2))
                    pack(E + 16, E + 8, 4)
                    unpack(E + 8, E + 16, 4)
                    for r_ in range(8):
                        a.e("v_mul_f32 v%d, v%d, v%d" % (E + 8 + r_, E + 8 + r_, V_RS + e_ * 2 + 1))
                    pack(E + 16, E + 8, 4)
                    unpack(E + 8, E + 16, 4)
                for r_ in range(0, 8, 2):
                    a.e("v_pk_add_f32 %s, %s, %s" % (vr(E + r_, 2), vr(E + r_, 2), vr(E + 8 + r_, 2)))
                if epi == 'out':
                    pack(E + 16, E, 4)
                    unpack(E, E + 16, 4)
                    unpack(E + 8, V_R2 + e_ * 4, 4)
                    for r_ in range(0, 8, 2):
                        a.e("v_pk_add_f32 %s, %s, %s" % (vr(E + r_, 2), vr(E + r_, 2), vr(E + 8 + r_, 2)))
            pack(src, E, 4)
            a.e("buffer_store_dwordx4 %s, v%d, s[%d:%d], 0 offen%s" % (vr(src, 4), V_EO + e_, SRD_O, SRD_O + 3, SC))
        a.stamp(9)
        a.stamp_out(10, V_E)
    if fz is not None:
        if fz.get('signal') is not None:
            (mul, byte) = fz['signal']
            Ls = a.newlabel("sig")
            a.e("s_waitcnt vmcnt(0) lgkmcnt(0)")
            a.e("s_barrier")
            a.e("s_cmp_eq_u32 s%d, 0" % S_W8)
            a.e("s_cbranch_scc0 %s" % Ls)
            a.e("s_mul_i32 s%d, s%d, %d" % (S_T0, S_RB, mul * 4))
            a.e("v_mov_b32 v%d, s%d" % (V_T, S_T0))
            a.e("v_mov_b32 v%d, 0x%x" % (V_T + 1, 1 << (8 * byte)))
            a.e("v_cmp_eq_u32 vcc, 0, v%d" % V_LANE)
            a.e("s_and_saveexec_b64 s[%d:%d], vcc" % (S_EX, S_EX + 1))
            a.e("buffer_atomic_add v%d, v%d, s[68:71], 0 offen" % (V_T + 1, V_T))
            a.e("s_mov_b64 exec, s[%d:%d]" % (S_EX, S_EX + 1))
            a.label(Ls)
        return nv, nagpr, lds_bytes
    a.label(L_end)
    a.e("s_endpgm")
    if packwg:
        a.label(name + "_pack")
        emit_pack_path(a, ntiles, packwg)
    return a.lines, kernel_desc(name, nv, nagpr), ntiles + packwg, lds_bytes, 512


def gen_attn(name):
    a = Asm()
    KL = 0
    VL = 384 * 64
    PV = 800
    lds_bytes = VL + 23 * PV
    lds_bytes = (lds_bytes + 1023) // 1024 * 1024 + 1024

    V_LANE, V_L15, V_G = 1, 2, 3
    V_T = 4
    V_KA = 12
    V_VA = 14
    V_A = 16
    V_X16, V_X32, V_BS = 17, 18, 19
    V_Q = 20
    V_O = 28
    V_KF = 44
    V_VF = 60
    V_M = 76
    V_S = 80
    V_PD = V_S + 144
    V_PA = V_PD + 20
    nv = V_PA + 5
    S_WS = 4
    SRD_Q, SRD_K, SRD_V, SRD_O = 8, 12, 16, 20
    S_W, S_H, S_Q0, S_T0, S_T1, S_KS, S_C, S_EX = 32, 33, 34, 35, 36, 37, 38, 40

    kernel_header(a, name)
    L_end = name + "_end"
    a.e("s_cmp_ge_u32 s2, 512")
    a.e("s_cbranch_scc1 %s" % L_end)
    a.stamp(0)
    a.e("s_load_dwordx2 s[%d:%d], s[0:1], %d" % (S_WS, S_WS + 1, KA['ws']))
    a.e("s_load_dwordx2 s[24:25], s[0:1], 16")
    a.e("s_load_dwordx8 s[84:91], s[0:1], 32")
    a.e("s_and_b32 s%d, s2, 7" % S_T0)
    a.e("s_lshr_b32 s%d, s2, 3" % S_T1)
    a.e("s_lshr_b32 s%d, s%d, 1" % (S_H, S_T1))
    a.e("s_and_b32 s%d, s%d, 1" % (S_Q0, S_T1))
    a.e("s_lshl_b32 s%d, s%d, 1" % (S_T0, S_T0))
    a.e("s_add_u32 s%d, s%d, s%d" % (S_Q0, S_Q0, S_T0))
    a.e("s_lshl_b32 s%d, s%d, 7" % (S_Q0, S_Q0))
    a.e("v_and_b32 v%d, 63, v0" % V_LANE)
    a.e("v_lshrrev_b32 v%d, 6, v0" % V_T)
    a.e("v_and_b32 v%d, 15, v0" % V_L15)
    a.e("v_bfe_u32 v%d, v0, 4, 2" % V_G)
    a.e("v_readfirstlane_b32 s%d, v%d" % (S_W, V_T))
    a.e("s_waitcnt lgkmcnt(0)")
    build_srd(a, SRD_Q, S_WS, WS_Q, 32 * 2048 * 40)
    build_srd(a, SRD_K, S_WS, WS_K, 32 * 2048 * 40)
    build_srd(a, SRD_V, S_WS, WS_VT, 640 * 2048 * 2)
    build_srd(a, SRD_O, S_WS, WS_O, S * D * 2)
    T = V_T
    a.e("s_lshl_b32 s%d, s%d, 11" % (S_T0, S_H))
    a.e("s_add_u32 s%d, s%d, s%d" % (S_T0, S_T0, S_Q0))
    a.e("s_sub_u32 s%d, s%d, 256" % (S_T0, S_T0))
    a.e("s_mul_i32 s%d, s%d, 96" % (S_T1, S_W))
    a.e("s_add_u32 s%d, s%d, s%d" % (S_T0, S_T0, S_T1))
    a.e("s_mul_i32 s%d, s%d, 40" % (S_KS, S_T0))
    a.e("v_lshrrev_b32 v%d, 2, v%d" % (T, V_LANE))
    a.e("v_mul_u32_u24 v%d, 40, v%d" % (T, T))
    a.e("v_add_u32 v%d, s%d, v%d" % (T, S_KS, T))
    a.e("v_and_b32 v%d, 3, v%d" % (T + 1, V_LANE))
    a.e("v_mov_b32 v%d, 0x7fffff00" % (T + 6))
    a.e("v_lshl_add_u32 v%d, v%d, 4, v%d" % (T + 2, T + 1, T))
    a.e("v_cmp_eq_u32 vcc, 3, v%d" % (T + 1))
    a.e("v_xor_b32 v%d, 2, v%d" % (T + 1, T + 1))
    a.e("v_lshl_add_u32 v%d, v%d, 4, v%d" % (T + 3, T + 1, T))
    a.e("v_cndmask_b32 v%d, v%d, v%d, vcc" % (T + 2, T + 2, T + 6))
    a.e("v_cmp_eq_u32 vcc, 3, v%d" % (T + 1))
    a.e("s_mul_i32 s%d, s%d, 6144" % (S_T1, S_W))
    a.e("s_nop 0")
    a.e("v_cndmask_b32 v%d, v%d, v%d, vcc" % (T + 3, T + 3, T + 6))
    for i in range(6):
        a.e("s_add_u32 m0, s%d, %d" % (S_T1, KL + i * 1024))
        a.e("v_add_u32 v%d, %d, v%d" % (T + 4 + (i & 1), i * 640, T + 2 + (i & 1)))
        a.vmem("buffer_load_dwordx4 v%d, s[%d:%d], 0 offen lds" % (T + 4 + (i & 1), SRD_K, SRD_K + 3))
    a.e("s_lshl_b32 s%d, s%d, 11" % (S_T0, S_H))
    a.e("s_add_u32 s%d, s%d, s%d" % (S_T0, S_T0, S_Q0))
    a.e("s_lshl_b32 s%d, s%d, 5" % (S_T1, S_W))
    a.e("s_add_u32 s%d, s%d, s%d" % (S_T0, S_T0, S_T1))
    a.e("v_add_u32 v%d, s%d, v%d" % (T, S_T0, V_L15))
    a.e("v_mul_u32_u24 v%d, 40, v%d" % (T, T))
    a.e("v_lshl_add_u32 v%d, v%d, 4, v%d" % (T, V_G, T))
    a.vmem("buffer_load_dwordx4 %s, v%d, s[%d:%d], 0 offen" % (vr(V_Q, 4), T, SRD_Q, SRD_Q + 3), 'Q')
    a.vmem("buffer_load_dwordx4 %s, v%d, s[%d:%d], 0 offen offset:640" % (vr(V_Q + 4, 4), T, SRD_Q, SRD_Q + 3), 'Q')
    a.e("s_mul_i32 s%d, s%d, 20" % (S_T0, S_H))
    a.e("s_lshl_b32 s%d, s%d, 12" % (S_T0, S_T0))
    a.e("s_lshl_b32 s%d, s%d, 1" % (S_T1, S_Q0))
    a.e("s_add_u32 s%d, s%d, s%d" % (S_T0, S_T0, S_T1))
    a.e("s_sub_u32 s%d, s%d, 512" % (S_T0, S_T0))
    a.e("s_lshl_b32 s%d, s%d, 8" % (S_T1, S_W))
    a.e("s_mov_b32 s%d, 1311" % S_C)
    for G in range(1024):
        assert (G * 1311) >> 16 == G // 50
    for i in range(4):
        a.e("v_add_u32 v%d, s%d, v%d" % (T, S_T1, V_LANE))
        if i:
            a.e("v_add_u32 v%d, %d, v%d" % (T, i * 64, T))
        a.e("v_mul_lo_u32 v%d, v%d, s%d" % (T + 1, T, S_C))
        a.e("v_lshrrev_b32 v%d, 16, v%d" % (T + 1, T + 1))
        a.e("v_mul_u32_u24 v%d, 50, v%d" % (T + 2, T + 1))
        a.e("v_sub_u32 v%d, v%d, v%d" % (T + 2, T, T + 2))
        a.e("v_lshlrev_b32 v%d, 12, v%d" % (T + 3, T + 1))
        a.e("v_lshl_add_u32 v%d, v%d, 4, v%d" % (T + 3, T + 2, T + 3))
        a.e("v_add_u32 v%d, s%d, v%d" % (T + 3, S_T0, T + 3))
        a.e("v_cmp_le_u32 vcc, 20, v%d" % (T + 1))
        a.e("v_cmp_le_u32 s[%d:%d], 48, v%d" % (S_EX, S_EX + 1, T + 2))
        a.e("s_or_b64 vcc, vcc, s[%d:%d]" % (S_EX, S_EX + 1))
        a.e("v_mov_b32 v%d, 0x7fffff00" % (T + 4))
        a.e("s_lshl_b32 m0, s%d, 12" % S_W)
        a.e("v_cndmask_b32 v%d, v%d, v%d, vcc" % (T + 3, T + 3, T + 4))
        a.e("s_add_u32 m0, m0, %d" % (VL + i * 1024))
        a.e("s_nop 0")
        a.vmem("buffer_load_dwordx4 v%d, s[%d:%d], 0 offen lds" % (T + 3, SRD_V, SRD_V + 3), 'VD')
    a.stamp(1)
    a.stamp(2)
    a.e("v_lshrrev_b32 v%d, 2, v%d" % (T, V_L15))
    a.e("v_and_b32 v%d, 3, v%d" % (T + 1, V_L15))
    a.e("v_lshl_add_u32 v%d, v%d, 3, v%d" % (T, T, T + 1))
    a.e("v_bfe_u32 v%d, v%d, 4, 1" % (T + 1, T))
    a.e("v_lshlrev_b32 v%d, 1, v%d" % (T + 1, T + 1))
    a.e("v_xor_b32 v%d, v%d, v%d" % (T + 1, T + 1, V_G))
    a.e("v_lshlrev_b32 v%d, 6, v%d" % (T, T))
    a.e("v_lshl_add_u32 v%d, v%d, 4, v%d" % (T, T + 1, T))
    a.e("s_lshl_b32 s%d, s%d, 11" % (S_T0, S_W))
    a.e("v_add_u32 v%d, s%d, v%d" % (V_KA, S_T0, T))
    a.e("v_add_u32 v%d, 256, v%d" % (V_KA + 1, V_KA))
    a.e("v_mul_u32_u24 v%d, %d, v%d" % (T, PV, V_L15))
    a.e("v_lshl_add_u32 v%d, v%d, 4, v%d" % (T, V_G, T))
    a.e("s_lshl_b32 s%d, s%d, 6" % (S_T0, S_W))
    a.e("s_add_u32 s%d, s%d, %d" % (S_T0, S_T0, VL))
    a.e("v_add_u32 v%d, s%d, v%d" % (V_VA, S_T0, T))
    a.e("v_add_u32 v%d, 16, v%d" % (T, V_L15))
    a.e("v_add_u32 v%d, 17, v%d" % (T + 1, V_L15))
    a.e("v_min_u32 v%d, 22, v%d" % (T + 1, T + 1))
    a.e("v_cmp_gt_u32 vcc, 4, v%d" % V_L15)
    a.e("s_nop 1")
    a.e("v_cndmask_b32 v%d, v%d, v%d, vcc" % (T, T + 1, T))
    a.e("v_mul_u32_u24 v%d, %d, v%d" % (T, PV, T))
    a.e("v_lshl_add_u32 v%d, v%d, 4, v%d" % (T, V_G, T))
    a.e("v_add_u32 v%d, s%d, v%d" % (V_VA + 1, S_T0, T))
    a.e("v_lshlrev_b32 v%d, 3, v%d" % (T, V_G))
    a.e("v_sub_u32 v%d, v%d, v%d" % (V_A, V_L15, T))
    a.e("v_xor_b32 v%d, 16, v%d" % (T, V_LANE))
    a.e("v_lshlrev_b32 v%d, 2, v%d" % (V_X16, T))
    a.e("v_xor_b32 v%d, 32, v%d" % (T, V_LANE))
    a.e("v_lshlrev_b32 v%d, 2, v%d" % (V_X32, T))
    a.e("v_add_u32 v%d, 16, v%d" % (T, V_L15))
    a.e("v_lshlrev_b32 v%d, 2, v%d" % (V_BS, T))
    for i in range(16):
        a.e("v_mov_b32 v%d, 0" % (V_O + i))
    a.e("v_cmp_gt_u32 vcc, 48, v%d" % V_LANE)
    a.e("s_and_saveexec_b64 s[%d:%d], vcc" % (S_EX, S_EX + 1))
    a.e("s_cmp_lt_u32 s%d, 2" % S_W)
    labz = a.newlabel("ones")
    a.e("s_cbranch_scc0 %s" % labz)
    a.e("s_cmp_eq_u32 s%d, 0" % S_W)
    a.e("s_cselect_b32 s%d, 0x3f803f80, 0" % S_T0)
    for i in range(4):
        a.e("v_mov_b32 v%d, s%d" % (T + 4 + i, S_T0))
    a.e("s_mul_i32 s%d, s%d, %d" % (S_T0, S_W, PV))
    a.e("s_add_u32 s%d, s%d, %d" % (S_T0, S_T0, VL + 21 * PV))
    a.e("v_lshlrev_b32 v%d, 4, v%d" % (T, V_LANE))
    a.e("v_add_u32 v%d, s%d, v%d" % (T, S_T0, T))
    a.e("ds_write_b128 v%d, %s" % (T, vr(T + 4, 4)))
    a.label(labz)
    a.e("s_mov_b64 exec, s[%d:%d]" % (S_EX, S_EX + 1))
    emit_pack_calc(a, S_W, V_LANE, T, V_PD, V_PA, 44)
    a.e("v_cmp_gt_u32 vcc, 2, v%d" % V_G)
    a.e("v_cmp_gt_u32 s[%d:%d], 3, v%d" % (S_EX, S_EX + 1, V_G))
    a.e("s_waitcnt lgkmcnt(0)")
    a.wait_vm(['Q'])
    a.e("s_barrier")
    a.stamp(3)
    emit_pack_issue(a, V_PD, 44)
    for qt in range(2):
        a.e("v_cndmask_b32 v%d, 0, v%d, s[%d:%d]" % (V_Q + qt * 4, V_Q + qt * 4, S_EX, S_EX + 1))
        a.e("v_cndmask_b32 v%d, 0, v%d, s[%d:%d]" % (V_Q + qt * 4 + 1, V_Q + qt * 4 + 1, S_EX, S_EX + 1))
        a.e("v_cndmask_b32 v%d, 0, v%d, vcc" % (V_Q + qt * 4 + 2, V_Q + qt * 4 + 2))
        a.e("v_cndmask_b32 v%d, 0, v%d, vcc" % (V_Q + qt * 4 + 3, V_Q + qt * 4 + 3))
    a.stamp(4)

    def sreg(b, qt):
        return V_S + (b * 2 + qt) * 8

    def kread(b):
        for Tt in range(2):
            a.lds("ds_read_b128 %s, v%d offset:%d" % (vr(V_KF + (b & 1) * 8 + Tt * 4, 4), V_KA + Tt, KL + b * 2048), ('K', b))
    kread(0)
    for b in range(9):
        if b + 1 < 9:
            kread(b + 1)
        a.wait_lg([('K', b)])
        for qt in range(2):
            for Tt in range(2):
                a.e("v_mfma_f32_16x16x32_bf16 %s, %s, %s, 0" % (
                    vr(sreg(b, qt) + Tt * 4, 4), vr(V_KF + (b & 1) * 8 + Tt * 4, 4), vr(V_Q + qt * 4, 4)))
    a.wait_lg0()
    def vread(b):
        for dt in range(2):
            a.lds("ds_read_b128 %s, v%d offset:%d" % (vr(V_VF + (b & 1) * 8 + dt * 4, 4), V_VA + dt, b * 64), ('V', b))
    a.e("s_nop 7")
    a.e("s_nop 3")
    a.stamp(5)
    a.e("v_mov_b32 v%d, 0xf149f2ca" % (V_M + 2))
    for qt in range(2):
        for Tt in range(2):
            for r_ in range(4):
                th = Tt * 4 + r_ - qt * 16
                a.e("v_cmp_gt_i32 vcc, %d, v%d" % (th, V_A))
                a.e("s_nop 1")
                r0 = sreg(0, qt) + Tt * 4 + r_
                r8 = sreg(8, qt) + Tt * 4 + r_
                a.e("v_cndmask_b32 v%d, v%d, v%d, vcc" % (r0, V_M + 2, r0))
                a.e("v_cndmask_b32 v%d, v%d, v%d, vcc" % (r8, r8, V_M + 2))
    a.e("s_lshl_b32 s%d, s%d, 5" % (S_T0, S_W))
    a.e("s_add_u32 s%d, s%d, s%d" % (S_T0, S_T0, S_Q0))
    for b in range(8):
        lab = a.newlabel("neg")
        a.e("s_cmp_lt_i32 s%d, %d" % (S_T0, 256 - b * 32))
        a.e("s_cbranch_scc0 %s" % lab)
        for i in range(16):
            a.e("v_mov_b32 v%d, v%d" % (sreg(b, 0) + i, V_M + 2))
        a.label(lab)
    for qt in range(2):
        regs = [sreg(b, qt) + i for b in range(9) for i in range(8)]
        a.e("v_max3_f32 v%d, v%d, v%d, v%d" % (V_M + qt, regs[0], regs[1], regs[2]))
        for i in range(3, 71, 2):
            a.e("v_max3_f32 v%d, v%d, v%d, v%d" % (V_M + qt, V_M + qt, regs[i], regs[i + 1]))
        a.e("v_max_f32 v%d, v%d, v%d" % (V_M + qt, V_M + qt, regs[71]))
    for xr in (V_X16, V_X32):
        for qt in range(2):
            a.lds("ds_bpermute_b32 v%d, v%d, v%d" % (V_M + 2 + qt, xr, V_M + qt), 'x')
        a.wait_lg(['x'])
        for qt in range(2):
            a.e("v_max_f32 v%d, v%d, v%d" % (V_M + qt, V_M + qt, V_M + 2 + qt))
    cs = (DH ** -0.5) * 1.4426950408889634
    a.e("s_mov_b32 s%d, 0x%x" % (S_C, f32bits(cs)))
    for qt in range(2):
        a.e("v_mul_f32 v%d, s%d, v%d" % (V_M + qt, S_C, V_M + qt))
    a.e("v_mov_b32 v%d, s%d" % (V_KF, S_C))
    a.e("v_mov_b32 v%d, s%d" % (V_KF + 1, S_C))
    for qt in range(2):
        a.e("v_sub_f32 v%d, 0, v%d" % (V_KF + 2 + 2 * qt, V_M + qt))
        a.e("v_sub_f32 v%d, 0, v%d" % (V_KF + 3 + 2 * qt, V_M + qt))
    a.stamp(6)
    a.wait_vm(['VD'])
    a.e("s_barrier")
    vread(0)
    for b in range(9):
        for qt in range(2):
            r0 = sreg(b, qt)
            for i in range(0, 8, 2):
                a.e("v_pk_fma_f32 %s, %s, %s, %s" % (vr(r0 + i, 2), vr(r0 + i, 2), vr(V_KF, 2), vr(V_KF + 2 + 2 * qt, 2)))
            for i in range(8):
                a.e("v_exp_f32 v%d, v%d" % (r0 + i, r0 + i))
            a.e("s_nop 0")
            for i in range(4):
                a.e("v_cvt_pk_bf16_f32 v%d, v%d, v%d" % (r0 + i, r0 + 2 * i, r0 + 2 * i + 1))
        if b + 1 < 9:
            vread(b + 1)
        if b == 3:
            emit_pack_stores(a, S_WS, V_PD, V_PA, 44)
        a.wait_lg([('V', b)])
        a.e("s_nop 1")
        for dt in range(2):
            for qt in range(2):
                o = vr(V_O + (dt * 2 + qt) * 4, 4)
                a.e("v_mfma_f32_16x16x32_bf16 %s, %s, %s, %s" % (
                    o, vr(V_VF + (b & 1) * 8 + dt * 4, 4), vr(sreg(b, qt), 4), o))
    a.e("s_nop 7")
    a.e("s_nop 3")
    a.stamp(7)
    a.stamp(8)
    for qt in range(2):
        a.lds("ds_bpermute_b32 v%d, v%d, v%d" % (V_M + qt, V_BS, V_O + (2 + qt) * 4), 'x')
    a.e("s_lshl_b32 s%d, s%d, 5" % (S_T0, S_W))
    a.e("s_add_u32 s%d, s%d, s%d" % (S_T0, S_T0, S_Q0))
    a.e("v_add_u32 v%d, s%d, v%d" % (T, S_T0, V_L15))
    a.e("s_movk_i32 s%d, 1280" % S_T1)
    a.e("v_mul_lo_u32 v%d, v%d, s%d" % (T, T, S_T1))
    a.e("v_lshl_add_u32 v%d, v%d, 3, v%d" % (T, V_G, T))
    a.e("s_mul_i32 s%d, s%d, 40" % (S_T0, S_H))
    a.e("v_add_u32 v%d, s%d, v%d" % (T, S_T0, T))
    a.e("v_add_u32 v%d, %d, v%d" % (T + 1, 16 * 1280, T))
    a.wait_lg(['x'])
    for qt in range(2):
        a.e("v_rcp_f32 v%d, v%d" % (V_M + qt, V_M + qt))
    a.e("s_nop 0")
    for qt in range(2):
        for dt in range(2):
            o = V_O + (dt * 2 + qt) * 4
            for r_ in range(4):
                a.e("v_mul_f32 v%d, v%d, v%d" % (o + r_, o + r_, V_M + qt))
            a.e("v_cvt_pk_bf16_f32 v%d, v%d, v%d" % (o, o, o + 1))
            a.e("v_cvt_pk_bf16_f32 v%d, v%d, v%d" % (o + 1, o + 2, o + 3))
    for qt in range(2):
        a.e("buffer_store_dwordx2 %s, v%d, s[%d:%d], 0 offen offset:%d" % (
            vr(V_O + qt * 4, 2), T + qt, SRD_O, SRD_O + 3, 0))
    a.e("v_cmp_eq_u32 vcc, 0, v%d" % V_G)
    a.e("s_and_saveexec_b64 s[%d:%d], vcc" % (S_EX, S_EX + 1))
    for qt in range(2):
        a.e("buffer_store_dwordx2 %s, v%d, s[%d:%d], 0 offen offset:%d" % (
            vr(V_O + (2 + qt) * 4, 2), T + qt, SRD_O, SRD_O + 3, 32))
    a.e("s_mov_b64 exec, s[%d:%d]" % (S_EX, S_EX + 1))
    a.stamp(9)
    a.stamp_out(10, V_T, wg=40)
    a.label(L_end)
    a.e("s_endpgm")
    return a.lines, kernel_desc(name, nv, 0), 512, lds_bytes, 256


def gen_fused(name):
    a = Asm()
    kernel_header(a, name)
    a.e("s_cmp_ge_u32 s2, 256")
    a.e("s_cbranch_scc1 %s_end" % name)
    a.e("s_load_dwordx2 s[4:5], s[0:1], %d" % KA['ws'])
    a.e("s_load_dwordx2 s[62:63], s[0:1], %d" % KA['x'])
    a.e("s_load_dwordx4 s[64:67], s[0:1], %d" % KA['out'])
    a.e("s_waitcnt lgkmcnt(0)")
    a.e("s_mov_b32 s68, s66")
    a.e("s_and_b32 s69, s67, 0xffff")
    a.e("s_mov_b32 s70, 256")
    a.e("s_mov_b32 s71, 0x00020000")
    r = []
    r.append(gen_gemm("f3", 640, 640, 64, 80, ('ws', WS_O), 'wo', 0, 'res', 128, fz=dict(a=a, wait=None, signal=(1, 0))))
    r.append(gen_gemm("f4", 640, 640, 64, 80, ('ws', WS_H), 'w1', 2, 'gelu', 128, fz=dict(a=a, wait=(1, 0, 1, 0, 8), signal=(1, 1))))
    r.append(gen_gemm("f5", 640, 640, 64, 80, ('ws', WS_HG), 'w2', 0, 'x1', 128, shift=True, fz=dict(a=a, wait=(1, -1, 3, 1, 8), signal=(1, 2))))
    r.append(gen_gemm("f6", 640, 1536, 128, 96, ('ws', WS_X1), 'w3', 1, 'gelu', 64, early=True, fz=dict(a=a, wait=(2, 0, 2, 2, 8), signal=(2, 3))))
    r.append(gen_gemm("f7", 1536, 640, 64, 80, ('ws', WS_G), 'w4', 0, 'out', 128, fz=dict(a=a, wait=(0, 0, 1, 3, 16), signal=None)))
    a.label(name + "_end")
    a.e("s_endpgm")
    nv = max(x[0] for x in r)
    nag = max(x[1] for x in r)
    assert (nv + 3) // 4 * 4 + nag <= 256
    return a.lines, kernel_desc(name, nv, nag), 256, max(x[2] for x in r), 512


def main():
    out = sys.argv[1] if len(sys.argv) > 1 else "sequential_preLN__sliding_block__mixer_s_mlp__prompt.s"
    ks = []
    ks.append(("k1_kernel",) + gen_gemm("k1_kernel", 640, 1920, 128, 128, ('in', 'x'), 'wqkv', 1, 'qkv', 64, early=True, roll=True))
    ks.append(("k2_kernel",) + gen_attn("k2_kernel"))
    if 'fused' in ABL:
        ks.append(("kf_kernel",) + gen_fused("kf_kernel"))
    else:
      ks.append(("k3_kernel",) + gen_gemm("k3_kernel", 640, 640, 64, 80, ('ws', WS_O), 'wo', 0, 'res', 128, early=True, roll=True))
      ks.append(("k4_kernel",) + gen_gemm("k4_kernel", 640, 640, 64, 80, ('ws', WS_H), 'w1', 2, 'gelu', 128, early=True, roll=True))
      ks.append(("k5_kernel",) + gen_gemm("k5_kernel", 640, 640, 64, 80, ('ws', WS_HG), 'w2', 0, 'x1', 128, shift=True, pf=('w3', 640 * 1536 * 2)))
      ks.append(("k6_kernel",) + gen_gemm("k6_kernel", 640, 1536, 128, 96, ('ws', WS_X1), 'w3', 1, 'gelu', 64, early=True, roll=True))
      ks.append(("k7_kernel",) + gen_gemm("k7_kernel", 1536, 640, 64, 80, ('ws', WS_G), 'w4', 0, 'out', 128, early=True, roll=True))
    hdr = open("sequential_preLN__sliding_block__mixer_s_mlp__prompt.s.ref").read().split("\n")
    txt = []
    for l in hdr:
        if l.startswith("; @launch") or l.startswith("; Override") or l.startswith("; grid="):
            continue
        if not l.startswith(";"):
            break
        txt.append(l)
    for (nm, lines, desc, ntiles, lds, blk) in ks:
        txt.append("; @launch kernel=%s grid=(%d,1,1) block=(%d,1,1) lds=%d" % (nm, ntiles, blk, lds))
    txt.append('.amdgcn_target "amdgcn-amd-amdhsa--gfx950"')
    txt.append(".text")
    for (nm, lines, desc, ntiles, lds, blk) in ks:
        txt += lines
    txt.append('.section .rodata,"a"')
    for (nm, lines, desc, ntiles, lds, blk) in ks:
        txt.append(".p2align 6")
        txt.append(desc)
    open(out, "w").write("\n".join(txt) + "\n")
    print("wrote", out, "lines", len(txt))


if __name__ == "__main__":
    main()
```
